```python
import torch

def _softmax(x, axis=-1):
    return torch.softmax(x, dim=axis)
def _gelu(x):
    return torch.nn.functional.gelu(x, approximate="tanh")
def _silu(x):
    return torch.nn.functional.silu(x)
def _sigmoid(x):
    return torch.sigmoid(x)
def _layernorm(x, axis=-1, eps=1e-5):
    m = x.mean(dim=axis, keepdim=True)
    v = x.var(dim=axis, keepdim=True, unbiased=False)
    return (x - m) / torch.sqrt(v + eps)
def _scatter_add(tgt, idx, src, axis=0):
    return tgt.clone().index_add_(axis, idx, src)
def _segment_sum(src, seg, n):
    out = torch.zeros((n,) + src.shape[1:], dtype=src.dtype)
    return out.index_add_(0, seg, src)
def _pad(x, pw):
    flat = tuple(v for pair in reversed(pw) for v in pair)
    return torch.nn.functional.pad(x, flat)

kernel_name = 'sequential_preLN__sliding_block__glu_gated_swiglu__prompt'

def setup_inputs():

    _w = (lambda a: (lambda t: t.to(torch.bfloat16) if t.is_floating_point() else t)(torch.as_tensor(a)))
    def _A_setup():
        B, S, D = 1, 2048, 512
        return {
            "x": _w((lambda *s: torch.randn(*s, dtype=torch.bfloat16) * 0.05)(B, S, D)),
            "wqkv": _w((lambda *s: torch.randn(*s, dtype=torch.bfloat16) * 0.05)(D, 3 * D)),
            "wo": _w((lambda *s: torch.randn(*s, dtype=torch.bfloat16) * 0.05)(D, D)),
        }
    _A_in = _A_setup()

    def _B_setup():
        B, S, D, F = 1, 2048, 512, 1792
        return {
            "x": _w((lambda *s: torch.randn(*s, dtype=torch.bfloat16) * 0.05)(B, S, D)),
            "w1": _w((lambda *s: torch.randn(*s, dtype=torch.bfloat16) * 0.8)(D, F) * (2.0 / D) ** 0.5),
            "w3": _w((lambda *s: torch.randn(*s, dtype=torch.bfloat16) * 0.8)(D, F) * (2.0 / D) ** 0.5),
            "w2": _w((lambda *s: torch.randn(*s, dtype=torch.bfloat16) * 0.8)(F, D) * (2.0 / F) ** 0.5),
        }
    _B_in = _B_setup()

    return {
        "A_x": _A_in["x"],
        "A_wqkv": _A_in["wqkv"],
        "A_wo": _A_in["wo"],
        "B_x": _B_in["x"],
        "B_w1": _B_in["w1"],
        "B_w3": _B_in["w3"],
        "B_w2": _B_in["w2"],
    }

def reference(A_x, A_wqkv, A_wo, B_x, B_w1, B_w3, B_w2):
    def _A_ref(x, wqkv, wo):
        B, S, D = x.shape
        H = 32; Dh = D // H; W = 256
        qkv = (lambda x, *d: x.permute(*d))((x @ wqkv).reshape(B, S, 3, H, Dh), 2, 0, 3, 1, 4)
        q, k, v = qkv[0], qkv[1], qkv[2]
        scores = torch.einsum("bhqd,bhkd->bhqk", q, k) * (Dh ** -0.5)
        idx = torch.arange(S)
        mask = (idx[:, None] - idx[None, :] >= 0) & (idx[:, None] - idx[None, :] < W)
        scores = torch.where(mask[None, None], scores, -1e9)
        p = _softmax(scores, axis=-1)
        o = torch.einsum("bhqk,bhkd->bhqd", p, v)
        return (lambda x, *d: x.permute(*d))(o, 0, 2, 1, 3).reshape(B, S, D) @ wo

    def _B_ref(x, w1, w3, w2):
        gate = torch.einsum("bsd,df->bsf", x, w1)
        up = torch.einsum("bsd,df->bsf", x, w3)
        h = _silu(gate) * up
        out = torch.einsum("bsf,fd->bsd", h, w2)
        return out

    x = A_x
    h = x + _A_ref(_layernorm(x, axis=-1), A_wqkv, A_wo)
    h2 = h + _B_ref(_layernorm(h, axis=-1), B_w1, B_w3, B_w2)
    return h2
```

```python
import sys

MB = 1 << 20
WS_QKV = 0
WS_ATTN = 6 * MB
WS_H = 8 * MB
WS_HMID = 10 * MB
LOG2E = 1.4426950408889634
QSCALE = 0.25 * LOG2E

P_X, P_WQKV, P_WO, P_BX, P_W1, P_W3, P_W2, P_OUT, P_DBG, P_WS = [64 + 2 * i for i in range(10)]


def f32hex(x):
    import struct
    return "0x%08x" % struct.unpack("<I", struct.pack("<f", x))[0]


class G:
    def __init__(self):
        self.lines = []
        self.vmq = []
        self.lgq = []
        self.nlabel = 0

    def e(self, s):
        self.lines.append("    " + s)

    def label(self, s):
        self.lines.append(s + ":")

    def newlabel(self, p):
        self.nlabel += 1
        return "L_%s_%d" % (p, self.nlabel)

    def vm(self, s, tag):
        self.e(s)
        self.vmq.append(tag)
        assert len(self.vmq) <= 63, "too many outstanding vmem"

    def lg(self, s, tag):
        self.e(s)
        self.lgq.append(tag)
        assert len(self.lgq) <= 15, "too many outstanding lgkm"

    def _wait(self, q, tag):
        if tag not in q:
            return None, q
        idx = len(q) - 1 - q[::-1].index(tag)
        return len(q) - 1 - idx, q[idx + 1:]

    def wait_vm(self, tag):
        n, self.vmq = self._wait(self.vmq, tag)
        if n is not None:
            self.e("s_waitcnt vmcnt(%d)" % n)

    def wait_lg(self, tag):
        n, self.lgq = self._wait(self.lgq, tag)
        if n is not None:
            self.e("s_waitcnt lgkmcnt(%d)" % n)

    def wait_all(self):
        self.e("s_waitcnt vmcnt(0) lgkmcnt(0)")
        self.vmq = []
        self.lgq = []

    def nop(self, n):
        while n > 0:
            k = min(n, 16)
            self.e("s_nop %d" % (k - 1))
            n -= k

    def begin(self, name, nwg):
        self.lines.append(".globl %s" % name)
        self.lines.append(".p2align 8")
        self.lines.append(".type %s,@function" % name)
        self.label(name)
        self.vmq = []
        self.lgq = []
        self.e("s_cmp_ge_u32 s2, %d" % nwg)
        self.e("s_cbranch_scc1 L_end_%s" % name)
        self.e("s_load_dwordx16 s[64:79], s[0:1], 0")
        self.e("s_load_dwordx4 s[80:83], s[0:1], 64")
        self.e("v_and_b32 v1, 63, v0")
        self.e("v_lshrrev_b32 v2, 6, v0")
        self.e("s_nop 0")
        self.e("v_readfirstlane_b32 s3, v2")
        self.e("s_waitcnt lgkmcnt(0)")

    def end(self, name):
        self.label("L_end_%s" % name)
        self.e("s_endpgm")

    def srd(self, d, ptr, off, size):
        if off:
            self.e("s_add_u32 s%d, s%d, 0x%x" % (d, ptr, off))
            self.e("s_addc_u32 s%d, s%d, 0" % (d + 1, ptr + 1))
        else:
            self.e("s_mov_b32 s%d, s%d" % (d, ptr))
            self.e("s_mov_b32 s%d, s%d" % (d + 1, ptr + 1))
        self.e("s_mov_b32 s%d, 0x%x" % (d + 2, size))
        self.e("s_mov_b32 s%d, 0x00020000" % (d + 3))


def vr(b, n=4):
    return "v[%d:%d]" % (b, b + n - 1)


def ar(b, n=4):
    return "a[%d:%d]" % (b, b + n - 1)


def pipeline(g, items, D, stage_of, on_stage_start, issue_reads, do_mfma):
    n = len(items)
    for i in range(-D, n):
        j = i + D
        if j < n:
            if j == 0 or stage_of(items[j]) != stage_of(items[j - 1]):
                on_stage_start(stage_of(items[j]))
            issue_reads(j, items[j])
        if i >= 0:
            g.wait_lg(("it", i))
            do_mfma(i, items[i])


def gemm_res(g, name, a_ptr, a_off, a_rowb, KD, w_ptr, res_ptr, res_off, out_ptr, out_off, nslots):
    g.begin(name, 256)
    nks = KD // 32
    nst = KD // 128
    ring = nslots < nst
    SA, SW, SR, SO = 4, 8, 12, 16
    g.srd(SA, a_ptr, a_off, 2048 * a_rowb)
    g.srd(SW, w_ptr, 0, KD * 1024)
    g.srd(SR, res_ptr, res_off, 2048 * 1024)
    g.srd(SO, out_ptr, out_off, 2048 * 1024)
    g.e("s_and_b32 s20, s2, 31")
    g.e("s_lshr_b32 s21, s2, 5")
    g.e("s_lshl_b32 s22, s20, 6")
    g.e("s_lshl_b32 s23, s3, 4")
    g.e("s_add_u32 s22, s22, s23")
    g.e("v_and_b32 v3, 15, v1")
    g.e("v_add_u32 v3, s22, v3")
    g.e("v_lshrrev_b32 v4, 4, v1")
    g.e("v_mov_b32 v5, %d" % a_rowb)
    g.e("v_mul_lo_u32 v5, v3, v5")
    g.e("v_lshl_add_u32 v5, v4, 4, v5")
    g.e("v_lshlrev_b32 v6, 10, v3")
    g.e("v_lshl_add_u32 v6, v4, 3, v6")
    g.e("s_lshl_b32 s23, s21, 7")
    g.e("v_add_u32 v6, s23, v6")
    g.e("v_lshrrev_b32 v9, 3, v1")
    g.e("v_and_b32 v10, 7, v1")
    g.e("v_bfe_u32 v11, v1, 4, 1")
    g.e("v_lshlrev_b32 v11, 1, v11")
    g.e("v_xor_b32 v10, v10, v11")
    g.e("v_lshlrev_b32 v9, 10, v9")
    g.e("v_lshl_add_u32 v7, v10, 4, v9")
    g.e("v_xor_b32 v10, 4, v10")
    g.e("v_lshl_add_u32 v8, v10, 4, v9")
    g.e("s_lshl_b32 s24, s3, 15")
    g.e("s_add_u32 s24, s24, s23")
    g.e("s_lshl_b32 s25, s3, 12")
    g.e("v_bfe_u32 v9, v1, 2, 2")
    g.e("v_lshl_add_u32 v10, v4, 3, v9")
    g.e("v_lshlrev_b32 v10, 7, v10")
    g.e("v_bfe_u32 v11, v1, 1, 1")
    g.e("v_lshl_add_u32 v10, v11, 4, v10")
    g.e("v_and_b32 v11, 1, v1")
    g.e("v_lshl_add_u32 v10, v11, 3, v10")
    g.e("v_bfe_u32 v11, v1, 3, 1")
    g.e("v_bfe_u32 v12, v1, 4, 1")
    g.e("v_lshl_or_b32 v11, v12, 1, v11")
    g.e("v_lshlrev_b32 v11, 1, v11")
    TA = 12
    for nt in range(4):
        g.e("v_xor_b32 v20, %d, v11" % (2 * nt))
        g.e("v_lshl_add_u32 v%d, v20, 4, v10" % (TA + nt))
        g.e("v_add_u32 v%d, 0x10000, v%d" % (TA + 4 + nt, TA + nt))
    RES = 20
    ACC = 28
    WF = 44
    D = 6
    NR = D + 2

    def issue_stage(s):
        slot = s % nslots
        for q in range(4):
            g.e("s_add_u32 m0, s25, 0x%x" % (slot * 16384 + q * 1024))
            g.e("s_add_u32 s26, s24, 0x%x" % ((s * 128 + q * 8) * 1024))
            g.vm("buffer_load_dwordx4 v%d, s[%d:%d], s26 offen lds" % (7 + (q & 1), SW, SW + 3), ("st", s))
        for k4 in range(4):
            ks = s * 4 + k4
            g.vm("buffer_load_dwordx4 %s, v5, s[%d:%d], 0 offen offset:%d" % (ar(ks * 4), SA, SA + 3, ks * 64), ("st", s))

    npro = min(nst, nslots - 1) if ring else nst
    issue_stage(0)
    for nt in range(4):
        g.vm("buffer_load_dwordx2 %s, v6, s[%d:%d], 0 offen offset:%d" % (vr(RES + 2 * nt, 2), SR, SR + 3, nt * 32), "res")
    for s in range(1, npro):
        issue_stage(s)

    items = [(ks, nt) for ks in range(nks) for nt in range(4)]

    def on_stage_start(s):
        g.wait_vm(("st", s))
        g.e("s_barrier")
        if ring and s >= 1 and s + nslots - 2 < nst:
            issue_stage(s + nslots - 2)

    def issue_reads(j, it):
        ks, nt = it
        s = ks // 4
        slot = s % nslots
        off = slot * 16384 + (ks % 4) * 32 * 128
        a = TA + nt
        if off >= 65536:
            off -= 65536
            a += 4
        w = WF + (j % NR) * 4
        g.lg("ds_read_b64_tr_b16 %s, v%d offset:%d" % (vr(w, 2), a, off), ("it", j))
        g.lg("ds_read_b64_tr_b16 %s, v%d offset:%d" % (vr(w + 2, 2), a, off + 512), ("it", j))

    def do_mfma(i, it):
        ks, nt = it
        w = WF + (i % NR) * 4
        acc = vr(ACC + nt * 4)
        g.e("v_mfma_f32_16x16x32_bf16 %s, %s, %s, %s" % (acc, vr(w), ar(ks * 4), "0" if ks == 0 else acc))

    pipeline(g, items, D, lambda it: it[0] // 4, on_stage_start, issue_reads, do_mfma)
    g.wait_vm("res")
    g.nop(16)
    T = WF
    for nt in range(4):
        a = ACC + nt * 4
        r = RES + 2 * nt
        g.e("v_lshlrev_b32 v%d, 16, v%d" % (T, r))
        g.e("v_and_b32 v%d, 0xffff0000, v%d" % (T + 1, r))
        g.e("v_lshlrev_b32 v%d, 16, v%d" % (T + 2, r + 1))
        g.e("v_and_b32 v%d, 0xffff0000, v%d" % (T + 3, r + 1))
        for k in range(4):
            g.e("v_add_f32 v%d, v%d, v%d" % (a + k, a + k, T + k))
        g.e("v_cvt_pk_bf16_f32 v%d, v%d, v%d" % (a, a, a + 1))
        g.e("v_cvt_pk_bf16_f32 v%d, v%d, v%d" % (a + 1, a + 2, a + 3))
        g.vm("buffer_store_dwordx2 %s, v6, s[%d:%d], 0 offen offset:%d" % (vr(a, 2), SO, SO + 3, nt * 32), "out")
    g.end(name)
    nv = WF + NR * 4
    return dict(name=name, grid=256, lds=nslots * 16384 if ring else nst * 16384, vgpr=nv, agpr=nks * 4)


def ln_gemm(g, name, mode):
    qkv = mode == "qkv"
    g.begin(name, 256)
    NT = 6 if qkv else 14
    nks = 16
    nst = 8
    nslots = 8 if qkv else 5
    ring = not qkv
    SLOTB = 28672
    CSB = 98304 if qkv else 5 * SLOTB
    lds = CSB + 1024
    SA, SW, SO = 4, 8, 12
    if qkv:
        g.srd(SA, P_X, 0, 2048 * 1024)
        g.srd(SW, P_WQKV, 0, 512 * 3072)
        g.srd(SO, P_WS, WS_QKV, 6 * MB)
    else:
        g.srd(SA, P_WS, WS_H, 2048 * 1024)
        g.e("s_cmp_lt_u32 s3, 2")
        g.e("s_cselect_b32 s%d, s%d, s%d" % (SW, P_W1, P_W3))
        g.e("s_cselect_b32 s%d, s%d, s%d" % (SW + 1, P_W1 + 1, P_W3 + 1))
        g.e("s_mov_b32 s%d, 0x%x" % (SW + 2, 512 * 3584))
        g.e("s_mov_b32 s%d, 0x00020000" % (SW + 3))
        g.srd(SO, P_WS, WS_HMID, 2048 * 3584)
    g.e("s_and_b32 s20, s2, 15")
    g.e("s_lshr_b32 s21, s2, 4")
    g.e("s_lshl_b32 s22, s20, 7")
    g.e("s_lshl_b32 s23, s3, 5")
    g.e("s_add_u32 s22, s22, s23")
    g.e("v_and_b32 v3, 15, v1")
    g.e("v_add_u32 v3, s22, v3")
    g.e("v_lshrrev_b32 v4, 4, v1")
    g.e("v_lshlrev_b32 v5, 10, v3")
    g.e("v_lshl_add_u32 v5, v4, 4, v5")
    g.e("v_add_u32 v6, 0x4000, v5")
    g.e("v_bfe_u32 v9, v1, 2, 2")
    if qkv:
        g.e("v_lshlrev_b32 v7, 5, v3")
        g.e("v_lshl_add_u32 v7, v4, 3, v7")
        g.e("v_lshrrev_b32 v10, 2, v1")
        g.e("v_mul_u32_u24 v10, 3072, v10")
        g.e("v_bfe_u32 v11, v1, 5, 1")
        g.e("v_lshlrev_b32 v11, 1, v11")
        g.e("v_and_b32 v12, 3, v1")
        g.e("v_xor_b32 v12, v12, v11")
        g.e("v_lshl_add_u32 v8, v12, 4, v10")
        g.e("s_mul_i32 s24, s3, %d" % (16 * 3072))
        g.e("s_lshl_b32 s23, s21, 6")
        g.e("s_add_u32 s24, s24, s23")
        g.e("s_lshl_b32 s25, s3, 10")
        g.e("v_lshl_add_u32 v10, v4, 3, v9")
        g.e("v_lshlrev_b32 v10, 6, v10")
        g.e("v_bfe_u32 v11, v1, 1, 1")
        g.e("v_lshl_add_u32 v10, v11, 4, v10")
        g.e("v_and_b32 v11, 1, v1")
        g.e("v_lshl_add_u32 v10, v11, 3, v10")
        g.e("v_bfe_u32 v11, v1, 4, 1")
        g.e("v_lshlrev_b32 v11, 1, v11")
        g.e("v_lshl_add_u32 v12, v11, 4, v10")
        g.e("v_xor_b32 v11, 2, v11")
        g.e("v_lshl_add_u32 v13, v11, 4, v10")
        g.e("v_add_u32 v14, 0x10000, v12")
        g.e("v_add_u32 v15, 0x10000, v13")
        nextv = 16
        DV = 8
    else:
        g.e("v_mul_u32_u24 v7, 3584, v3")
        g.e("v_lshl_add_u32 v7, v4, 3, v7")
        g.e("s_mul_i32 s23, s21, 224")
        g.e("v_add_u32 v7, s23, v7")
        g.e("s_and_b32 s24, s3, 1")
        g.e("s_mul_i32 s24, s24, 448")
        g.e("v_add_u32 v10, s24, v1")
        DV = 16
        for q in range(7):
            g.e("v_add_u32 v11, %d, v10" % (q * 64))
            g.e("v_mul_u32_u24 v12, 4682, v11")
            g.e("v_lshrrev_b32 v12, 16, v12")
            g.e("v_mul_u32_u24 v13, 14, v12")
            g.e("v_sub_u32 v13, v11, v13")
            g.e("v_and_b32 v14, 0x33, v12")
            g.e("v_bfe_u32 v15, v12, 2, 1")
            g.e("v_lshl_or_b32 v14, v15, 3, v14")
            g.e("v_bfe_u32 v15, v12, 3, 1")
            g.e("v_lshl_or_b32 v14, v15, 2, v14")
            g.e("v_mul_u32_u24 v14, 3584, v14")
            g.e("v_lshl_add_u32 v%d, v13, 4, v14" % (DV + q))
        g.e("s_mov_b32 s24, s23")
        g.e("s_mul_i32 s25, s3, 7168")
        g.e("v_bfe_u32 v10, v1, 5, 1")
        g.e("v_lshl_add_u32 v10, v10, 4, v9")
        g.e("v_bfe_u32 v11, v1, 4, 1")
        g.e("v_lshl_add_u32 v10, v11, 2, v10")
        g.e("v_mul_u32_u24 v10, 224, v10")
        g.e("v_and_b32 v11, 3, v1")
        g.e("v_lshl_add_u32 v23, v11, 3, v10")
        for sl in range(1, 5):
            g.e("v_add_u32 v%d, 0x%x, v23" % (23 + sl, sl * SLOTB))
        nextv = 28
    ONES = nextv
    for k in range(4):
        g.e("v_mov_b32 v%d, 0x3f803f80" % (ONES + k))
    SUM = ONES + 4
    GRAM = SUM + 8
    CSA = GRAM + 8
    WF = CSA + 16
    D = 6
    NR = D + 2
    nextv = WF + NR * 4
    AX = 0
    if qkv:
        ACCV = nextv
        nextv += 48
        acc = lambda tt, ct: vr(ACCV + (tt * NT + ct) * 4)
    else:
        acc = lambda tt, ct: ar(128 + (tt * NT + ct) * 4)

    def issue_stage(s):
        if qkv:
            for seg in range(3):
                g.e("s_add_u32 m0, s25, 0x%x" % (seg * 32768 + s * 4096))
                g.e("s_add_u32 s26, s24, 0x%x" % (s * 64 * 3072 + seg * 1024))
                g.vm("buffer_load_dwordx4 v%d, s[%d:%d], s26 offen lds" % (DV, SW, SW + 3), ("st", s))
        else:
            slot = s % nslots
            g.e("s_add_u32 s26, s24, 0x%x" % (s * 64 * 3584))
            for q in range(7):
                g.e("s_add_u32 m0, s25, 0x%x" % (slot * SLOTB + q * 1024))
                g.e("s_nop 0")
                g.vm("buffer_load_dwordx4 v%d, s[%d:%d], s26 offen lds" % (DV + q, SW, SW + 3), ("st", s))
        for k2 in range(2):
            ks = s * 2 + k2
            for tt in range(2):
                g.vm("buffer_load_dwordx4 %s, v%d, s[%d:%d], 0 offen offset:%d" % (
                    ar(AX + (tt * 16 + ks) * 4), 5 + tt, SA, SA + 3, ks * 64), ("st", s))

    npro = nslots - 1 if ring else nst
    for s in range(npro):
        issue_stage(s)

    items = [(ks, ct) for ks in range(nks) for ct in range(NT)]

    def on_stage_start(s):
        g.wait_vm(("st", s))
        g.e("s_barrier")
        if ring and s >= 1 and s + nslots - 2 < nst:
            issue_stage(s + nslots - 2)

    def issue_reads(j, it):
        ks, ct = it
        w = WF + (j % NR) * 4
        if qkv:
            seg, p = ct >> 1, ct & 1
            a = 12 + p
            off = seg * 32768 + ks * 32 * 64
            if seg == 2:
                a += 2
                off -= 65536
            off2 = off + 256
        else:
            s = ks // 2
            a = 23 + s % nslots
            mat, nt = ct // 7, ct % 7
            off = mat * 14336 + (ks % 2) * 32 * 224 + nt * 32
            off2 = off + 8 * 224
        g.lg("ds_read_b64_tr_b16 %s, v%d offset:%d" % (vr(w, 2), a, off), ("it", j))
        g.lg("ds_read_b64_tr_b16 %s, v%d offset:%d" % (vr(w + 2, 2), a, off2), ("it", j))

    def do_mfma(i, it):
        ks, ct = it
        w = WF + (i % NR) * 4
        for tt in range(2):
            x = ar(AX + (tt * 16 + ks) * 4)
            a = acc(tt, ct)
            g.e("v_mfma_f32_16x16x32_bf16 %s, %s, %s, %s" % (a, vr(w), x, "0" if ks == 0 else a))
        L = g.newlabel("cs")
        g.e("s_cmp_lg_u32 s3, %d" % (ct & 3))
        g.e("s_cbranch_scc1 %s" % L)
        c = vr(CSA + (ct >> 2) * 4)
        g.e("v_mfma_f32_16x16x32_bf16 %s, %s, %s, %s" % (c, vr(w), vr(ONES), "0" if ks == 0 else c))
        g.label(L)
        if ct < 2:
            tt = ct
            x = ar(AX + (tt * 16 + ks) * 4)
            s_ = vr(SUM + tt * 4)
            q_ = vr(GRAM + tt * 4)
            g.e("v_mfma_f32_16x16x32_bf16 %s, %s, %s, %s" % (s_, vr(ONES), x, "0" if ks == 0 else s_))
            g.e("v_mfma_f32_16x16x32_bf16 %s, %s, %s, %s" % (q_, x, x, "0" if ks == 0 else q_))

    pipeline(g, items, D, lambda it: it[0] // 2, on_stage_start, issue_reads, do_mfma)
    g.nop(16)
    T = WF
    g.e("s_lshl_b32 s27, s3, 6")
    g.e("v_lshlrev_b32 v%d, 4, v4" % T)
    g.e("v_add_u32 v%d, 0x%x, v%d" % (T + 1, CSB, T))
    g.e("v_add_u32 v%d, s27, v%d" % (T, T + 1))
    g.e("s_mov_b32 s28, 0x00010001")
    g.e("s_mov_b32 s29, 0x00010001")
    g.e("s_mov_b64 exec, s[28:29]")
    for i in range((NT + 3) // 4):
        g.lg("ds_write_b128 v%d, %s offset:%d" % (T, vr(CSA + i * 4), i * 256), "csw")
    g.e("s_mov_b64 exec, -1")
    for r in range(4):
        m = 0
        for gg in range(4):
            m |= 1 << (20 * gg + r)
        g.e("s_mov_b32 s%d, 0x%x" % (30 + 2 * r, m & 0xffffffff))
        g.e("s_mov_b32 s%d, 0x%x" % (31 + 2 * r, m >> 32))
    MEAN = SUM
    for tt in range(2):
        d = T + 2
        g.e("v_mov_b32 v%d, 0" % d)
        for r in range(4):
            g.e("v_cndmask_b32_e64 v%d, v%d, v%d, s[%d:%d]" % (d, d, GRAM + tt * 4 + r, 30 + 2 * r, 31 + 2 * r))
        g.e("v_mov_b32 v%d, v%d" % (d + 1, d))
        g.nop(2)
        g.e("v_permlane16_swap_b32 v%d, v%d" % (d, d + 1))
        g.nop(1)
        g.e("v_add_f32 v%d, v%d, v%d" % (d, d, d + 1))
        g.e("v_mov_b32 v%d, v%d" % (d + 1, d))
        g.nop(2)
        g.e("v_permlane32_swap_b32 v%d, v%d" % (d, d + 1))
        g.nop(1)
        g.e("v_add_f32 v%d, v%d, v%d" % (d, d, d + 1))
        m = SUM + tt * 4
        g.e("v_mul_f32 v%d, %s, v%d" % (m, f32hex(1.0 / 512), m))
        g.e("v_mul_f32 v%d, %s, v%d" % (d, f32hex(1.0 / 512), d))
        g.e("v_fma_f32 v%d, -v%d, v%d, v%d" % (d, m, m, d))
        g.e("v_max_f32 v%d, 0, v%d" % (d, d))
        g.e("v_add_f32 v%d, %s, v%d" % (d, f32hex(1e-5), d))
        g.e("v_rsq_f32 v%d, v%d" % (m + 1, d))
        g.nop(1)
        if qkv:
            g.e("v_mul_f32 v%d, %s, v%d" % (m + 2, f32hex(QSCALE), m + 1))
    g.wait_lg("csw")
    g.e("s_barrier")
    CS = T + 4
    if qkv:
        for ct in range(NT):
            g.lg("ds_read_b128 %s, v%d offset:%d" % (vr(CS + (ct & 1) * 4), T + 1, ct * 64), ("cs", ct))
            g.wait_lg(("cs", ct))
            seg, p = ct >> 1, ct & 1
            g.e("s_lshl_b32 s26, s21, 17")
            g.e("s_add_u32 s26, s26, 0x%x" % (seg * 2 * MB + p * 65536))
            for tt in range(2):
                a = ACCV + (tt * NT + ct) * 4
                m = SUM + tt * 4
                rs = m + 2 if seg == 0 else m + 1
                for k in range(4):
                    g.e("v_fma_f32 v%d, -v%d, v%d, v%d" % (a + k, m, CS + (ct & 1) * 4 + k, a + k))
                for k in range(4):
                    g.e("v_mul_f32 v%d, v%d, v%d" % (a + k, a + k, rs))
                g.e("v_cvt_pk_bf16_f32 v%d, v%d, v%d" % (a, a, a + 1))
                g.e("v_cvt_pk_bf16_f32 v%d, v%d, v%d" % (a + 1, a + 2, a + 3))
                g.vm("buffer_store_dwordx2 %s, v7, s[%d:%d], s26 offen offset:%d" % (vr(a, 2), SO, SO + 3, tt * 512), "out")
    else:
        g.e("v_add_u32 v8, 0x%x, v7" % (16 * 3584))
        GV, UV = CS + 8, CS + 12
        for nt in range(7):
            g.lg("ds_read_b128 %s, v%d offset:%d" % (vr(CS), T + 1, nt * 64), ("cs", nt))
            g.lg("ds_read_b128 %s, v%d offset:%d" % (vr(CS + 4), T + 1, (7 + nt) * 64), ("cs", nt))
            g.wait_lg(("cs", nt))
            for tt in range(2):
                m = SUM + tt * 4
                ag = 128 + (tt * NT + nt) * 4
                au = 128 + (tt * NT + 7 + nt) * 4
                for k in range(4):
                    g.e("v_accvgpr_read_b32 v%d, a%d" % (GV + k, ag + k))
                    g.e("v_accvgpr_read_b32 v%d, a%d" % (UV + k, au + k))
                for k in range(4):
                    g.e("v_fma_f32 v%d, -v%d, v%d, v%d" % (GV + k, m, CS + k, GV + k))
                    g.e("v_fma_f32 v%d, -v%d, v%d, v%d" % (UV + k, m, CS + 4 + k, UV + k))
                for k in range(4):
                    g.e("v_mul_f32 v%d, v%d, v%d" % (GV + k, GV + k, m + 1))
                    g.e("v_mul_f32 v%d, v%d, v%d" % (UV + k, UV + k, m + 1))
                E = CS + 16
                for k in range(4):
                    g.e("v_mul_f32 v%d, %s, v%d" % (E + k, f32hex(-LOG2E), GV + k))
                for k in range(4):
                    g.e("v_exp_f32 v%d, v%d" % (E + k, E + k))
                for k in range(4):
                    g.e("v_mul_f32 v%d, v%d, v%d" % (UV + k, UV + k, GV + k))
                for k in range(4):
                    g.e("v_add_f32 v%d, 1.0, v%d" % (E + k, E + k))
                for k in range(4):
                    g.e("v_rcp_f32 v%d, v%d" % (E + k, E + k))
                g.nop(1)
                for k in range(4):
                    g.e("v_mul_f32 v%d, v%d, v%d" % (UV + k, UV + k, E + k))
                O = CS + 20 + tt * 2
                g.e("v_cvt_pk_bf16_f32 v%d, v%d, v%d" % (O, UV, UV + 1))
                g.e("v_cvt_pk_bf16_f32 v%d, v%d, v%d" % (O + 1, UV + 2, UV + 3))
                g.vm("buffer_store_dwordx2 %s, v%d, s[%d:%d], 0 offen offset:%d" % (vr(O, 2), 7 + tt, SO, SO + 3, nt * 32), "out")
            if len(g.vmq) > 40:
                g.wait_all()
    g.end(name)
    return dict(name=name, grid=256, lds=lds, vgpr=nextv, agpr=128 if qkv else 128 + 112)


def attention(g, name):
    g.begin(name, 512)
    SQ, SO = 4, 8
    g.srd(SQ, P_WS, WS_QKV, 6 * MB)
    g.srd(SO, P_WS, WS_ATTN, 2 * MB)
    VB = 0
    OB = 12288
    lds = OB + 1024
    g.e("s_and_b32 s20, s2, 31")
    g.e("s_lshr_b32 s21, s2, 5")
    g.e("s_lshl_b32 s22, s21, 7")
    g.e("s_lshl_b32 s23, s3, 5")
    g.e("s_add_u32 s23, s22, s23")
    g.e("s_lshr_b32 s24, s23, 5")
    g.e("s_sub_i32 s24, 8, s24")
    g.e("s_max_i32 s24, s24, 0")
    g.e("v_and_b32 v3, 31, v1")
    g.e("v_lshrrev_b32 v4, 5, v1")
    g.e("s_lshl_b32 s25, s20, 16")
    g.e("v_add_u32 v5, s23, v3")
    g.e("v_lshlrev_b32 v5, 5, v5")
    g.e("v_lshl_add_u32 v5, v4, 4, v5")
    g.e("v_add_u32 v5, s25, v5")
    QF = 8
    KF = 12
    g.vm("buffer_load_dwordx4 %s, v5, s[%d:%d], 0 offen" % (vr(QF), SQ, SQ + 3), "q")
    g.e("v_add_u32 v6, 0x%x, v5" % (2 * MB - 8192))
    for t in range(9):
        if t == 4 or t == 8:
            g.e("v_add_u32 v6, 0x1000, v6")
        g.vm("buffer_load_dwordx4 %s, v6, s[%d:%d], 0 offen offset:%d" % (vr(KF + 4 * t), SQ, SQ + 3, (t % 4) * 1024), ("k", t))
    g.e("s_lshl_b32 s26, s22, 5")
    g.e("s_add_u32 s26, s26, s25")
    g.e("s_add_u32 s26, s26, 0x%x" % (4 * MB - 8192))
    g.e("s_mul_i32 s27, s3, 3072")
    g.e("s_add_u32 s26, s26, s27")
    g.e("v_lshlrev_b32 v7, 4, v1")
    g.e("v_add_u32 v7, s26, v7")
    for q in range(3):
        g.e("s_add_u32 m0, s27, 0x%x" % (VB + q * 1024))
        if q:
            g.e("v_add_u32 v7, 0x400, v7")
        else:
            g.e("s_nop 0")
        g.vm("buffer_load_dwordx4 v7, s[%d:%d], 0 offen lds" % (SQ, SQ + 3), "v")
    M0_ = 48
    M8_ = 64
    NM = 80
    S0 = 96
    PF = 128
    VF = 144
    OA = 160
    for k in range(4):
        g.e("v_mov_b32 v%d, 0x3f803f80" % (S0 + k))
    g.e("v_lshlrev_b32 v2, 4, v1")
    g.lg("ds_write_b128 v2, %s offset:%d" % (vr(S0), OB), "ones")
    g.e("v_lshlrev_b32 v2, 2, v4")
    g.e("v_sub_u32 v2, v3, v2")
    NEG = f32hex(-1e30)
    g.e("v_mov_b32 v%d, %s" % (S0 + 4, NEG))
    for r in range(16):
        jc = (r & 3) + 8 * (r >> 2)
        g.e("v_cmp_gt_i32 vcc, %d, v2" % jc)
        g.nop(2)
        g.e("v_cndmask_b32 v%d, v%d, 0, vcc" % (M0_ + r, S0 + 4))
        g.e("v_cndmask_b32 v%d, 0, v%d, vcc" % (M8_ + r, S0 + 4))
    g.e("v_bfe_u32 v2, v1, 2, 2")
    g.e("v_lshl_add_u32 v2, v4, 2, v2")
    g.e("v_lshlrev_b32 v2, 5, v2")
    g.e("v_and_b32 v5, 3, v1")
    g.e("v_lshl_add_u32 v2, v5, 3, v2")
    g.e("s_lshl_b32 s27, s3, 10")
    g.e("s_add_u32 s27, s27, 0x%x" % VB)
    g.e("v_add_u32 v2, s27, v2")
    g.e("v_lshlrev_b32 v5, 7, v4")
    g.e("v_sub_u32 v5, 0x%x, v5" % (OB + 128))
    g.e("v_bfe_u32 v6, v1, 4, 1")
    g.e("v_cmp_eq_u32 vcc, 1, v6")
    g.nop(2)
    g.e("v_cndmask_b32 v2, v2, v5, vcc")
    g.e("v_mov_b32 v5, 0x400")
    g.e("v_cndmask_b32 v5, v5, 0, vcc")
    g.e("v_mul_lo_u32 v6, v5, s24")
    g.e("v_add_u32 v2, v2, v6")
    VA, VI = 2, 5
    MX = 6
    g.e("v_mov_b32 v%d, %s" % (MX, NEG))
    g.wait_vm("q")
    def smfma(t, dst, c):
        g.e("v_mfma_f32_32x32x16_bf16 %s, %s, %s, %s" % (vr(dst, 16), vr(KF + 4 * t), vr(QF), c))
    for t in range(9):
        L = g.newlabel("p1")
        if t < 8:
            g.e("s_cmp_gt_u32 s24, %d" % t)
            g.e("s_cbranch_scc1 %s" % L)
        g.e("s_waitcnt vmcnt(%d)" % (3 + 8 - t))
        c = vr(M0_, 16) if t == 0 else (vr(M8_, 16) if t == 8 else "0")
        dst = S0 + 16 * (t & 1)
        smfma(t, dst, c)
        g.nop(18)
        for r in range(0, 16, 2):
            g.e("v_max3_f32 v%d, v%d, v%d, v%d" % (MX, MX, dst + r, dst + r + 1))
        g.label(L)
    g.vmq = [x for x in g.vmq if x == "v"]
    g.e("v_mov_b32 v%d, v%d" % (MX + 1, MX))
    g.nop(2)
    g.e("v_permlane32_swap_b32 v%d, v%d" % (MX, MX + 1))
    g.nop(1)
    g.e("v_max_f32 v%d, v%d, v%d" % (MX, MX, MX + 1))
    for r in range(16):
        g.e("v_sub_f32 v%d, 0, v%d" % (NM + r, MX))
    for r in range(16):
        g.e("v_sub_f32 v%d, v%d, v%d" % (M0_ + r, M0_ + r, MX))
        g.e("v_sub_f32 v%d, v%d, v%d" % (M8_ + r, M8_ + r, MX))
    for r in range(16):
        g.e("v_mov_b32 v%d, 0" % (OA + r))
    g.wait_vm("v")
    g.wait_lg("ones")
    g.e("s_barrier")
    for t in range(9):
        L = g.newlabel("p2")
        if t < 8:
            g.e("s_cmp_gt_u32 s24, %d" % t)
            g.e("s_cbranch_scc1 %s" % L)
        vf = VF + 8 * (t & 1)
        for k in range(4):
            g.lg("ds_read_b64_tr_b16 %s, v%d offset:%d" % (vr(vf + 2 * k, 2), VA, 256 * k), ("vf", t))
        g.e("v_add_u32 v%d, v%d, v%d" % (VA, VA, VI))
        c = vr(M0_, 16) if t == 0 else (vr(M8_, 16) if t == 8 else vr(NM, 16))
        dst = S0 + 16 * (t & 1)
        smfma(t, dst, c)
        g.nop(18)
        for r in range(16):
            g.e("v_exp_f32 v%d, v%d" % (dst + r, dst + r))
        pf = PF + 8 * (t & 1)
        g.nop(1)
        for r in range(8):
            g.e("v_cvt_pk_bf16_f32 v%d, v%d, v%d" % (pf + r, dst + 2 * r, dst + 2 * r + 1))
        g.wait_lg(("vf", t))
        g.nop(2)
        g.e("v_mfma_f32_32x32x16_bf16 %s, %s, %s, %s" % (vr(OA, 16), vr(vf), vr(pf), vr(OA, 16)))
        g.e("v_mfma_f32_32x32x16_bf16 %s, %s, %s, %s" % (vr(OA, 16), vr(vf + 4), vr(pf + 4), vr(OA, 16)))
        g.label(L)
    g.nop(20)
    g.e("v_rcp_f32 v%d, v%d" % (MX, OA + 8))
    g.nop(1)
    for r in range(8):
        g.e("v_mul_f32 v%d, v%d, v%d" % (OA + r, OA + r, MX))
    for r in range(4):
        g.e("v_cvt_pk_bf16_f32 v%d, v%d, v%d" % (PF + r, OA + 2 * r, OA + 2 * r + 1))
    g.e("v_add_u32 v7, s23, v3")
    g.e("v_lshlrev_b32 v7, 10, v7")
    g.e("v_lshl_add_u32 v7, v4, 3, v7")
    g.e("s_lshl_b32 s26, s20, 5")
    g.vm("buffer_store_dwordx2 %s, v7, s[%d:%d], s26 offen" % (vr(PF, 2), SO, SO + 3), "o")
    g.vm("buffer_store_dwordx2 %s, v7, s[%d:%d], s26 offen offset:16" % (vr(PF + 2, 2), SO, SO + 3), "o")
    g.end(name)
    return dict(name=name, grid=512, lds=lds, vgpr=176, agpr=0)


def main():
    g = G()
    ks = []
    ks.append(ln_gemm(g, "k1_qkv_kernel", "qkv"))
    ks.append(attention(g, "k2_attn_kernel"))
    ks.append(gemm_res(g, "k3_wo_kernel", P_WS, WS_ATTN, 1024, 512, P_WO, P_X, 0, P_WS, WS_H, 8))
    ks.append(ln_gemm(g, "k4_ffn_kernel", "ffn"))
    ks.append(gemm_res(g, "k5_w2_kernel", P_WS, WS_HMID, 3584, 1792, P_W2, P_WS, WS_H, P_OUT, 0, 8))
    out = []
    for k in ks:
        out.append("; @launch kernel=%s grid=(%d,1,1) block=(256,1,1) lds=%d" % (k["name"], k["grid"], k["lds"]))
    out.append('.amdgcn_target "amdgcn-amd-amdhsa--gfx950"')
    out.append(".text")
    out += g.lines
    out.append('.section .rodata,"a"')
    for k in ks:
        accoff = (k["vgpr"] + 3) // 4 * 4
        assert accoff <= 256
        tot = accoff + k["agpr"]
        assert tot <= 512
        out.append(".p2align 6")
        out.append(".amdhsa_kernel %s" % k["name"])
        out.append("  .amdhsa_next_free_vgpr %d" % tot)
        out.append("  .amdhsa_next_free_sgpr 102")
        out.append("  .amdhsa_accum_offset %d" % accoff)
        out.append("  .amdhsa_group_segment_fixed_size 0")
        out.append("  .amdhsa_kernarg_size 80")
        out.append("  .amdhsa_user_sgpr_count 2")
        out.append("  .amdhsa_user_sgpr_kernarg_segment_ptr 1")
        out.append("  .amdhsa_system_sgpr_workgroup_id_x 1")
        out.append(".end_amdhsa_kernel")
    dst = sys.argv[1] if len(sys.argv) > 1 else "sequential_preLN__sliding_block__glu_gated_swiglu__prompt.s"
    open(dst, "w").write("\n".join(out) + "\n")
    for k in ks:
        print(k)


if __name__ == "__main__":
    main()
```

```python
import sys

MB = 1 << 20
import os
CUT = int(os.environ.get('CUT', '-1'))
EXP = os.environ.get('EXP', '')
TS = int(os.environ.get('TS', '0'))
PRO_RES = int(os.environ.get('PRO_RES', '4'))
PRO_LN = int(os.environ.get('PRO_LN', '4'))
WS_QKV = 0
WS_ATTN = 6 * MB
WS_H = 8 * MB
WS_HMID = 10 * MB
WS_XF = 18 * MB
LOG2E = 1.4426950408889634
QSCALE = 0.25 * LOG2E

P_X, P_WQKV, P_WO, P_BX, P_W1, P_W3, P_W2, P_OUT, P_DBG, P_WS = [64 + 2 * i for i in range(10)]


def f32hex(x):
    import struct
    return "0x%08x" % struct.unpack("<I", struct.pack("<f", x))[0]


class G:
    def __init__(self):
        self.lines = []
        self.vmq = []
        self.lgq = []
        self.nlabel = 0

    def e(self, s):
        self.lines.append("    " + s)

    def label(self, s):
        self.lines.append(s + ":")

    def newlabel(self, p):
        self.nlabel += 1
        return "L_%s_%d" % (p, self.nlabel)

    def vm(self, s, tag):
        self.e(s)
        self.vmq.append(tag)
        assert len(self.vmq) <= 63, "too many outstanding vmem"

    def lg(self, s, tag):
        self.e(s)
        self.lgq.append(tag)
        assert len(self.lgq) <= 15, "too many outstanding lgkm"

    def _wait(self, q, tag):
        if tag not in q:
            return None, q
        idx = len(q) - 1 - q[::-1].index(tag)
        return len(q) - 1 - idx, q[idx + 1:]

    def wait_vm(self, tag):
        n, self.vmq = self._wait(self.vmq, tag)
        if n is not None:
            self.e("s_waitcnt vmcnt(%d)" % n)

    def wait_lg(self, tag):
        n, self.lgq = self._wait(self.lgq, tag)
        if n is not None:
            self.e("s_waitcnt lgkmcnt(%d)" % n)

    def wait_all(self):
        self.e("s_waitcnt vmcnt(0) lgkmcnt(0)")
        self.vmq = []
        self.lgq = []

    def ts(self, k):
        if not TS or k > 8:
            return
        self.e("s_memtime s[%d:%d]" % (84 + 2 * k, 85 + 2 * k))
        self.e("s_waitcnt lgkmcnt(0)")
        self.lgq = []

    def ts_dump(self, kidx):
        if not TS:
            return
        L = self.newlabel("ts")
        self.e("s_cmp_lg_u32 s3, 0")
        self.e("s_cbranch_scc1 %s" % L)
        self.e("s_memrealtime s[60:61]")
        self.e("s_waitcnt lgkmcnt(0)")
        self.srd(56, P_WS, 24 * MB + kidx * 65536, 65536)
        self.e("s_lshl_b32 s62, s2, 6")
        self.e("v_mov_b32 v0, 0")
        for k in range(9):
            self.e("v_mov_b32 v1, s%d" % (84 + 2 * k))
            self.e("buffer_store_dword v1, v0, s[56:59], s62 offen offset:%d" % (4 * k))
        self.e("v_mov_b32 v1, s60")
        self.e("buffer_store_dword v1, v0, s[56:59], s62 offen offset:36")
        self.label(L)

    def nop(self, n):
        while n > 0:
            k = min(n, 16)
            self.e("s_nop %d" % (k - 1))
            n -= k

    def begin(self, name, nwg):
        self.lines.append(".globl %s" % name)
        self.lines.append(".p2align 8")
        self.lines.append(".type %s,@function" % name)
        self.label(name)
        self.vmq = []
        self.lgq = []
        self.e("s_cmp_ge_u32 s2, %d" % nwg)
        self.e("s_cbranch_scc1 L_end_%s" % name)
        self.e("s_load_dwordx16 s[64:79], s[0:1], 0")
        self.e("s_load_dwordx4 s[80:83], s[0:1], 64")
        self.e("v_and_b32 v1, 63, v0")
        self.e("v_lshrrev_b32 v2, 6, v0")
        self.e("s_nop 0")
        self.e("v_readfirstlane_b32 s3, v2")
        self.e("s_waitcnt lgkmcnt(0)")
        self.ts(0)

    def end(self, name):
        self.label("L_end_%s" % name)
        self.e("s_endpgm")

    def srd(self, d, ptr, off, size):
        if off:
            self.e("s_add_u32 s%d, s%d, 0x%x" % (d, ptr, off))
            self.e("s_addc_u32 s%d, s%d, 0" % (d + 1, ptr + 1))
        else:
            self.e("s_mov_b32 s%d, s%d" % (d, ptr))
            self.e("s_mov_b32 s%d, s%d" % (d + 1, ptr + 1))
        self.e("s_mov_b32 s%d, 0x%x" % (d + 2, size))
        self.e("s_mov_b32 s%d, 0x00020000" % (d + 3))


def vr(b, n=4):
    return "v[%d:%d]" % (b, b + n - 1)


def ar(b, n=4):
    return "a[%d:%d]" % (b, b + n - 1)


def pipeline(g, items, D, stage_of, on_stage_start, issue_reads, do_mfma):
    n = len(items)
    pend = []
    npend = 0
    r = 0
    nin = 1
    for i in range(-D, n):
        j = i + D
        if j < n:
            if j == 0 or stage_of(items[j]) != stage_of(items[j - 1]):
                assert not pend
                pend = list(on_stage_start(stage_of(items[j])) or [])
                npend = len(pend)
                r = 0
                nin = sum(1 for it in items if stage_of(it) == stage_of(items[j]))
            issue_reads(j, items[j])
        if i >= 0:
            g.wait_lg(("it", i))
            do_mfma(i, items[i])
        if j < n:
            r += 1
            want = (r * npend + nin - 1) // nin
            while npend - len(pend) < want:
                pend.pop(0)()


def gemm_res(g, name, a_ptr, a_off, a_rowb, KD, w_ptr, res_ptr, res_off, out_ptr, out_off, nslots, out_fl):
    g.begin(name, 256)
    if CUT == 0:
        g.e("s_endpgm")
    nks = KD // 32
    nst = KD // 128
    ring = nslots < nst
    SA, SW, SR, SO = 4, 8, 12, 16
    RV = 2
    ostep = 512 if out_fl else 32
    g.srd(SA, a_ptr, a_off, 2048 * a_rowb)
    g.srd(SW, w_ptr, 0, KD * 1024)
    g.srd(SR, res_ptr, res_off, 2048 * 1024)
    g.srd(SO, out_ptr, out_off, 2048 * 1024)
    g.e("s_and_b32 s20, s2, 31")
    g.e("s_lshr_b32 s21, s2, 5")
    g.e("s_lshl_b32 s22, s20, 6")
    g.e("s_lshl_b32 s23, s3, 4")
    g.e("s_add_u32 s22, s22, s23")
    g.e("v_and_b32 v3, 15, v1")
    g.e("v_add_u32 v3, s22, v3")
    g.e("v_lshrrev_b32 v4, 4, v1")
    g.e("s_lshl_b32 s27, s20, 2")
    g.e("s_add_u32 s27, s27, s3")
    g.e("s_mul_i32 s28, s27, %d" % (16 * a_rowb))
    g.e("v_lshlrev_b32 v5, 4, v1")
    g.e("v_add_u32 v5, s28, v5")
    g.e("s_lshl_b32 s28, s27, 14")
    g.e("s_lshl_b32 s29, s21, 11")
    g.e("s_add_u32 s28, s28, s29")
    g.e("v_and_b32 v9, 15, v1")
    g.e("v_lshlrev_b32 v9, 4, v9")
    g.e("v_bfe_u32 v10, v1, 5, 1")
    g.e("v_lshl_add_u32 v9, v10, 8, v9")
    g.e("v_bfe_u32 v10, v1, 4, 1")
    g.e("v_lshl_add_u32 v9, v10, 3, v9")
    g.e("v_add_u32 v%d, s28, v9" % RV)
    g.e("s_lshl_b32 s23, s21, 7")
    if not out_fl:
        g.e("v_lshlrev_b32 v6, 10, v3")
        g.e("v_lshl_add_u32 v6, v4, 3, v6")
        g.e("v_add_u32 v6, s23, v6")
    else:
        g.e("v_mov_b32 v6, v%d" % RV)
    g.e("v_lshrrev_b32 v9, 3, v1")
    g.e("v_and_b32 v10, 7, v1")
    g.e("v_bfe_u32 v11, v1, 4, 1")
    g.e("v_lshlrev_b32 v11, 1, v11")
    g.e("v_xor_b32 v10, v10, v11")
    g.e("v_lshlrev_b32 v9, 10, v9")
    g.e("v_lshl_add_u32 v7, v10, 4, v9")
    g.e("v_xor_b32 v10, 4, v10")
    g.e("v_lshl_add_u32 v8, v10, 4, v9")
    g.e("s_lshl_b32 s24, s3, 15")
    g.e("s_add_u32 s24, s24, s23")
    g.e("s_lshl_b32 s25, s3, 12")
    g.e("v_bfe_u32 v9, v1, 2, 2")
    g.e("v_lshl_add_u32 v10, v4, 3, v9")
    g.e("v_lshlrev_b32 v10, 7, v10")
    g.e("v_bfe_u32 v11, v1, 1, 1")
    g.e("v_lshl_add_u32 v10, v11, 4, v10")
    g.e("v_and_b32 v11, 1, v1")
    g.e("v_lshl_add_u32 v10, v11, 3, v10")
    g.e("v_bfe_u32 v11, v1, 3, 1")
    g.e("v_bfe_u32 v12, v1, 4, 1")
    g.e("v_lshl_or_b32 v11, v12, 1, v11")
    g.e("v_lshlrev_b32 v11, 1, v11")
    TA = 12
    for nt in range(4):
        g.e("v_xor_b32 v20, %d, v11" % (2 * nt))
        g.e("v_lshl_add_u32 v%d, v20, 4, v10" % (TA + nt))
        g.e("v_add_u32 v%d, 0x10000, v%d" % (TA + 4 + nt, TA + nt))
    RES = 20
    ACC = 28
    WF = 44
    D = 6
    NR = D + 2

    def stage_loads(s):
        slot = s % nslots
        out = []
        for q in range(4):
            def f(q=q):
                g.e("s_add_u32 m0, s25, 0x%x" % (slot * 16384 + q * 1024))
                g.e("s_add_u32 s26, s24, 0x%x" % ((s * 128 + q * 8) * 1024))
                g.vm("buffer_load_dwordx4 v%d, s[%d:%d], s26 offen lds" % (7 + (q & 1), SW, SW + 3), ("st", s))
            out.append(f)
            def f2(k4=q):
                ks = s * 4 + k4
                g.e("s_mov_b32 s27, 0x%x" % (s * 4096))
                g.vm("buffer_load_dwordx4 %s, v5, s[%d:%d], s27 offen offset:%d" % (ar(ks * 4), SA, SA + 3, k4 * 1024), ("st", s))
            out.append(f2)
        return out

    def issue_stage(s):
        for f in stage_loads(s):
            f()

    P = min(PRO_RES, nslots - 2) if ring else PRO_RES
    npro = min(nst, P)
    issue_stage(0)
    for nt in range(4):
        g.vm("buffer_load_dwordx2 %s, v%d, s[%d:%d], 0 offen offset:%d" % (vr(RES + 2 * nt, 2), RV, SR, SR + 3, nt * 512), "res")
    for s in range(1, npro):
        issue_stage(s)
    if CUT == 1:
        g.e("s_waitcnt vmcnt(0)")
        g.e("s_endpgm")
    g.ts(1)
    tsst = (0, 1, 2, 3) if nst == 4 else (0, 1, 5, 9, 13)

    items = [(ks, nt) for ks in range(nks) for nt in range(4)]

    def on_stage_start(s):
        g.wait_vm(("st", s))
        g.e("s_barrier")
        if s in tsst:
            g.ts(2 + tsst.index(s))
        if s + P < nst:
            return stage_loads(s + P)

    def issue_reads(j, it):
        ks, nt = it
        s = ks // 4
        slot = s % nslots
        off = slot * 16384 + (ks % 4) * 32 * 128
        a = TA + nt
        if off >= 65536:
            off -= 65536
            a += 4
        w = WF + (j % NR) * 4
        g.lg("ds_read_b64_tr_b16 %s, v%d offset:%d" % (vr(w, 2), a, off), ("it", j))
        g.lg("ds_read_b64_tr_b16 %s, v%d offset:%d" % (vr(w + 2, 2), a, off + 512), ("it", j))

    def do_mfma(i, it):
        ks, nt = it
        w = WF + (i % NR) * 4
        acc = vr(ACC + nt * 4)
        g.e("v_mfma_f32_16x16x32_bf16 %s, %s, %s, %s" % (acc, vr(w), ar(ks * 4), "0" if ks == 0 else acc))

    pipeline(g, items, D, lambda it: it[0] // 4, on_stage_start, issue_reads, do_mfma)
    g.ts(7)
    g.wait_vm("res")
    g.nop(16)
    T = WF
    for nt in range(4):
        a = ACC + nt * 4
        r = RES + 2 * nt
        g.e("v_lshlrev_b32 v%d, 16, v%d" % (T, r))
        g.e("v_and_b32 v%d, 0xffff0000, v%d" % (T + 1, r))
        g.e("v_lshlrev_b32 v%d, 16, v%d" % (T + 2, r + 1))
        g.e("v_and_b32 v%d, 0xffff0000, v%d" % (T + 3, r + 1))
        for k in range(4):
            g.e("v_add_f32 v%d, v%d, v%d" % (a + k, a + k, T + k))
        g.e("v_cvt_pk_bf16_f32 v%d, v%d, v%d" % (a, a, a + 1))
        g.e("v_cvt_pk_bf16_f32 v%d, v%d, v%d" % (a + 1, a + 2, a + 3))
        g.vm("buffer_store_dwordx2 %s, v6, s[%d:%d], 0 offen offset:%d" % (vr(a, 2), SO, SO + 3, nt * ostep), "out")
    g.ts(8)
    g.ts_dump(2 if nst == 4 else 4)
    g.end(name)
    nv = WF + NR * 4
    return dict(name=name, grid=256, lds=nslots * 16384 if ring else nst * 16384, vgpr=nv, agpr=nks * 4)


def ln_gemm(g, name, mode):
    qkv = mode == "qkv"
    g.begin(name, 256)
    NT = 6 if qkv else 14
    nks = 16
    nst = 8
    nslots = 5
    SLOTB = 28672
    CSB = 5 * SLOTB
    lds = CSB + 1024
    SA, SW, SO, SX = 4, 8, 12, 16
    if qkv:
        g.srd(SA, P_X, 0, 2048 * 1024)
        g.srd(SW, P_WQKV, 0, 512 * 3072)
        g.srd(SO, P_WS, WS_QKV, 6 * MB)
        g.srd(SX, P_WS, WS_XF, 2 * MB)
    else:
        g.srd(SA, P_WS, WS_H, 2048 * 1024)
        g.e("s_cmp_lt_u32 s3, 2")
        g.e("s_cselect_b32 s%d, s%d, s%d" % (SW, P_W1, P_W3))
        g.e("s_cselect_b32 s%d, s%d, s%d" % (SW + 1, P_W1 + 1, P_W3 + 1))
        g.e("s_mov_b32 s%d, 0x%x" % (SW + 2, 512 * 3584))
        g.e("s_mov_b32 s%d, 0x00020000" % (SW + 3))
        g.srd(SO, P_WS, WS_HMID, 2048 * 3584)
    g.e("s_lshr_b32 s22, s2, 3")
    if qkv:
        g.e("s_and_b32 s20, s2, 3")
        g.e("s_lshl_b32 s20, s20, 2")
        g.e("s_and_b32 s23, s22, 3")
        g.e("s_add_u32 s20, s20, s23")
        g.e("s_bfe_u32 s21, s2, 0x10002")
        g.e("s_lshl_b32 s21, s21, 3")
        g.e("s_lshr_b32 s23, s22, 2")
        g.e("s_add_u32 s21, s21, s23")
    else:
        g.e("s_and_b32 s20, s2, 1")
        g.e("s_lshl_b32 s20, s20, 3")
        g.e("s_and_b32 s23, s22, 7")
        g.e("s_add_u32 s20, s20, s23")
        g.e("s_bfe_u32 s21, s2, 0x20001")
        g.e("s_lshl_b32 s21, s21, 2")
        g.e("s_lshr_b32 s23, s22, 3")
        g.e("s_add_u32 s21, s21, s23")
    g.e("s_lshl_b32 s22, s20, 7")
    g.e("s_lshl_b32 s23, s3, 5")
    g.e("s_add_u32 s22, s22, s23")
    g.e("v_and_b32 v3, 15, v1")
    g.e("v_lshrrev_b32 v4, 4, v1")
    g.e("v_bfe_u32 v9, v1, 2, 2")
    if qkv:
        g.e("v_lshrrev_b32 v10, 3, v1")
        g.e("v_and_b32 v11, 7, v1")
        g.e("v_xor_b32 v11, v11, v10")
        g.e("v_lshlrev_b32 v10, 10, v10")
        g.e("v_lshl_add_u32 v5, v11, 4, v10")
        g.e("s_lshl_b32 s30, s22, 10")
        g.e("s_lshl_b32 s31, s3, 12")
        g.e("s_mul_i32 s24, s3, 192")
        g.e("v_add_u32 v10, s24, v1")
        DV = 16
        for q in range(3):
            g.e("v_add_u32 v11, %d, v10" % (q * 64))
            g.e("v_mul_u32_u24 v12, 5462, v11")
            g.e("v_lshrrev_b32 v12, 16, v12")
            g.e("v_mul_u32_u24 v13, 12, v12")
            g.e("v_sub_u32 v13, v11, v13")
            g.e("v_and_b32 v14, 2, v12")
            g.e("v_xor_b32 v13, v13, v14")
            g.e("v_mul_u32_u24 v14, 3072, v12")
            g.e("v_lshl_add_u32 v%d, v13, 4, v14" % (DV + q))
        g.e("s_mul_i32 s24, s21, 192")
        g.e("s_mul_i32 s25, s3, 3072")
        g.e("v_add_u32 v10, s22, v3")
        g.e("v_lshlrev_b32 v7, 5, v10")
        g.e("v_lshl_add_u32 v7, v4, 3, v7")
        g.e("s_lshl_b32 s26, s22, 10")
        g.e("s_lshl_b32 s27, s21, 10")
        g.e("s_add_u32 s26, s26, s27")
        g.e("v_lshlrev_b32 v8, 4, v1")
        g.e("v_add_u32 v8, s26, v8")
        g.e("v_and_b32 v10, 7, v1")
        g.e("v_xor_b32 v10, v10, v4")
        g.e("v_lshlrev_b32 v11, 7, v3")
        g.e("v_lshl_add_u32 v11, v10, 4, v11")
        g.e("v_add_u32 v19, s31, v11")
        g.e("v_xor_b32 v20, 64, v19")
        XA = 19
        for b in range(1, 3):
            g.e("v_add_u32 v%d, 0x%x, v19" % (XA + 2 * b, b * 2 * SLOTB))
            g.e("v_add_u32 v%d, 0x%x, v20" % (XA + 2 * b + 1, b * 2 * SLOTB))
        g.e("v_lshl_add_u32 v10, v4, 3, v9")
        g.e("v_mul_u32_u24 v10, 192, v10")
        g.e("v_bfe_u32 v11, v1, 1, 1")
        g.e("v_lshl_add_u32 v10, v11, 4, v10")
        g.e("v_and_b32 v11, 1, v1")
        g.e("v_lshl_add_u32 v10, v11, 3, v10")
        g.e("v_add_u32 v10, 0x4000, v10")
        g.e("v_bfe_u32 v11, v1, 3, 1")
        g.e("v_lshlrev_b32 v11, 5, v11")
        TA = 25
        g.e("v_add_u32 v25, v10, v11")
        g.e("v_sub_u32 v26, v10, v11")
        for b in range(1, 3):
            g.e("v_add_u32 v%d, 0x%x, v25" % (TA + 2 * b, b * 2 * SLOTB))
            g.e("v_add_u32 v%d, 0x%x, v26" % (TA + 2 * b + 1, b * 2 * SLOTB))
        nextv = 31
    else:
        g.e("s_lshl_b32 s26, s22, 10")
        g.e("v_lshlrev_b32 v5, 4, v1")
        g.e("v_add_u32 v5, s26, v5")
        g.e("v_add_u32 v6, 0x4000, v5")
        g.e("s_lshr_b32 s26, s22, 4")
        g.e("s_mul_i32 s26, s26, 57344")
        g.e("s_mul_i32 s27, s21, 3584")
        g.e("s_add_u32 s26, s26, s27")
        g.e("v_lshlrev_b32 v7, 4, v3")
        g.e("v_bfe_u32 v10, v1, 5, 1")
        g.e("v_lshl_add_u32 v7, v10, 8, v7")
        g.e("v_bfe_u32 v10, v1, 4, 1")
        g.e("v_lshl_add_u32 v7, v10, 3, v7")
        g.e("v_add_u32 v7, s26, v7")
        g.e("s_mul_i32 s23, s21, 224")
        g.e("s_and_b32 s24, s3, 1")
        g.e("s_mul_i32 s24, s24, 448")
        g.e("v_add_u32 v10, s24, v1")
        DV = 16
        for q in range(7):
            g.e("v_add_u32 v11, %d, v10" % (q * 64))
            g.e("v_mul_u32_u24 v12, 4682, v11")
            g.e("v_lshrrev_b32 v12, 16, v12")
            g.e("v_mul_u32_u24 v13, 14, v12")
            g.e("v_sub_u32 v13, v11, v13")
            g.e("v_and_b32 v14, 0x33, v12")
            g.e("v_bfe_u32 v15, v12, 2, 1")
            g.e("v_lshl_or_b32 v14, v15, 3, v14")
            g.e("v_bfe_u32 v15, v12, 3, 1")
            g.e("v_lshl_or_b32 v14, v15, 2, v14")
            g.e("v_mul_u32_u24 v14, 3584, v14")
            g.e("v_lshl_add_u32 v%d, v13, 4, v14" % (DV + q))
        g.e("s_mov_b32 s24, s23")
        g.e("s_mul_i32 s25, s3, 7168")
        g.e("v_bfe_u32 v10, v1, 5, 1")
        g.e("v_lshl_add_u32 v10, v10, 4, v9")
        g.e("v_bfe_u32 v11, v1, 4, 1")
        g.e("v_lshl_add_u32 v10, v11, 2, v10")
        g.e("v_mul_u32_u24 v10, 224, v10")
        g.e("v_and_b32 v11, 3, v1")
        g.e("v_lshl_add_u32 v23, v11, 3, v10")
        for sl in range(1, 5):
            g.e("v_add_u32 v%d, 0x%x, v23" % (23 + sl, sl * SLOTB))
        nextv = 28
    nextv = (nextv + 3) // 4 * 4
    ONES = nextv
    for k in range(4):
        g.e("v_mov_b32 v%d, 0x3f803f80" % (ONES + k))
    SUM = ONES + 4
    GRAM = SUM + 8
    CSA = GRAM + 8
    WF = CSA + 16
    D = 5 if qkv else 6
    NR = 8
    nextv = WF + NR * 4
    AX = 0
    if qkv:
        ACCV = nextv
        nextv += 48
        XF = nextv
        nextv += 16
        XS = nextv
        nextv += 8
        acc = lambda tt, ct: vr(ACCV + (tt * NT + ct) * 4)
        xfr = lambda ks, tt: vr(XF + ((ks & 1) * 2 + tt) * 4)
    else:
        acc = lambda tt, ct: ar(128 + (tt * NT + ct) * 4)
        xfr = lambda ks, tt: ar(AX + (tt * 16 + ks) * 4)

    def stage_loads(s):
        wl, al = [], []
        slot = s % nslots
        if qkv:
            for q in range(3):
                def f(q=q):
                    g.e("s_add_u32 m0, s25, 0x%x" % (slot * SLOTB + 16384 + q * 1024))
                    g.e("s_add_u32 s26, s24, 0x%x" % (s * 64 * 3072))
                    g.vm("buffer_load_dwordx4 v%d, s[%d:%d], s26 offen lds" % (DV + q, SW, SW + 3), ("st", s))
                wl.append(f)
            for q in range(4):
                def f(q=q):
                    g.e("s_add_u32 m0, s31, 0x%x" % (slot * SLOTB + q * 1024))
                    g.e("s_add_u32 s26, s30, 0x%x" % (q * 8192 + s * 128))
                    g.vm("buffer_load_dwordx4 v5, s[%d:%d], s26 offen lds" % (SA, SA + 3), ("st", s))
                al.append(f)
        else:
            for q in range(7):
                def f(q=q):
                    g.e("s_add_u32 m0, s25, 0x%x" % (slot * SLOTB + q * 1024))
                    g.e("s_add_u32 s26, s24, 0x%x" % (s * 64 * 3584))
                    g.vm("buffer_load_dwordx4 v%d, s[%d:%d], s26 offen lds" % (DV + q, SW, SW + 3), ("st", s))
                wl.append(f)
            for k2 in range(2):
                for tt in range(2):
                    def f(k2=k2, tt=tt):
                        ks = s * 2 + k2
                        g.e("s_mov_b32 s27, 0x%x" % (s * 2048))
                        g.vm("buffer_load_dwordx4 %s, v%d, s[%d:%d], s27 offen offset:%d" % (
                            ar(AX + (tt * 16 + ks) * 4), 5 + tt, SA, SA + 3, k2 * 1024), ("st", s))
                    al.append(f)
        out = []
        while wl or al:
            if wl:
                out.append(wl.pop(0))
            if al and (len(al) >= len(wl) or not wl or len(out) % 2 == 0):
                out.append(al.pop(0))
        return out

    def issue_stage(s):
        for f in stage_loads(s):
            f()

    P = min(PRO_LN, nslots - 2)
    for s in range(P):
        issue_stage(s)
    if 'L' in EXP:
        g.e("s_waitcnt vmcnt(0)")
        g.e("s_endpgm")
    g.ts(1)

    items = [(ks, ct) for ks in range(nks) for ct in range(NT)]

    def on_stage_start(s):
        g.wait_vm(("st", s))
        g.e("s_barrier")
        if s in (0, 1, 3, 5, 7):
            g.ts(2 + (0, 1, 3, 5, 7).index(s))
        if s + P < nst:
            return stage_loads(s + P)

    def issue_reads(j, it):
        ks, ct = it
        w = WF + (j % NR) * 4
        s = ks // 2
        slot = s % nslots
        if qkv:
            b, so = slot >> 1, (slot & 1) * SLOTB
            if ct == 0:
                for tt in range(2):
                    g.lg("ds_read_b128 %s, v%d offset:%d" % (xfr(ks, tt), XA + 2 * b + (ks & 1), so + tt * 2048), ("it", j))
            a = TA + 2 * b + (ct & 1)
            off = so + (ks % 2) * 32 * 192 + ct * 32
            off2 = off + 4 * 192
        else:
            a = 23 + slot
            mat, nt = ct // 7, ct % 7
            off = mat * 14336 + (ks % 2) * 32 * 224 + nt * 32
            off2 = off + 8 * 224
        if 'R' in EXP:
            return
        g.lg("ds_read_b64_tr_b16 %s, v%d offset:%d" % (vr(w, 2), a, off), ("it", j))
        g.lg("ds_read_b64_tr_b16 %s, v%d offset:%d" % (vr(w + 2, 2), a, off2), ("it", j))

    def do_mfma(i, it):
        ks, ct = it
        w = WF + (i % NR) * 4
        if 'M' in EXP:
            return
        for tt in range(2):
            x = xfr(ks, tt)
            a = acc(tt, ct)
            g.e("v_mfma_f32_16x16x32_bf16 %s, %s, %s, %s" % (a, vr(w), x, "0" if ks == 0 else a))
        if 'C' in EXP:
            return
        L = g.newlabel("cs")
        g.e("s_cmp_lg_u32 s3, %d" % (ct & 3))
        g.e("s_cbranch_scc1 %s" % L)
        c = vr(CSA + (ct >> 2) * 4)
        g.e("v_mfma_f32_16x16x32_bf16 %s, %s, %s, %s" % (c, vr(w), vr(ONES), "0" if ks == 0 else c))
        g.label(L)
        if ct < 2:
            tt = ct
            x = xfr(ks, tt)
            s_ = vr(SUM + tt * 4)
            q_ = vr(GRAM + tt * 4)
            g.e("v_mfma_f32_16x16x32_bf16 %s, %s, %s, %s" % (s_, vr(ONES), x, "0" if ks == 0 else s_))
            g.e("v_mfma_f32_16x16x32_bf16 %s, %s, %s, %s" % (q_, x, x, "0" if ks == 0 else q_))
        if qkv and ct == 2:
            L = g.newlabel("xs")
            g.e("s_cmp_lg_u32 s21, %d" % ks)
            g.e("s_cbranch_scc1 %s" % L)
            for k in range(8):
                g.e("v_mov_b32 v%d, v%d" % (XS + k, XF + (ks & 1) * 8 + k))
            g.label(L)

    pipeline(g, items, D, lambda it: it[0] // 2, on_stage_start, issue_reads, do_mfma)
    if qkv:
        g.vm("buffer_store_dwordx4 %s, v8, s[%d:%d], 0 offen" % (vr(XS), SX, SX + 3), "out")
        g.e("v_add_u32 v8, 0x4000, v8")
        g.vm("buffer_store_dwordx4 %s, v8, s[%d:%d], 0 offen" % (vr(XS + 4), SX, SX + 3), "out")
    g.nop(16)
    g.ts(7)
    T = WF
    g.e("s_lshl_b32 s27, s3, 6")
    g.e("v_lshlrev_b32 v%d, 4, v4" % T)
    g.e("v_add_u32 v%d, 0x%x, v%d" % (T + 1, CSB, T))
    g.e("v_add_u32 v%d, s27, v%d" % (T, T + 1))
    g.e("s_mov_b32 s28, 0x00010001")
    g.e("s_mov_b32 s29, 0x00010001")
    g.e("s_mov_b64 exec, s[28:29]")
    for i in range((NT + 3) // 4):
        g.lg("ds_write_b128 v%d, %s offset:%d" % (T, vr(CSA + i * 4), i * 256), "csw")
    g.e("s_mov_b64 exec, -1")
    for r in range(4):
        m = 0
        for gg in range(4):
            m |= 1 << (20 * gg + r)
        g.e("s_mov_b32 s%d, 0x%x" % (30 + 2 * r, m & 0xffffffff))
        g.e("s_mov_b32 s%d, 0x%x" % (31 + 2 * r, m >> 32))
    MEAN = SUM
    for tt in range(2):
        d = T + 2
        g.e("v_mov_b32 v%d, 0" % d)
        for r in range(4):
            g.e("v_cndmask_b32_e64 v%d, v%d, v%d, s[%d:%d]" % (d, d, GRAM + tt * 4 + r, 30 + 2 * r, 31 + 2 * r))
        g.e("v_mov_b32 v%d, v%d" % (d + 1, d))
        g.nop(2)
        g.e("v_permlane16_swap_b32 v%d, v%d" % (d, d + 1))
        g.nop(1)
        g.e("v_add_f32 v%d, v%d, v%d" % (d, d, d + 1))
        g.e("v_mov_b32 v%d, v%d" % (d + 1, d))
        g.nop(2)
        g.e("v_permlane32_swap_b32 v%d, v%d" % (d, d + 1))
        g.nop(1)
        g.e("v_add_f32 v%d, v%d, v%d" % (d, d, d + 1))
        m = SUM + tt * 4
        g.e("v_mul_f32 v%d, %s, v%d" % (m, f32hex(1.0 / 512), m))
        g.e("v_mul_f32 v%d, %s, v%d" % (d, f32hex(1.0 / 512), d))
        g.e("v_fma_f32 v%d, -v%d, v%d, v%d" % (d, m, m, d))
        g.e("v_max_f32 v%d, 0, v%d" % (d, d))
        g.e("v_add_f32 v%d, %s, v%d" % (d, f32hex(1e-5), d))
        g.e("v_rsq_f32 v%d, v%d" % (m + 1, d))
        g.nop(1)
    g.wait_lg("csw")
    g.e("s_barrier")
    CS = T + 4
    if qkv:
        for ct in range(NT):
            g.lg("ds_read_b128 %s, v%d offset:%d" % (vr(CS + (ct & 1) * 4), T + 1, ct * 64), ("cs", ct))
            g.wait_lg(("cs", ct))
            g.e("s_mul_i32 s26, s21, 6")
            g.e("s_add_u32 s26, s26, %d" % ct)
            g.e("s_cmp_lt_u32 s26, 32")
            g.e("s_cselect_b32 s27, %s, 1.0" % f32hex(QSCALE))
            g.e("s_lshl_b32 s26, s26, 16")
            for tt in range(2):
                a = ACCV + (tt * NT + ct) * 4
                m = SUM + tt * 4
                rs = m + 2
                g.e("v_mul_f32 v%d, s27, v%d" % (rs, m + 1))
                for k in range(4):
                    g.e("v_fma_f32 v%d, -v%d, v%d, v%d" % (a + k, m, CS + (ct & 1) * 4 + k, a + k))
                for k in range(4):
                    g.e("v_mul_f32 v%d, v%d, v%d" % (a + k, a + k, rs))
                g.e("v_cvt_pk_bf16_f32 v%d, v%d, v%d" % (a, a, a + 1))
                g.e("v_cvt_pk_bf16_f32 v%d, v%d, v%d" % (a + 1, a + 2, a + 3))
                g.vm("buffer_store_dwordx2 %s, v7, s[%d:%d], s26 offen offset:%d" % (vr(a, 2), SO, SO + 3, tt * 512), "out")
    else:
        g.e("v_add_u32 v8, 0x%x, v7" % 57344)
        GV, UV = CS + 8, CS + 12
        for nt in range(7):
            g.lg("ds_read_b128 %s, v%d offset:%d" % (vr(CS), T + 1, nt * 64), ("cs", nt))
            g.lg("ds_read_b128 %s, v%d offset:%d" % (vr(CS + 4), T + 1, (7 + nt) * 64), ("cs", nt))
            g.wait_lg(("cs", nt))
            for tt in range(2):
                m = SUM + tt * 4
                ag = 128 + (tt * NT + nt) * 4
                au = 128 + (tt * NT + 7 + nt) * 4
                for k in range(4):
                    g.e("v_accvgpr_read_b32 v%d, a%d" % (GV + k, ag + k))
                    g.e("v_accvgpr_read_b32 v%d, a%d" % (UV + k, au + k))
                for k in range(4):
                    g.e("v_fma_f32 v%d, -v%d, v%d, v%d" % (GV + k, m, CS + k, GV + k))
                    g.e("v_fma_f32 v%d, -v%d, v%d, v%d" % (UV + k, m, CS + 4 + k, UV + k))
                for k in range(4):
                    g.e("v_mul_f32 v%d, v%d, v%d" % (GV + k, GV + k, m + 1))
                    g.e("v_mul_f32 v%d, v%d, v%d" % (UV + k, UV + k, m + 1))
                E = CS + 16
                for k in range(4):
                    g.e("v_mul_f32 v%d, %s, v%d" % (E + k, f32hex(-LOG2E), GV + k))
                for k in range(4):
                    g.e("v_exp_f32 v%d, v%d" % (E + k, E + k))
                for k in range(4):
                    g.e("v_mul_f32 v%d, v%d, v%d" % (UV + k, UV + k, GV + k))
                for k in range(4):
                    g.e("v_add_f32 v%d, 1.0, v%d" % (E + k, E + k))
                for k in range(4):
                    g.e("v_rcp_f32 v%d, v%d" % (E + k, E + k))
                g.nop(1)
                for k in range(4):
                    g.e("v_mul_f32 v%d, v%d, v%d" % (UV + k, UV + k, E + k))
                O = CS + 20 + tt * 2
                g.e("v_cvt_pk_bf16_f32 v%d, v%d, v%d" % (O, UV, UV + 1))
                g.e("v_cvt_pk_bf16_f32 v%d, v%d, v%d" % (O + 1, UV + 2, UV + 3))
                g.vm("buffer_store_dwordx2 %s, v%d, s[%d:%d], 0 offen offset:%d" % (vr(O, 2), 7 + tt, SO, SO + 3, nt * 512), "out")
            if len(g.vmq) > 40:
                g.wait_all()
    g.ts(8)
    g.ts_dump(0 if qkv else 3)
    g.end(name)
    return dict(name=name, grid=256, lds=lds, vgpr=nextv, agpr=0 if qkv else 128 + 112)


def attention(g, name):
    g.begin(name, 512)
    SQ, SO = 4, 8
    g.srd(SQ, P_WS, WS_QKV, 6 * MB)
    g.srd(SO, P_WS, WS_ATTN, 2 * MB)
    VB = 0
    OB = 12288
    lds = OB + 1024
    g.e("s_and_b32 s20, s2, 31")
    g.e("s_lshr_b32 s21, s2, 5")
    g.e("s_lshl_b32 s22, s21, 7")
    g.e("s_lshl_b32 s23, s3, 5")
    g.e("s_add_u32 s23, s22, s23")
    g.e("s_lshr_b32 s24, s23, 5")
    g.e("s_sub_i32 s24, 8, s24")
    g.e("s_max_i32 s24, s24, 0")
    g.e("v_and_b32 v3, 31, v1")
    g.e("v_lshrrev_b32 v4, 5, v1")
    g.e("s_lshl_b32 s25, s20, 16")
    g.e("v_add_u32 v5, s23, v3")
    g.e("v_lshlrev_b32 v5, 5, v5")
    g.e("v_lshl_add_u32 v5, v4, 4, v5")
    g.e("v_add_u32 v5, s25, v5")
    QF = 8
    KF = 12
    g.vm("buffer_load_dwordx4 %s, v5, s[%d:%d], 0 offen" % (vr(QF), SQ, SQ + 3), "q")
    g.e("v_add_u32 v6, 0x%x, v5" % (2 * MB - 8192))
    for t in range(9):
        if t == 4 or t == 8:
            g.e("v_add_u32 v6, 0x1000, v6")
        g.vm("buffer_load_dwordx4 %s, v6, s[%d:%d], 0 offen offset:%d" % (vr(KF + 4 * t), SQ, SQ + 3, (t % 4) * 1024), ("k", t))
    g.e("s_lshl_b32 s26, s22, 5")
    g.e("s_add_u32 s26, s26, s25")
    g.e("s_add_u32 s26, s26, 0x%x" % (4 * MB - 8192))
    g.e("s_mul_i32 s27, s3, 3072")
    g.e("s_add_u32 s26, s26, s27")
    g.e("v_lshlrev_b32 v7, 4, v1")
    g.e("v_add_u32 v7, s26, v7")
    for q in range(3):
        g.e("s_add_u32 m0, s27, 0x%x" % (VB + q * 1024))
        if q:
            g.e("v_add_u32 v7, 0x400, v7")
        else:
            g.e("s_nop 0")
        g.vm("buffer_load_dwordx4 v7, s[%d:%d], 0 offen lds" % (SQ, SQ + 3), "v")
    M0_ = 48
    M8_ = 64
    NM = 80
    S0 = 96
    PF = 128
    VF = 144
    OA = 160
    for k in range(4):
        g.e("v_mov_b32 v%d, 0x3f803f80" % (S0 + k))
    g.e("v_lshlrev_b32 v2, 4, v1")
    g.lg("ds_write_b128 v2, %s offset:%d" % (vr(S0), OB), "ones")
    g.e("v_lshlrev_b32 v2, 2, v4")
    g.e("v_sub_u32 v2, v3, v2")
    NEG = f32hex(-1e30)
    g.e("v_mov_b32 v%d, %s" % (S0 + 4, NEG))
    for r in range(16):
        jc = (r & 3) + 8 * (r >> 2)
        g.e("v_cmp_gt_i32 vcc, %d, v2" % jc)
        g.nop(2)
        g.e("v_cndmask_b32 v%d, v%d, 0, vcc" % (M0_ + r, S0 + 4))
        g.e("v_cndmask_b32 v%d, 0, v%d, vcc" % (M8_ + r, S0 + 4))
    g.e("v_bfe_u32 v2, v1, 2, 2")
    g.e("v_lshl_add_u32 v2, v4, 2, v2")
    g.e("v_lshlrev_b32 v2, 5, v2")
    g.e("v_and_b32 v5, 3, v1")
    g.e("v_lshl_add_u32 v2, v5, 3, v2")
    g.e("s_lshl_b32 s27, s3, 10")
    g.e("s_add_u32 s27, s27, 0x%x" % VB)
    g.e("v_add_u32 v2, s27, v2")
    g.e("v_lshlrev_b32 v5, 7, v4")
    g.e("v_sub_u32 v5, 0x%x, v5" % (OB + 128))
    g.e("v_bfe_u32 v6, v1, 4, 1")
    g.e("v_cmp_eq_u32 vcc, 1, v6")
    g.nop(2)
    g.e("v_cndmask_b32 v2, v2, v5, vcc")
    g.e("v_mov_b32 v5, 0x400")
    g.e("v_cndmask_b32 v5, v5, 0, vcc")
    g.e("v_mul_lo_u32 v6, v5, s24")
    g.e("v_add_u32 v2, v2, v6")
    VA, VI = 2, 5
    MX = 6
    g.e("v_mov_b32 v%d, %s" % (MX, NEG))
    g.wait_vm("q")
    def smfma(t, dst, c):
        g.e("v_mfma_f32_32x32x16_bf16 %s, %s, %s, %s" % (vr(dst, 16), vr(KF + 4 * t), vr(QF), c))
    for t in range(9):
        L = g.newlabel("p1")
        if t < 8:
            g.e("s_cmp_gt_u32 s24, %d" % t)
            g.e("s_cbranch_scc1 %s" % L)
        g.e("s_waitcnt vmcnt(%d)" % (3 + 8 - t))
        c = vr(M0_, 16) if t == 0 else (vr(M8_, 16) if t == 8 else "0")
        dst = S0 + 16 * (t & 1)
        smfma(t, dst, c)
        g.nop(18)
        for r in range(0, 16, 2):
            g.e("v_max3_f32 v%d, v%d, v%d, v%d" % (MX, MX, dst + r, dst + r + 1))
        g.label(L)
    g.vmq = [x for x in g.vmq if x == "v"]
    g.e("v_mov_b32 v%d, v%d" % (MX + 1, MX))
    g.nop(2)
    g.e("v_permlane32_swap_b32 v%d, v%d" % (MX, MX + 1))
    g.nop(1)
    g.e("v_max_f32 v%d, v%d, v%d" % (MX, MX, MX + 1))
    for r in range(16):
        g.e("v_sub_f32 v%d, 0, v%d" % (NM + r, MX))
    for r in range(16):
        g.e("v_sub_f32 v%d, v%d, v%d" % (M0_ + r, M0_ + r, MX))
        g.e("v_sub_f32 v%d, v%d, v%d" % (M8_ + r, M8_ + r, MX))
    for r in range(16):
        g.e("v_mov_b32 v%d, 0" % (OA + r))
    g.wait_vm("v")
    g.wait_lg("ones")
    g.e("s_barrier")
    for t in range(9):
        L = g.newlabel("p2")
        if t < 8:
            g.e("s_cmp_gt_u32 s24, %d" % t)
            g.e("s_cbranch_scc1 %s" % L)
        vf = VF + 8 * (t & 1)
        for k in range(4):
            g.lg("ds_read_b64_tr_b16 %s, v%d offset:%d" % (vr(vf + 2 * k, 2), VA, 256 * k), ("vf", t))
        g.e("v_add_u32 v%d, v%d, v%d" % (VA, VA, VI))
        c = vr(M0_, 16) if t == 0 else (vr(M8_, 16) if t == 8 else vr(NM, 16))
        dst = S0 + 16 * (t & 1)
        smfma(t, dst, c)
        g.nop(18)
        for r in range(16):
            g.e("v_exp_f32 v%d, v%d" % (dst + r, dst + r))
        pf = PF + 8 * (t & 1)
        g.nop(1)
        for r in range(8):
            g.e("v_cvt_pk_bf16_f32 v%d, v%d, v%d" % (pf + r, dst + 2 * r, dst + 2 * r + 1))
        g.wait_lg(("vf", t))
        g.nop(2)
        g.e("v_mfma_f32_32x32x16_bf16 %s, %s, %s, %s" % (vr(OA, 16), vr(vf), vr(pf), vr(OA, 16)))
        g.e("v_mfma_f32_32x32x16_bf16 %s, %s, %s, %s" % (vr(OA, 16), vr(vf + 4), vr(pf + 4), vr(OA, 16)))
        g.label(L)
    g.nop(20)
    g.e("v_rcp_f32 v%d, v%d" % (MX, OA + 8))
    g.nop(1)
    for r in range(8):
        g.e("v_mul_f32 v%d, v%d, v%d" % (OA + r, OA + r, MX))
    for r in range(4):
        g.e("v_cvt_pk_bf16_f32 v%d, v%d, v%d" % (PF + r, OA + 2 * r, OA + 2 * r + 1))
    g.e("v_bfe_u32 v7, v3, 4, 1")
    g.e("v_lshlrev_b32 v7, 14, v7")
    g.e("v_and_b32 v6, 15, v3")
    g.e("v_lshl_add_u32 v7, v6, 4, v7")
    g.e("v_lshl_add_u32 v7, v4, 3, v7")
    g.e("s_lshl_b32 s26, s20, 9")
    g.e("s_lshl_b32 s27, s23, 10")
    g.e("s_add_u32 s26, s26, s27")
    g.vm("buffer_store_dwordx2 %s, v7, s[%d:%d], s26 offen" % (vr(PF, 2), SO, SO + 3), "o")
    g.vm("buffer_store_dwordx2 %s, v7, s[%d:%d], s26 offen offset:256" % (vr(PF + 2, 2), SO, SO + 3), "o")
    g.end(name)
    return dict(name=name, grid=512, lds=lds, vgpr=176, agpr=0)


def main():
    g = G()
    ks = []
    ks.append(ln_gemm(g, "k1_qkv_kernel", "qkv"))
    ks.append(attention(g, "k2_attn_kernel"))
    ks.append(gemm_res(g, "k3_wo_kernel", P_WS, WS_ATTN, 1024, 512, P_WO, P_WS, WS_XF, P_WS, WS_H, 8, True))
    ks.append(ln_gemm(g, "k4_ffn_kernel", "ffn"))
    ks.append(gemm_res(g, "k5_w2_kernel", P_WS, WS_HMID, 3584, 1792, P_W2, P_WS, WS_H, P_OUT, 0, 8, False))
    out = []
    for k in ks:
        out.append("; @launch kernel=%s grid=(%d,1,1) block=(256,1,1) lds=%d" % (k["name"], k["grid"], k["lds"]))
    out.append('.amdgcn_target "amdgcn-amd-amdhsa--gfx950"')
    out.append(".text")
    out += g.lines
    out.append('.section .rodata,"a"')
    for k in ks:
        accoff = (k["vgpr"] + 3) // 4 * 4
        assert accoff <= 256
        tot = accoff + k["agpr"]
        assert tot <= 512
        out.append(".p2align 6")
        out.append(".amdhsa_kernel %s" % k["name"])
        out.append("  .amdhsa_next_free_vgpr %d" % tot)
        out.append("  .amdhsa_next_free_sgpr 102")
        out.append("  .amdhsa_accum_offset %d" % accoff)
        out.append("  .amdhsa_group_segment_fixed_size 0")
        out.append("  .amdhsa_kernarg_size 80")
        out.append("  .amdhsa_user_sgpr_count 2")
        out.append("  .amdhsa_user_sgpr_kernarg_segment_ptr 1")
        out.append("  .amdhsa_system_sgpr_workgroup_id_x 1")
        out.append(".end_amdhsa_kernel")
    dst = sys.argv[1] if len(sys.argv) > 1 else "sequential_preLN__sliding_block__glu_gated_swiglu__prompt.s"
    open(dst, "w").write("\n".join(out) + "\n")
    for k in ks:
        print(k)


if __name__ == "__main__":
    main()
```

```python
import sys

MB = 1 << 20
import os
CUT = int(os.environ.get('CUT', '-1'))
EXP = os.environ.get('EXP', '')
TS = int(os.environ.get('TS', '0'))
PRO_RES = int(os.environ.get('PRO_RES', '4'))
PRO_LN = int(os.environ.get('PRO_LN', '4'))
PFM = os.environ.get('PF', 'B')
WS_QKV = 0
WS_ATTN = 6 * MB
WS_H = 8 * MB
WS_HMID = 10 * MB
WS_XF = 18 * MB
LOG2E = 1.4426950408889634
QSCALE = 0.25 * LOG2E

P_X, P_WQKV, P_WO, P_BX, P_W1, P_W3, P_W2, P_OUT, P_DBG, P_WS = [64 + 2 * i for i in range(10)]


def f32hex(x):
    import struct
    return "0x%08x" % struct.unpack("<I", struct.pack("<f", x))[0]


class G:
    def __init__(self):
        self.lines = []
        self.vmq = []
        self.lgq = []
        self.nlabel = 0

    def e(self, s):
        self.lines.append("    " + s)

    def label(self, s):
        self.lines.append(s + ":")

    def newlabel(self, p):
        self.nlabel += 1
        return "L_%s_%d" % (p, self.nlabel)

    def vm(self, s, tag):
        self.e(s)
        self.vmq.append(tag)
        assert len(self.vmq) <= 63, "too many outstanding vmem"

    def lg(self, s, tag):
        self.e(s)
        self.lgq.append(tag)
        assert len(self.lgq) <= 15, "too many outstanding lgkm"

    def _wait(self, q, tag):
        if tag not in q:
            return None, q
        idx = len(q) - 1 - q[::-1].index(tag)
        return len(q) - 1 - idx, q[idx + 1:]

    def wait_vm(self, tag):
        n, self.vmq = self._wait(self.vmq, tag)
        if n is not None:
            self.e("s_waitcnt vmcnt(%d)" % n)

    def wait_lg(self, tag):
        n, self.lgq = self._wait(self.lgq, tag)
        if n is not None:
            self.e("s_waitcnt lgkmcnt(%d)" % n)

    def wait_all(self):
        self.e("s_waitcnt vmcnt(0) lgkmcnt(0)")
        self.vmq = []
        self.lgq = []

    def ts(self, k):
        if not TS or k > 8:
            return
        self.e("s_memtime s[%d:%d]" % (84 + 2 * k, 85 + 2 * k))
        self.e("s_waitcnt lgkmcnt(0)")
        self.lgq = []

    def ts_dump(self, kidx):
        if not TS:
            return
        L = self.newlabel("ts")
        self.e("s_cmp_lg_u32 s3, 0")
        self.e("s_cbranch_scc1 %s" % L)
        self.e("s_memrealtime s[60:61]")
        self.e("s_waitcnt lgkmcnt(0)")
        self.srd(56, P_WS, 24 * MB + kidx * 65536, 65536)
        self.e("s_lshl_b32 s62, s2, 6")
        self.e("v_mov_b32 v0, 0")
        for k in range(9):
            self.e("v_mov_b32 v1, s%d" % (84 + 2 * k))
            self.e("buffer_store_dword v1, v0, s[56:59], s62 offen offset:%d" % (4 * k))
        self.e("v_mov_b32 v1, s60")
        self.e("buffer_store_dword v1, v0, s[56:59], s62 offen offset:36")
        self.label(L)

    def nop(self, n):
        while n > 0:
            k = min(n, 16)
            self.e("s_nop %d" % (k - 1))
            n -= k

    def begin(self, name, nwg):
        self.lines.append(".globl %s" % name)
        self.lines.append(".p2align 8")
        self.lines.append(".type %s,@function" % name)
        self.label(name)
        self.vmq = []
        self.lgq = []
        self.e("s_cmp_ge_u32 s2, %d" % nwg)
        self.e("s_cbranch_scc1 L_end_%s" % name)
        self.e("s_load_dwordx16 s[64:79], s[0:1], 0")
        self.e("s_load_dwordx4 s[80:83], s[0:1], 64")
        self.e("v_and_b32 v1, 63, v0")
        self.e("v_lshrrev_b32 v2, 6, v0")
        self.e("s_nop 0")
        self.e("v_readfirstlane_b32 s3, v2")
        self.e("s_waitcnt lgkmcnt(0)")
        self.ts(0)

    def end(self, name):
        self.label("L_end_%s" % name)
        self.e("s_endpgm")

    def srd(self, d, ptr, off, size):
        if off:
            self.e("s_add_u32 s%d, s%d, 0x%x" % (d, ptr, off))
            self.e("s_addc_u32 s%d, s%d, 0" % (d + 1, ptr + 1))
        else:
            self.e("s_mov_b32 s%d, s%d" % (d, ptr))
            self.e("s_mov_b32 s%d, s%d" % (d + 1, ptr + 1))
        self.e("s_mov_b32 s%d, 0x%x" % (d + 2, size))
        self.e("s_mov_b32 s%d, 0x00020000" % (d + 3))


def vr(b, n=4):
    return "v[%d:%d]" % (b, b + n - 1)


def ar(b, n=4):
    return "a[%d:%d]" % (b, b + n - 1)


def pipeline(g, items, D, stage_of, on_stage_start, issue_reads, do_mfma):
    n = len(items)
    pend = []
    npend = 0
    r = 0
    nin = 1
    for i in range(-D, n):
        j = i + D
        ms, rs = [], []
        if i >= 0:
            g.wait_lg(("it", i))
            ms = do_mfma(i, items[i]) or []
        if j < n:
            if j == 0 or stage_of(items[j]) != stage_of(items[j - 1]):
                assert not pend
                for m in ms:
                    m()
                ms = []
                pend = list(on_stage_start(stage_of(items[j])) or [])
                npend = len(pend)
                r = 0
                nin = sum(1 for it in items if stage_of(it) == stage_of(items[j]))
            rs = issue_reads(j, items[j]) or []
        vs = []
        if j < n:
            r += 1
            want = (r * npend + nin - 1) // nin
            while npend - len(pend) < want:
                vs.append(pend.pop(0))
        rs = rs + vs
        while ms or rs:
            if ms:
                ms.pop(0)()
            if rs:
                rs.pop(0)()


def gemm_res(g, name, a_ptr, a_off, a_rowb, KD, w_ptr, res_ptr, res_off, out_ptr, out_off, nslots, out_fl):
    g.begin(name, 256)
    if CUT == 0:
        g.e("s_endpgm")
    nks = KD // 32
    nst = KD // 128
    ring = nslots < nst
    SA, SW, SR, SO = 4, 8, 12, 16
    RV = 2
    ostep = 512 if out_fl else 32
    g.srd(SA, a_ptr, a_off, 2048 * a_rowb)
    g.srd(SW, w_ptr, 0, KD * 1024)
    g.srd(SR, res_ptr, res_off, 2048 * 1024)
    g.srd(SO, out_ptr, out_off, 2048 * 1024)
    g.e("s_and_b32 s20, s2, 31")
    g.e("s_lshr_b32 s21, s2, 5")
    g.e("s_lshl_b32 s22, s20, 6")
    g.e("s_lshl_b32 s23, s3, 4")
    g.e("s_add_u32 s22, s22, s23")
    g.e("v_and_b32 v3, 15, v1")
    g.e("v_add_u32 v3, s22, v3")
    g.e("v_lshrrev_b32 v4, 4, v1")
    g.e("s_lshl_b32 s27, s20, 2")
    g.e("s_add_u32 s27, s27, s3")
    g.e("s_mul_i32 s28, s27, %d" % (16 * a_rowb))
    g.e("v_lshlrev_b32 v5, 4, v1")
    g.e("v_add_u32 v5, s28, v5")
    g.e("s_lshl_b32 s28, s27, 14")
    g.e("s_lshl_b32 s29, s21, 11")
    g.e("s_add_u32 s28, s28, s29")
    g.e("v_and_b32 v9, 15, v1")
    g.e("v_lshlrev_b32 v9, 4, v9")
    g.e("v_bfe_u32 v10, v1, 5, 1")
    g.e("v_lshl_add_u32 v9, v10, 8, v9")
    g.e("v_bfe_u32 v10, v1, 4, 1")
    g.e("v_lshl_add_u32 v9, v10, 3, v9")
    g.e("v_add_u32 v%d, s28, v9" % RV)
    g.e("s_lshl_b32 s23, s21, 7")
    if not out_fl:
        g.e("v_lshlrev_b32 v6, 10, v3")
        g.e("v_lshl_add_u32 v6, v4, 3, v6")
        g.e("v_add_u32 v6, s23, v6")
    else:
        g.e("v_mov_b32 v6, v%d" % RV)
    g.e("v_lshrrev_b32 v9, 3, v1")
    g.e("v_and_b32 v10, 7, v1")
    g.e("v_bfe_u32 v11, v1, 4, 1")
    g.e("v_lshlrev_b32 v11, 1, v11")
    g.e("v_xor_b32 v10, v10, v11")
    g.e("v_lshlrev_b32 v9, 10, v9")
    g.e("v_lshl_add_u32 v7, v10, 4, v9")
    g.e("v_xor_b32 v10, 4, v10")
    g.e("v_lshl_add_u32 v8, v10, 4, v9")
    g.e("s_lshl_b32 s24, s3, 15")
    g.e("s_add_u32 s24, s24, s23")
    g.e("s_lshl_b32 s25, s3, 12")
    g.e("v_bfe_u32 v9, v1, 2, 2")
    g.e("v_lshl_add_u32 v10, v4, 3, v9")
    g.e("v_lshlrev_b32 v10, 7, v10")
    g.e("v_bfe_u32 v11, v1, 1, 1")
    g.e("v_lshl_add_u32 v10, v11, 4, v10")
    g.e("v_and_b32 v11, 1, v1")
    g.e("v_lshl_add_u32 v10, v11, 3, v10")
    g.e("v_bfe_u32 v11, v1, 3, 1")
    g.e("v_bfe_u32 v12, v1, 4, 1")
    g.e("v_lshl_or_b32 v11, v12, 1, v11")
    g.e("v_lshlrev_b32 v11, 1, v11")
    TA = 12
    for nt in range(4):
        g.e("v_xor_b32 v20, %d, v11" % (2 * nt))
        g.e("v_lshl_add_u32 v%d, v20, 4, v10" % (TA + nt))
        g.e("v_add_u32 v%d, 0x10000, v%d" % (TA + 4 + nt, TA + nt))
    RES = 20
    ACC = 28
    WF = 44
    D = 7
    NR = D + 1

    def stage_loads(s):
        slot = s % nslots
        out = []
        for q in range(4):
            def f(q=q):
                g.e("s_add_u32 m0, s25, 0x%x" % (slot * 16384 + q * 1024))
                g.e("s_add_u32 s26, s24, 0x%x" % ((s * 128 + q * 8) * 1024))
                g.vm("buffer_load_dwordx4 v%d, s[%d:%d], s26 offen lds" % (7 + (q & 1), SW, SW + 3), ("st", s))
            out.append(f)
            def f2(k4=q):
                ks = s * 4 + k4
                g.e("s_mov_b32 s27, 0x%x" % (s * 4096))
                g.vm("buffer_load_dwordx4 %s, v5, s[%d:%d], s27 offen offset:%d" % (ar(ks * 4), SA, SA + 3, k4 * 1024), ("st", s))
            out.append(f2)
        return out

    def issue_stage(s):
        for f in stage_loads(s):
            f()

    P = min(PRO_RES, nslots - 2) if ring else PRO_RES
    npro = min(nst, P)
    issue_stage(0)
    for nt in range(4):
        g.vm("buffer_load_dwordx2 %s, v%d, s[%d:%d], 0 offen offset:%d" % (vr(RES + 2 * nt, 2), RV, SR, SR + 3, nt * 512), "res")
    for s in range(1, npro):
        issue_stage(s)
    if CUT == 1:
        g.e("s_waitcnt vmcnt(0)")
        g.e("s_endpgm")
    g.ts(1)
    tsst = (0, 1, 2, 3) if nst == 4 else (0, 1, 5, 9, 13)

    items = [(ks, nt) for ks in range(nks) for nt in range(4)]

    def on_stage_start(s):
        g.wait_vm(("st", s))
        g.e("s_barrier")
        if s in tsst:
            g.ts(2 + tsst.index(s))
        if s + P < nst:
            return stage_loads(s + P)

    def issue_reads(j, it):
        ks, nt = it
        s = ks // 4
        slot = s % nslots
        off = slot * 16384 + (ks % 4) * 32 * 128
        a = TA + nt
        if off >= 65536:
            off -= 65536
            a += 4
        w = WF + (j % NR) * 4
        return [lambda: g.lg("ds_read_b64_tr_b16 %s, v%d offset:%d" % (vr(w, 2), a, off), ("it", j)),
                lambda: g.lg("ds_read_b64_tr_b16 %s, v%d offset:%d" % (vr(w + 2, 2), a, off + 512), ("it", j))]

    def do_mfma(i, it):
        ks, nt = it
        w = WF + (i % NR) * 4
        acc = vr(ACC + nt * 4)
        return [lambda: g.e("v_mfma_f32_16x16x32_bf16 %s, %s, %s, %s" % (acc, vr(w), ar(ks * 4), "0" if ks == 0 else acc))]

    pipeline(g, items, D, lambda it: it[0] // 4, on_stage_start, issue_reads, do_mfma)
    g.ts(7)
    g.wait_vm("res")
    g.nop(16)
    T = WF
    for nt in range(4):
        a = ACC + nt * 4
        r = RES + 2 * nt
        g.e("v_lshlrev_b32 v%d, 16, v%d" % (T, r))
        g.e("v_and_b32 v%d, 0xffff0000, v%d" % (T + 1, r))
        g.e("v_lshlrev_b32 v%d, 16, v%d" % (T + 2, r + 1))
        g.e("v_and_b32 v%d, 0xffff0000, v%d" % (T + 3, r + 1))
        for k in range(4):
            g.e("v_add_f32 v%d, v%d, v%d" % (a + k, a + k, T + k))
        g.e("v_cvt_pk_bf16_f32 v%d, v%d, v%d" % (a, a, a + 1))
        g.e("v_cvt_pk_bf16_f32 v%d, v%d, v%d" % (a + 1, a + 2, a + 3))
        g.vm("buffer_store_dwordx2 %s, v6, s[%d:%d], 0 offen offset:%d" % (vr(a, 2), SO, SO + 3, nt * ostep), "out")
    g.ts(8)
    g.ts_dump(2 if nst == 4 else 4)
    g.end(name)
    nv = WF + NR * 4
    return dict(name=name, grid=256, lds=nslots * 16384 if ring else nst * 16384, vgpr=nv, agpr=nks * 4)


def ln_gemm(g, name, mode):
    qkv = mode == "qkv"
    g.begin(name, 256)
    NT = 6 if qkv else 14
    NPM = 6 if qkv else 7
    NW0 = NPM - 3
    CSP = (0, 3) if qkv else (0, 4)
    nks = 16
    nst = 8
    nslots = 5
    SLOTB = 28672
    CSB = 5 * SLOTB
    lds = CSB + 1024
    SA, SW, SO, SX = 4, 8, 12, 16
    ool = []
    if qkv:
        g.srd(SA, P_X, 0, 2048 * 1024)
        g.srd(SW, P_WQKV, 0, 512 * 3072)
        g.srd(SO, P_WS, WS_QKV, 6 * MB)
        g.srd(SX, P_WS, WS_XF, 2 * MB)
    else:
        g.srd(SA, P_WS, WS_H, 2048 * 1024)
        g.e("s_cmp_lt_u32 s3, 2")
        g.e("s_cselect_b32 s%d, s%d, s%d" % (SW, P_W1, P_W3))
        g.e("s_cselect_b32 s%d, s%d, s%d" % (SW + 1, P_W1 + 1, P_W3 + 1))
        g.e("s_mov_b32 s%d, 0x%x" % (SW + 2, 512 * 3584))
        g.e("s_mov_b32 s%d, 0x00020000" % (SW + 3))
        g.srd(SO, P_WS, WS_HMID, 2048 * 3584)
    g.e("s_lshr_b32 s22, s2, 3")
    if qkv:
        g.e("s_and_b32 s20, s2, 3")
        g.e("s_lshl_b32 s20, s20, 2")
        g.e("s_and_b32 s23, s22, 3")
        g.e("s_add_u32 s20, s20, s23")
        g.e("s_bfe_u32 s21, s2, 0x10002")
        g.e("s_lshl_b32 s21, s21, 3")
        g.e("s_lshr_b32 s23, s22, 2")
        g.e("s_add_u32 s21, s21, s23")
    else:
        g.e("s_and_b32 s20, s2, 1")
        g.e("s_lshl_b32 s20, s20, 3")
        g.e("s_and_b32 s23, s22, 7")
        g.e("s_add_u32 s20, s20, s23")
        g.e("s_bfe_u32 s21, s2, 0x20001")
        g.e("s_lshl_b32 s21, s21, 2")
        g.e("s_lshr_b32 s23, s22, 3")
        g.e("s_add_u32 s21, s21, s23")
    g.e("s_lshl_b32 s22, s20, 7")
    g.e("s_lshl_b32 s23, s3, 5")
    g.e("s_add_u32 s22, s22, s23")
    g.e("v_and_b32 v3, 15, v1")
    g.e("v_lshrrev_b32 v4, 4, v1")
    g.e("v_bfe_u32 v9, v1, 2, 2")
    ST = 40
    for p in range(NPM):
        g.e("s_add_u32 s%d, s3, %d" % (ST + p, p))
        if p >= NW0:
            g.e("s_cmp_ge_u32 s%d, %d" % (ST + p, NPM))
            g.e("s_cselect_b32 s26, %d, 0" % NPM)
            g.e("s_sub_u32 s%d, s%d, s26" % (ST + p, ST + p))
    if qkv:
        g.e("v_lshrrev_b32 v10, 3, v1")
        g.e("v_and_b32 v11, 7, v1")
        g.e("v_xor_b32 v11, v11, v10")
        g.e("v_lshlrev_b32 v10, 10, v10")
        g.e("v_lshl_add_u32 v5, v11, 4, v10")
        g.e("s_lshl_b32 s30, s22, 10")
        g.e("s_lshl_b32 s31, s3, 12")
        g.e("s_mul_i32 s24, s3, 192")
        g.e("v_add_u32 v10, s24, v1")
        DV = 16
        for q in range(3):
            g.e("v_add_u32 v11, %d, v10" % (q * 64))
            g.e("v_mul_u32_u24 v12, 5462, v11")
            g.e("v_lshrrev_b32 v12, 16, v12")
            g.e("v_mul_u32_u24 v13, 12, v12")
            g.e("v_sub_u32 v13, v11, v13")
            g.e("v_bfe_u32 v14, v12, 3, 1")
            g.e("v_lshlrev_b32 v14, 1, v14")
            g.e("v_xor_b32 v13, v13, v14")
            g.e("v_mul_u32_u24 v14, 3072, v12")
            g.e("v_lshl_add_u32 v%d, v13, 4, v14" % (DV + q))
        g.e("s_mul_i32 s24, s21, 192")
        g.e("s_mul_i32 s25, s3, 3072")
        g.e("v_add_u32 v10, s22, v3")
        g.e("v_lshlrev_b32 v7, 5, v10")
        g.e("v_lshl_add_u32 v7, v4, 3, v7")
        g.e("s_lshl_b32 s26, s22, 10")
        g.e("s_lshl_b32 s27, s21, 10")
        g.e("s_add_u32 s26, s26, s27")
        g.e("v_lshlrev_b32 v8, 4, v1")
        g.e("v_add_u32 v8, s26, v8")
        g.e("v_and_b32 v10, 7, v1")
        g.e("v_xor_b32 v10, v10, v4")
        g.e("v_lshlrev_b32 v11, 7, v3")
        g.e("v_lshl_add_u32 v11, v10, 4, v11")
        g.e("v_add_u32 v19, s31, v11")
        g.e("v_xor_b32 v20, 64, v19")
        XA = 19
        for b in range(1, 3):
            g.e("v_add_u32 v%d, 0x%x, v19" % (XA + 2 * b, b * 2 * SLOTB))
            g.e("v_add_u32 v%d, 0x%x, v20" % (XA + 2 * b + 1, b * 2 * SLOTB))
        g.e("v_lshl_add_u32 v10, v4, 3, v9")
        g.e("v_mul_u32_u24 v10, 192, v10")
        g.e("v_bfe_u32 v11, v1, 1, 1")
        g.e("v_lshl_add_u32 v10, v11, 4, v10")
        g.e("v_and_b32 v11, 1, v1")
        g.e("v_lshl_add_u32 v10, v11, 3, v10")
        g.e("v_add_u32 v10, 0x4000, v10")
        g.e("v_bfe_u32 v11, v1, 4, 1")
        g.e("v_lshlrev_b32 v11, 5, v11")
        TA = 25
        NA = 5
        ai = lambda p: (p & 1) if p < NW0 else p - 1
        for k, p in enumerate((0, 1, 3, 4, 5)):
            g.e("s_sub_u32 s26, s%d, %d" % (ST + p, p))
            g.e("s_lshl_b32 s26, s26, 5")
            g.e("v_add_u32 v12, s26, v10")
            g.e("s_and_b32 s27, s%d, 1" % (ST + p))
            g.e("s_lshl_b32 s27, s27, 1")
            g.e("s_sub_u32 s27, 1, s27")
            g.e("v_mul_lo_u32 v13, s27, v11")
            g.e("v_add_u32 v%d, v12, v13" % (TA + k))
        for b in range(1, 3):
            for k in range(NA):
                g.e("v_add_u32 v%d, 0x%x, v%d" % (TA + NA * b + k, b * 2 * SLOTB, TA + k))
        nextv = TA + 3 * NA
    else:
        g.e("s_lshl_b32 s26, s22, 10")
        g.e("v_lshlrev_b32 v5, 4, v1")
        g.e("v_add_u32 v5, s26, v5")
        g.e("v_add_u32 v6, 0x4000, v5")
        g.e("s_lshr_b32 s26, s22, 4")
        g.e("s_mul_i32 s26, s26, 57344")
        g.e("s_mul_i32 s27, s21, 3584")
        g.e("s_add_u32 s26, s26, s27")
        g.e("v_lshlrev_b32 v7, 4, v3")
        g.e("v_bfe_u32 v10, v1, 5, 1")
        g.e("v_lshl_add_u32 v7, v10, 8, v7")
        g.e("v_bfe_u32 v10, v1, 4, 1")
        g.e("v_lshl_add_u32 v7, v10, 3, v7")
        g.e("v_add_u32 v7, s26, v7")
        g.e("s_mul_i32 s23, s21, 224")
        g.e("s_and_b32 s24, s3, 1")
        g.e("s_mul_i32 s24, s24, 448")
        g.e("v_add_u32 v10, s24, v1")
        DV = 16
        for q in range(7):
            g.e("v_add_u32 v11, %d, v10" % (q * 64))
            g.e("v_mul_u32_u24 v12, 4682, v11")
            g.e("v_lshrrev_b32 v12, 16, v12")
            g.e("v_mul_u32_u24 v13, 14, v12")
            g.e("v_sub_u32 v13, v11, v13")
            g.e("v_and_b32 v14, 0x33, v12")
            g.e("v_bfe_u32 v15, v12, 2, 1")
            g.e("v_lshl_or_b32 v14, v15, 3, v14")
            g.e("v_bfe_u32 v15, v12, 3, 1")
            g.e("v_lshl_or_b32 v14, v15, 2, v14")
            g.e("v_mul_u32_u24 v14, 3584, v14")
            g.e("v_lshl_add_u32 v%d, v13, 4, v14" % (DV + q))
        g.e("s_mov_b32 s24, s23")
        g.e("s_mul_i32 s25, s3, 7168")
        g.e("v_bfe_u32 v10, v1, 5, 1")
        g.e("v_lshl_add_u32 v10, v10, 4, v9")
        g.e("v_bfe_u32 v11, v1, 4, 1")
        g.e("v_lshl_add_u32 v10, v11, 2, v10")
        g.e("v_mul_u32_u24 v10, 224, v10")
        g.e("v_and_b32 v11, 3, v1")
        g.e("v_lshl_add_u32 v10, v11, 3, v10")
        TA = 23
        NA = 4
        ai = lambda p: 0 if p < NW0 else p - 3
        for k, p in enumerate((0, 4, 5, 6)):
            g.e("s_lshl_b32 s26, s%d, 5" % (ST + p))
            g.e("v_add_u32 v%d, s26, v10" % (TA + k))
        for b in range(1, 3):
            for k in range(NA):
                g.e("v_add_u32 v%d, 0x%x, v%d" % (TA + NA * b + k, b * 2 * SLOTB, TA + k))
        nextv = TA + 3 * NA
    nextv = (nextv + 3) // 4 * 4
    ONES = nextv
    for k in range(4):
        g.e("v_mov_b32 v%d, 0x3f803f80" % (ONES + k))
    SUM = ONES + 4
    GRAM = SUM + 8
    CSA = GRAM + 8
    WF = CSA + 16
    D = 6 if qkv else 7
    NR = 8
    nextv = WF + NR * 4
    AX = 0
    ACCV = nextv
    nextv += 2 * NT * 4
    acc = lambda tt, ct: vr(ACCV + (tt * NT + ct) * 4)
    if qkv:
        XF = nextv
        nextv += 16
        XS = nextv
        nextv += 8
        xfr = lambda ks, tt: vr(XF + ((ks & 1) * 2 + tt) * 4)
    else:
        xfr = lambda ks, tt: ar(AX + (tt * 16 + ks) * 4)

    def stage_loads(s):
        wl, al = [], []
        slot = s % nslots
        if qkv:
            for q in range(3):
                def f(q=q):
                    g.e("s_add_u32 m0, s25, 0x%x" % (slot * SLOTB + 16384 + q * 1024))
                    g.e("s_add_u32 s26, s24, 0x%x" % (s * 64 * 3072))
                    g.vm("buffer_load_dwordx4 v%d, s[%d:%d], s26 offen lds" % (DV + q, SW, SW + 3), ("st", s))
                wl.append(f)
            for q in range(4):
                def f(q=q):
                    g.e("s_add_u32 m0, s31, 0x%x" % (slot * SLOTB + q * 1024))
                    g.e("s_add_u32 s26, s30, 0x%x" % (q * 8192 + s * 128))
                    g.vm("buffer_load_dwordx4 v5, s[%d:%d], s26 offen lds" % (SA, SA + 3), ("st", s))
                al.append(f)
        else:
            for q in range(7):
                def f(q=q):
                    g.e("s_add_u32 m0, s25, 0x%x" % (slot * SLOTB + q * 1024))
                    g.e("s_add_u32 s26, s24, 0x%x" % (s * 64 * 3584))
                    g.vm("buffer_load_dwordx4 v%d, s[%d:%d], s26 offen lds" % (DV + q, SW, SW + 3), ("st", s))
                wl.append(f)
            for k2 in range(2):
                for tt in range(2):
                    def f(k2=k2, tt=tt):
                        ks = s * 2 + k2
                        g.e("s_mov_b32 s27, 0x%x" % (s * 2048))
                        g.vm("buffer_load_dwordx4 %s, v%d, s[%d:%d], s27 offen offset:%d" % (
                            ar(AX + (tt * 16 + ks) * 4), 5 + tt, SA, SA + 3, k2 * 1024), ("st", s))
                    al.append(f)
        out = []
        while wl or al:
            if wl:
                out.append(wl.pop(0))
            if al and (len(al) >= len(wl) or not wl or len(out) % 2 == 0):
                out.append(al.pop(0))
        return out

    def issue_stage(s):
        for f in stage_loads(s):
            f()

    P = min(PRO_LN, nslots - 2)
    for s in range(P):
        issue_stage(s)
    g.ts(1)

    items = [(ks, ct) for ks in range(nks) for ct in range(NT)]

    def on_stage_start(s):
        g.wait_vm(("st", s))
        g.e("s_barrier")
        if s in (0, 1, 3, 5, 7):
            g.ts(2 + (0, 1, 3, 5, 7).index(s))
        if s + P < nst:
            return stage_loads(s + P)

    def issue_reads(j, it):
        ks, ct = it
        w = WF + (j % NR) * 4
        s = ks // 2
        slot = s % nslots
        b, so = slot >> 1, (slot & 1) * SLOTB
        out = []
        if qkv:
            if ct == 0:
                for tt in range(2):
                    out.append(lambda tt=tt: g.lg("ds_read_b128 %s, v%d offset:%d" % (xfr(ks, tt), XA + 2 * b + (ks & 1), so + tt * 2048), ("it", j)))
            a = TA + NA * b + ai(ct)
            off = so + (ks % 2) * 32 * 192 + ct * 32
            off2 = off + 4 * 192
        else:
            mat, p = ct // 7, ct % 7
            a = TA + NA * b + ai(p)
            off = so + mat * 14336 + (ks % 2) * 32 * 224 + (p * 32 if p < NW0 else 0)
            off2 = off + 8 * 224
        out.append(lambda: g.lg("ds_read_b64_tr_b16 %s, v%d offset:%d" % (vr(w, 2), a, off), ("it", j)))
        out.append(lambda: g.lg("ds_read_b64_tr_b16 %s, v%d offset:%d" % (vr(w + 2, 2), a, off2), ("it", j)))
        return out

    def do_mfma(i, it):
        ks, ct = it
        w = WF + (i % NR) * 4
        out = []
        def mf(d, a, b):
            out.append(lambda: g.e("v_mfma_f32_16x16x32_bf16 %s, %s, %s, %s" % (d, a, b, "0" if ks == 0 else d)))
        for tt in range(2):
            mf(acc(tt, ct), vr(w), xfr(ks, tt))
        mat, p = ct // NPM, ct % NPM
        if p in CSP:
            mf(vr(CSA + (mat * 2 + CSP.index(p)) * 4), vr(w), vr(ONES))
        if ct in (1, 2):
            tt = ct - 1
            x = xfr(ks, tt)
            mf(vr(SUM + tt * 4), vr(ONES), x)
            mf(vr(GRAM + tt * 4), x, x)
        if qkv and ct == 4:
            def f():
                L = g.newlabel("xs")
                g.e("s_cmp_eq_u32 s21, %d" % ks)
                g.e("s_cbranch_scc1 %s" % L)
                g.label(L + "_r")
                ool.append((L, ks))
            out.append(f)
        return out

    pipeline(g, items, D, lambda it: it[0] // 2, on_stage_start, issue_reads, do_mfma)
    if qkv:
        g.vm("buffer_store_dwordx4 %s, v8, s[%d:%d], 0 offen" % (vr(XS), SX, SX + 3), "out")
        g.e("v_add_u32 v8, 0x4000, v8")
        g.vm("buffer_store_dwordx4 %s, v8, s[%d:%d], 0 offen" % (vr(XS + 4), SX, SX + 3), "out")
    g.nop(16)
    g.ts(7)
    T = WF
    g.e("v_lshlrev_b32 v%d, 4, v4" % T)
    g.e("v_add_u32 v%d, 0x%x, v%d" % (T + 1, CSB, T))
    for k in range(2):
        g.e("s_lshl_b32 s27, s%d, 6" % (ST + CSP[k]))
        g.e("v_add_u32 v%d, s27, v%d" % (T + 2 + k, T + 1))
    g.e("s_mov_b32 s28, 0x00010001")
    g.e("s_mov_b32 s29, 0x00010001")
    g.e("s_mov_b64 exec, s[28:29]")
    for mat in range(NT // NPM):
        for k in range(2):
            g.lg("ds_write_b128 v%d, %s offset:%d" % (T + 2 + k, vr(CSA + (mat * 2 + k) * 4), mat * NPM * 64), "csw")
    g.e("s_mov_b64 exec, -1")
    for r in range(4):
        m = 0
        for gg in range(4):
            m |= 1 << (20 * gg + r)
        g.e("s_mov_b32 s%d, 0x%x" % (30 + 2 * r, m & 0xffffffff))
        g.e("s_mov_b32 s%d, 0x%x" % (31 + 2 * r, m >> 32))
    for tt in range(2):
        d = T + 4
        g.e("v_mov_b32 v%d, 0" % d)
        for r in range(4):
            g.e("v_cndmask_b32_e64 v%d, v%d, v%d, s[%d:%d]" % (d, d, GRAM + tt * 4 + r, 30 + 2 * r, 31 + 2 * r))
        g.e("v_mov_b32 v%d, v%d" % (d + 1, d))
        g.nop(2)
        g.e("v_permlane16_swap_b32 v%d, v%d" % (d, d + 1))
        g.nop(1)
        g.e("v_add_f32 v%d, v%d, v%d" % (d, d, d + 1))
        g.e("v_mov_b32 v%d, v%d" % (d + 1, d))
        g.nop(2)
        g.e("v_permlane32_swap_b32 v%d, v%d" % (d, d + 1))
        g.nop(1)
        g.e("v_add_f32 v%d, v%d, v%d" % (d, d, d + 1))
        m = SUM + tt * 4
        g.e("v_mul_f32 v%d, %s, v%d" % (m, f32hex(1.0 / 512), m))
        g.e("v_mul_f32 v%d, %s, v%d" % (d, f32hex(1.0 / 512), d))
        g.e("v_fma_f32 v%d, -v%d, v%d, v%d" % (d, m, m, d))
        g.e("v_max_f32 v%d, 0, v%d" % (d, d))
        g.e("v_add_f32 v%d, %s, v%d" % (m + 3, f32hex(1e-5), d))
        g.e("v_rsq_f32 v%d, v%d" % (m + 1, m + 3))
        g.nop(1)
        g.e("v_mul_f32 v%d, %s, v%d" % (m + 2, f32hex(QSCALE if qkv else -LOG2E), m + 1))
    g.wait_lg("csw")
    g.e("s_barrier")
    CS = T + 8
    AD = T + 6
    def pk(op, d, a, b, c=None, sel=None, neg=False):
        ops = [a, b] + ([c] if c is not None else [])
        sel = sel or {}
        lo = [sel.get(i, (0, 1))[0] for i in range(len(ops))]
        hi = [sel.get(i, (0, 1))[1] for i in range(len(ops))]
        t = "%s %s, %s" % (op, vr(d, 2), ", ".join(vr(o, 2) for o in ops))
        t += " op_sel:[%s] op_sel_hi:[%s]" % (",".join(map(str, lo)), ",".join(map(str, hi)))
        if neg:
            z = ["1"] + ["0"] * (len(ops) - 1)
            t += " neg_lo:[%s] neg_hi:[%s]" % (",".join(z), ",".join(z))
        g.e(t)

    def cs_read(p):
        bb = CS + (p & 1) * 8
        g.e("s_lshl_b32 s27, s%d, 6" % (ST + p))
        g.e("v_add_u32 v%d, s27, v%d" % (AD + (p & 1), T + 1))
        g.lg("ds_read_b128 %s, v%d" % (vr(bb), AD + (p & 1)), ("cs", p))
        if not qkv:
            g.lg("ds_read_b128 %s, v%d offset:448" % (vr(bb + 4), AD + (p & 1)), ("cs", p))
    cs_read(0)
    if qkv:
        for p in range(NPM):
            if p + 1 < NPM:
                cs_read(p + 1)
            g.wait_lg(("cs", p))
            bb = CS + (p & 1) * 8
            g.e("s_mul_i32 s26, s21, 6")
            g.e("s_add_u32 s26, s26, s%d" % (ST + p))
            g.e("s_cmp_lt_u32 s26, 32")
            g.e("s_cselect_b32 s28, -1, 0")
            g.e("s_mov_b32 s29, s28")
            g.e("s_lshl_b32 s26, s26, 16")
            for tt in range(2):
                a = ACCV + (tt * NT + p) * 4
                m = SUM + tt * 4
                rs = T + 4
                g.e("v_cndmask_b32_e64 v%d, v%d, v%d, s[28:29]" % (rs, m + 1, m + 2))
                pk("v_pk_fma_f32", a, m, bb, a, sel={0: (0, 0)}, neg=True)
                pk("v_pk_fma_f32", a + 2, m, bb + 2, a + 2, sel={0: (0, 0)}, neg=True)
                pk("v_pk_mul_f32", a, a, rs, sel={1: (0, 0)})
                pk("v_pk_mul_f32", a + 2, a + 2, rs, sel={1: (0, 0)})
                g.e("v_cvt_pk_bf16_f32 v%d, v%d, v%d" % (a, a, a + 1))
                g.e("v_cvt_pk_bf16_f32 v%d, v%d, v%d" % (a + 1, a + 2, a + 3))
                g.vm("buffer_store_dwordx2 %s, v7, s[%d:%d], s26 offen offset:%d" % (vr(a, 2), SO, SO + 3, tt * 512), "out")
    else:
        g.e("v_add_u32 v8, 0x%x, v7" % 57344)
        E = CS + 16
        for p in range(NPM):
            if p + 1 < NPM:
                cs_read(p + 1)
            g.wait_lg(("cs", p))
            bb = CS + (p & 1) * 8
            g.e("s_lshl_b32 s26, s%d, 9" % (ST + p))
            GV = [ACCV + (tt * NT + p) * 4 for tt in range(2)]
            UV = [ACCV + (tt * NT + 7 + p) * 4 for tt in range(2)]
            M = [SUM + tt * 4 for tt in range(2)]
            EV = [E + tt * 4 for tt in range(2)]
            for tt in range(2):
                for h in (0, 2):
                    pk("v_pk_fma_f32", GV[tt] + h, M[tt], bb + h, GV[tt] + h, sel={0: (0, 0)}, neg=True)
                for h in (0, 2):
                    pk("v_pk_mul_f32", EV[tt] + h, GV[tt] + h, M[tt] + 2, sel={1: (0, 0)})
            for tt in range(2):
                for k in range(4):
                    g.e("v_exp_f32 v%d, v%d" % (EV[tt] + k, EV[tt] + k))
            for tt in range(2):
                for h in (0, 2):
                    pk("v_pk_fma_f32", UV[tt] + h, M[tt], bb + 4 + h, UV[tt] + h, sel={0: (0, 0)}, neg=True)
                for h in (0, 2):
                    pk("v_pk_mul_f32", UV[tt] + h, UV[tt] + h, GV[tt] + h)
            for tt in range(2):
                for h in (0, 2):
                    pk("v_pk_fma_f32", EV[tt] + h, EV[tt] + h, M[tt] + 2, M[tt] + 2, sel={1: (1, 1), 2: (1, 1)})
            for tt in range(2):
                for k in range(4):
                    g.e("v_rcp_f32 v%d, v%d" % (EV[tt] + k, EV[tt] + k))
            g.nop(1)
            for tt in range(2):
                for h in (0, 2):
                    pk("v_pk_mul_f32", UV[tt] + h, UV[tt] + h, EV[tt] + h)
                g.e("v_cvt_pk_bf16_f32 v%d, v%d, v%d" % (UV[tt], UV[tt], UV[tt] + 1))
                g.e("v_cvt_pk_bf16_f32 v%d, v%d, v%d" % (UV[tt] + 1, UV[tt] + 2, UV[tt] + 3))
                g.vm("buffer_store_dwordx2 %s, v%d, s[%d:%d], s26 offen" % (vr(UV[tt], 2), 7 + tt, SO, SO + 3), "out")
    g.ts(8)
    g.ts_dump(0 if qkv else 3)
    g.end(name)
    for L, ks in ool:
        g.label(L)
        for k in range(8):
            g.e("v_mov_b32 v%d, v%d" % (XS + k, XF + (ks & 1) * 8 + k))
        g.e("s_branch %s_r" % L)
    return dict(name=name, grid=256, lds=lds, vgpr=nextv, agpr=0 if qkv else 128)


def attention(g, name):
    g.begin(name, 512)
    SQ, SO = 4, 8
    g.srd(SQ, P_WS, WS_QKV, 6 * MB)
    g.srd(SO, P_WS, WS_ATTN, 2 * MB)
    VB = 0
    OB = 12288
    lds = OB + 1024
    g.e("s_and_b32 s20, s2, 31")
    g.e("s_lshr_b32 s21, s2, 5")
    g.e("s_lshl_b32 s22, s21, 7")
    g.e("s_lshl_b32 s23, s3, 5")
    g.e("s_add_u32 s23, s22, s23")
    g.e("s_lshr_b32 s24, s23, 5")
    g.e("s_sub_i32 s24, 8, s24")
    g.e("s_max_i32 s24, s24, 0")
    g.e("v_and_b32 v3, 31, v1")
    g.e("v_lshrrev_b32 v4, 5, v1")
    g.e("s_lshl_b32 s25, s20, 16")
    g.e("v_add_u32 v5, s23, v3")
    g.e("v_lshlrev_b32 v5, 5, v5")
    g.e("v_lshl_add_u32 v5, v4, 4, v5")
    g.e("v_add_u32 v5, s25, v5")
    QF = 8
    KF = 12
    g.vm("buffer_load_dwordx4 %s, v5, s[%d:%d], 0 offen" % (vr(QF), SQ, SQ + 3), "q")
    g.e("v_add_u32 v6, 0x%x, v5" % (2 * MB - 8192))
    for t in range(9):
        if t == 4 or t == 8:
            g.e("v_add_u32 v6, 0x1000, v6")
        g.vm("buffer_load_dwordx4 %s, v6, s[%d:%d], 0 offen offset:%d" % (vr(KF + 4 * t), SQ, SQ + 3, (t % 4) * 1024), ("k", t))
    g.e("s_lshl_b32 s26, s22, 5")
    g.e("s_add_u32 s26, s26, s25")
    g.e("s_add_u32 s26, s26, 0x%x" % (4 * MB - 8192))
    g.e("s_mul_i32 s27, s3, 3072")
    g.e("s_add_u32 s26, s26, s27")
    g.e("v_lshlrev_b32 v7, 4, v1")
    g.e("v_add_u32 v7, s26, v7")
    for q in range(3):
        g.e("s_add_u32 m0, s27, 0x%x" % (VB + q * 1024))
        if q:
            g.e("v_add_u32 v7, 0x400, v7")
        else:
            g.e("s_nop 0")
        g.vm("buffer_load_dwordx4 v7, s[%d:%d], 0 offen lds" % (SQ, SQ + 3), "v")
    NPF = 0
    if PFM in ('A', 'B'):
        g.srd(32, P_WO, 0, 512 * 1024)
        g.srd(36, P_W1, 0, 512 * 3584)
        g.srd(40, P_W3, 0, 512 * 3584)
        g.srd(44, P_W2, 0, 1792 * 1024)
        PV = 176
        g.e("v_lshlrev_b32 v%d, 4, v1" % PV)
        def pf(sr, so, off):
            g.vm("buffer_load_dwordx4 %s, v%d, s[%d:%d], %s offen offset:%d" % (vr(PV + 4), PV, sr, sr + 3, so, off), "pf")
        if PFM == 'A':
            g.e("s_lshl_b32 s28, s2, 2")
            g.e("s_add_u32 s28, s28, s3")
            g.e("s_lshl_b32 s28, s28, 10")
            for sr in (32, 36, 40, 44):
                pf(sr, "s28", 0)
            NPF = 4
        else:
            g.e("s_lshr_b32 s28, s2, 3")
            g.e("s_lshl_b32 s28, s28, 2")
            g.e("s_add_u32 s28, s28, s3")
            g.e("s_lshl_b32 s29, s28, 11")
            pf(32, "s29", 0)
            pf(32, "s29", 1024)
            g.e("s_mul_i32 s29, s28, 7168")
            g.e("s_bfe_u32 s30, s2, 0x20001")
            g.e("s_mul_i32 s30, s30, 896")
            g.e("s_add_u32 s30, s30, s29")
            for sr in (36, 40):
                pf(sr, "s30", 0)
                pf(sr, "s30", 3584)
            for k in range(4):
                pf(44, "s29", k * 1024)
            g.e("s_add_u32 s29, s29, 4096")
            for k in range(3):
                pf(44, "s29", k * 1024)
            NPF = 13
    M0_ = 48
    M8_ = 64
    NM = 80
    S0 = 96
    PF = 128
    VF = 144
    OA = 160
    for k in range(4):
        g.e("v_mov_b32 v%d, 0x3f803f80" % (S0 + k))
    g.e("v_lshlrev_b32 v2, 4, v1")
    g.lg("ds_write_b128 v2, %s offset:%d" % (vr(S0), OB), "ones")
    g.e("v_lshlrev_b32 v2, 2, v4")
    g.e("v_sub_u32 v2, v3, v2")
    NEG = f32hex(-1e30)
    g.e("v_mov_b32 v%d, %s" % (S0 + 4, NEG))
    for r in range(16):
        jc = (r & 3) + 8 * (r >> 2)
        g.e("v_cmp_gt_i32 vcc, %d, v2" % jc)
        g.nop(2)
        g.e("v_cndmask_b32 v%d, v%d, 0, vcc" % (M0_ + r, S0 + 4))
        g.e("v_cndmask_b32 v%d, 0, v%d, vcc" % (M8_ + r, S0 + 4))
    g.e("v_bfe_u32 v2, v1, 2, 2")
    g.e("v_lshl_add_u32 v2, v4, 2, v2")
    g.e("v_lshlrev_b32 v2, 5, v2")
    g.e("v_and_b32 v5, 3, v1")
    g.e("v_lshl_add_u32 v2, v5, 3, v2")
    g.e("s_lshl_b32 s27, s3, 10")
    g.e("s_add_u32 s27, s27, 0x%x" % VB)
    g.e("v_add_u32 v2, s27, v2")
    g.e("v_lshlrev_b32 v5, 7, v4")
    g.e("v_sub_u32 v5, 0x%x, v5" % (OB + 128))
    g.e("v_bfe_u32 v6, v1, 4, 1")
    g.e("v_cmp_eq_u32 vcc, 1, v6")
    g.nop(2)
    g.e("v_cndmask_b32 v2, v2, v5, vcc")
    g.e("v_mov_b32 v5, 0x400")
    g.e("v_cndmask_b32 v5, v5, 0, vcc")
    g.e("v_mul_lo_u32 v6, v5, s24")
    g.e("v_add_u32 v2, v2, v6")
    VA, VI = 2, 5
    MX = 6
    g.e("v_mov_b32 v%d, %s" % (MX, NEG))
    g.wait_vm("q")
    def smfma(t, dst, c):
        g.e("v_mfma_f32_32x32x16_bf16 %s, %s, %s, %s" % (vr(dst, 16), vr(KF + 4 * t), vr(QF), c))
    for t in range(9):
        L = g.newlabel("p1")
        if t < 8:
            g.e("s_cmp_gt_u32 s24, %d" % t)
            g.e("s_cbranch_scc1 %s" % L)
        g.e("s_waitcnt vmcnt(%d)" % (NPF + 3 + 8 - t))
        c = vr(M0_, 16) if t == 0 else (vr(M8_, 16) if t == 8 else "0")
        dst = S0 + 16 * (t & 1)
        smfma(t, dst, c)
        g.nop(18)
        for r in range(0, 16, 2):
            g.e("v_max3_f32 v%d, v%d, v%d, v%d" % (MX, MX, dst + r, dst + r + 1))
        g.label(L)
    g.vmq = [x for x in g.vmq if x in ("v", "pf")]
    g.e("v_mov_b32 v%d, v%d" % (MX + 1, MX))
    g.nop(2)
    g.e("v_permlane32_swap_b32 v%d, v%d" % (MX, MX + 1))
    g.nop(1)
    g.e("v_max_f32 v%d, v%d, v%d" % (MX, MX, MX + 1))
    for r in range(16):
        g.e("v_sub_f32 v%d, 0, v%d" % (NM + r, MX))
    for r in range(16):
        g.e("v_sub_f32 v%d, v%d, v%d" % (M0_ + r, M0_ + r, MX))
        g.e("v_sub_f32 v%d, v%d, v%d" % (M8_ + r, M8_ + r, MX))
    for r in range(16):
        g.e("v_mov_b32 v%d, 0" % (OA + r))
    g.wait_vm("v")
    g.wait_lg("ones")
    g.e("s_barrier")
    for t in range(9):
        L = g.newlabel("p2")
        if t < 8:
            g.e("s_cmp_gt_u32 s24, %d" % t)
            g.e("s_cbranch_scc1 %s" % L)
        vf = VF + 8 * (t & 1)
        for k in range(4):
            g.lg("ds_read_b64_tr_b16 %s, v%d offset:%d" % (vr(vf + 2 * k, 2), VA, 256 * k), ("vf", t))
        g.e("v_add_u32 v%d, v%d, v%d" % (VA, VA, VI))
        c = vr(M0_, 16) if t == 0 else (vr(M8_, 16) if t == 8 else vr(NM, 16))
        dst = S0 + 16 * (t & 1)
        smfma(t, dst, c)
        g.nop(18)
        for r in range(16):
            g.e("v_exp_f32 v%d, v%d" % (dst + r, dst + r))
        pf = PF + 8 * (t & 1)
        g.nop(1)
        for r in range(8):
            g.e("v_cvt_pk_bf16_f32 v%d, v%d, v%d" % (pf + r, dst + 2 * r, dst + 2 * r + 1))
        g.wait_lg(("vf", t))
        g.nop(2)
        g.e("v_mfma_f32_32x32x16_bf16 %s, %s, %s, %s" % (vr(OA, 16), vr(vf), vr(pf), vr(OA, 16)))
        g.e("v_mfma_f32_32x32x16_bf16 %s, %s, %s, %s" % (vr(OA, 16), vr(vf + 4), vr(pf + 4), vr(OA, 16)))
        g.label(L)
    g.nop(20)
    g.e("v_rcp_f32 v%d, v%d" % (MX, OA + 8))
    g.nop(1)
    for r in range(8):
        g.e("v_mul_f32 v%d, v%d, v%d" % (OA + r, OA + r, MX))
    for r in range(4):
        g.e("v_cvt_pk_bf16_f32 v%d, v%d, v%d" % (PF + r, OA + 2 * r, OA + 2 * r + 1))
    g.e("v_bfe_u32 v7, v3, 4, 1")
    g.e("v_lshlrev_b32 v7, 14, v7")
    g.e("v_and_b32 v6, 15, v3")
    g.e("v_lshl_add_u32 v7, v6, 4, v7")
    g.e("v_lshl_add_u32 v7, v4, 3, v7")
    g.e("s_lshl_b32 s26, s20, 9")
    g.e("s_lshl_b32 s27, s23, 10")
    g.e("s_add_u32 s26, s26, s27")
    g.vm("buffer_store_dwordx2 %s, v7, s[%d:%d], s26 offen" % (vr(PF, 2), SO, SO + 3), "o")
    g.vm("buffer_store_dwordx2 %s, v7, s[%d:%d], s26 offen offset:256" % (vr(PF + 2, 2), SO, SO + 3), "o")
    g.end(name)
    return dict(name=name, grid=512, lds=lds, vgpr=184, agpr=0)


def main():
    g = G()
    ks = []
    ks.append(ln_gemm(g, "k1_qkv_kernel", "qkv"))
    ks.append(attention(g, "k2_attn_kernel"))
    ks.append(gemm_res(g, "k3_wo_kernel", P_WS, WS_ATTN, 1024, 512, P_WO, P_WS, WS_XF, P_WS, WS_H, 8, True))
    ks.append(ln_gemm(g, "k4_ffn_kernel", "ffn"))
    ks.append(gemm_res(g, "k5_w2_kernel", P_WS, WS_HMID, 3584, 1792, P_W2, P_WS, WS_H, P_OUT, 0, 8, False))
    out = []
    for k in ks:
        out.append("; @launch kernel=%s grid=(%d,1,1) block=(256,1,1) lds=%d" % (k["name"], k["grid"], k["lds"]))
    out.append('.amdgcn_target "amdgcn-amd-amdhsa--gfx950"')
    out.append(".text")
    out += g.lines
    out.append('.section .rodata,"a"')
    for k in ks:
        accoff = (k["vgpr"] + 3) // 4 * 4
        assert accoff <= 256
        tot = accoff + k["agpr"]
        assert tot <= 512
        out.append(".p2align 6")
        out.append(".amdhsa_kernel %s" % k["name"])
        out.append("  .amdhsa_next_free_vgpr %d" % tot)
        out.append("  .amdhsa_next_free_sgpr 102")
        out.append("  .amdhsa_accum_offset %d" % accoff)
        out.append("  .amdhsa_group_segment_fixed_size 0")
        out.append("  .amdhsa_kernarg_size 80")
        out.append("  .amdhsa_user_sgpr_count 2")
        out.append("  .amdhsa_user_sgpr_kernarg_segment_ptr 1")
        out.append("  .amdhsa_system_sgpr_workgroup_id_x 1")
        out.append(".end_amdhsa_kernel")
    dst = sys.argv[1] if len(sys.argv) > 1 else "sequential_preLN__sliding_block__glu_gated_swiglu__prompt.s"
    open(dst, "w").write("\n".join(out) + "\n")
    for k in ks:
        print(k)


if __name__ == "__main__":
    main()
```

```python
import sys

MB = 1 << 20
import os
CUT = int(os.environ.get('CUT', '-1'))
EXP = os.environ.get('EXP', '')
TS = int(os.environ.get('TS', '0'))
PRO_RES = int(os.environ.get('PRO_RES', '4'))
PRO_LN = int(os.environ.get('PRO_LN', '4'))
PFM = os.environ.get('PF', 'A')
WS_QKV = 0
WS_ATTN = 6 * MB
WS_H = 8 * MB
WS_HMID = 10 * MB
WS_XF = 18 * MB
LOG2E = 1.4426950408889634
QSCALE = 0.25 * LOG2E

P_X, P_WQKV, P_WO, P_BX, P_W1, P_W3, P_W2, P_OUT, P_DBG, P_WS = [64 + 2 * i for i in range(10)]


def f32hex(x):
    import struct
    return "0x%08x" % struct.unpack("<I", struct.pack("<f", x))[0]


class G:
    def __init__(self):
        self.lines = []
        self.vmq = []
        self.lgq = []
        self.nlabel = 0

    def e(self, s):
        self.lines.append("    " + s)

    def label(self, s):
        self.lines.append(s + ":")

    def newlabel(self, p):
        self.nlabel += 1
        return "L_%s_%d" % (p, self.nlabel)

    def vm(self, s, tag):
        self.e(s)
        self.vmq.append(tag)
        assert len(self.vmq) <= 63, "too many outstanding vmem"

    def lg(self, s, tag):
        self.e(s)
        self.lgq.append(tag)
        assert len(self.lgq) <= 15, "too many outstanding lgkm"

    def _wait(self, q, tag):
        if tag not in q:
            return None, q
        idx = len(q) - 1 - q[::-1].index(tag)
        return len(q) - 1 - idx, q[idx + 1:]

    def wait_vm(self, tag):
        n, self.vmq = self._wait(self.vmq, tag)
        if n is not None:
            self.e("s_waitcnt vmcnt(%d)" % n)

    def wait_lg(self, tag):
        n, self.lgq = self._wait(self.lgq, tag)
        if n is not None:
            self.e("s_waitcnt lgkmcnt(%d)" % n)

    def wait_all(self):
        self.e("s_waitcnt vmcnt(0) lgkmcnt(0)")
        self.vmq = []
        self.lgq = []

    def ts(self, k):
        if not TS or k > 8:
            return
        self.e("s_memtime s[%d:%d]" % (84 + 2 * k, 85 + 2 * k))
        self.e("s_waitcnt lgkmcnt(0)")
        self.lgq = []

    def ts_dump(self, kidx):
        if not TS:
            return
        L = self.newlabel("ts")
        self.e("s_cmp_lg_u32 s3, 0")
        self.e("s_cbranch_scc1 %s" % L)
        self.e("s_memrealtime s[60:61]")
        self.e("s_waitcnt lgkmcnt(0)")
        self.srd(56, P_WS, 24 * MB + kidx * 65536, 65536)
        self.e("s_lshl_b32 s62, s2, 6")
        self.e("v_mov_b32 v0, 0")
        for k in range(9):
            self.e("v_mov_b32 v1, s%d" % (84 + 2 * k))
            self.e("buffer_store_dword v1, v0, s[56:59], s62 offen offset:%d" % (4 * k))
        self.e("v_mov_b32 v1, s60")
        self.e("buffer_store_dword v1, v0, s[56:59], s62 offen offset:36")
        self.label(L)

    def nop(self, n):
        while n > 0:
            k = min(n, 16)
            self.e("s_nop %d" % (k - 1))
            n -= k

    def begin(self, name, nwg):
        self.lines.append(".globl %s" % name)
        self.lines.append(".p2align 8")
        self.lines.append(".type %s,@function" % name)
        self.label(name)
        self.vmq = []
        self.lgq = []
        self.e("s_cmp_ge_u32 s2, %d" % nwg)
        self.e("s_cbranch_scc1 L_end_%s" % name)
        self.e("s_load_dwordx16 s[64:79], s[0:1], 0")
        self.e("s_load_dwordx4 s[80:83], s[0:1], 64")
        self.e("v_and_b32 v1, 63, v0")
        self.e("v_lshrrev_b32 v2, 6, v0")
        self.e("s_nop 0")
        self.e("v_readfirstlane_b32 s3, v2")
        self.e("s_waitcnt lgkmcnt(0)")
        self.ts(0)

    def end(self, name):
        self.label("L_end_%s" % name)
        self.e("s_endpgm")

    def srd(self, d, ptr, off, size):
        if off:
            self.e("s_add_u32 s%d, s%d, 0x%x" % (d, ptr, off))
            self.e("s_addc_u32 s%d, s%d, 0" % (d + 1, ptr + 1))
        else:
            self.e("s_mov_b32 s%d, s%d" % (d, ptr))
            self.e("s_mov_b32 s%d, s%d" % (d + 1, ptr + 1))
        self.e("s_mov_b32 s%d, 0x%x" % (d + 2, size))
        self.e("s_mov_b32 s%d, 0x00020000" % (d + 3))


def vr(b, n=4):
    return "v[%d:%d]" % (b, b + n - 1)


def ar(b, n=4):
    return "a[%d:%d]" % (b, b + n - 1)


def pipeline(g, items, D, stage_of, on_stage_start, issue_reads, do_mfma):
    n = len(items)
    pend = []
    npend = 0
    r = 0
    nin = 1
    for i in range(-D, n):
        j = i + D
        ms, rs = [], []
        if i >= 0:
            g.wait_lg(("it", i))
            ms = do_mfma(i, items[i]) or []
        if j < n:
            if j == 0 or stage_of(items[j]) != stage_of(items[j - 1]):
                assert not pend
                for m in ms:
                    m()
                ms = []
                pend = list(on_stage_start(stage_of(items[j])) or [])
                npend = len(pend)
                r = 0
                nin = sum(1 for it in items if stage_of(it) == stage_of(items[j]))
            rs = issue_reads(j, items[j]) or []
        vs = []
        if j < n:
            r += 1
            want = (r * npend + nin - 1) // nin
            while npend - len(pend) < want:
                vs.append(pend.pop(0))
        rs = rs + vs
        while ms or rs:
            if ms:
                ms.pop(0)()
            if rs:
                rs.pop(0)()


def gemm_res(g, name, a_ptr, a_off, a_rowb, KD, w_ptr, res_ptr, res_off, out_ptr, out_off, nslots, out_fl):
    g.begin(name, 256)
    if CUT == 0:
        g.e("s_endpgm")
    nks = KD // 32
    nst = KD // 128
    ring = nslots < nst
    SA, SW, SR, SO = 4, 8, 12, 16
    RV = 2
    ostep = 512 if out_fl else 32
    g.srd(SA, a_ptr, a_off, 2048 * a_rowb)
    g.srd(SW, w_ptr, 0, KD * 1024)
    g.srd(SR, res_ptr, res_off, 2048 * 1024)
    g.srd(SO, out_ptr, out_off, 2048 * 1024)
    g.e("s_and_b32 s20, s2, 31")
    g.e("s_lshr_b32 s21, s2, 5")
    g.e("s_lshl_b32 s22, s20, 6")
    g.e("s_lshl_b32 s23, s3, 4")
    g.e("s_add_u32 s22, s22, s23")
    g.e("v_and_b32 v3, 15, v1")
    g.e("v_add_u32 v3, s22, v3")
    g.e("v_lshrrev_b32 v4, 4, v1")
    g.e("s_lshl_b32 s27, s20, 2")
    g.e("s_add_u32 s27, s27, s3")
    g.e("s_mul_i32 s28, s27, %d" % (16 * a_rowb))
    g.e("v_lshlrev_b32 v5, 4, v1")
    g.e("v_add_u32 v5, s28, v5")
    g.e("s_lshl_b32 s28, s27, 14")
    g.e("s_lshl_b32 s29, s21, 11")
    g.e("s_add_u32 s28, s28, s29")
    g.e("v_and_b32 v9, 15, v1")
    g.e("v_lshlrev_b32 v9, 4, v9")
    g.e("v_bfe_u32 v10, v1, 5, 1")
    g.e("v_lshl_add_u32 v9, v10, 8, v9")
    g.e("v_bfe_u32 v10, v1, 4, 1")
    g.e("v_lshl_add_u32 v9, v10, 3, v9")
    g.e("v_add_u32 v%d, s28, v9" % RV)
    g.e("s_lshl_b32 s23, s21, 7")
    if not out_fl:
        g.e("v_lshlrev_b32 v6, 10, v3")
        g.e("v_lshl_add_u32 v6, v4, 3, v6")
        g.e("v_add_u32 v6, s23, v6")
    else:
        g.e("v_mov_b32 v6, v%d" % RV)
    g.e("v_lshrrev_b32 v9, 3, v1")
    g.e("v_and_b32 v10, 7, v1")
    g.e("v_bfe_u32 v11, v1, 4, 1")
    g.e("v_lshlrev_b32 v11, 1, v11")
    g.e("v_xor_b32 v10, v10, v11")
    g.e("v_lshlrev_b32 v9, 10, v9")
    g.e("v_lshl_add_u32 v7, v10, 4, v9")
    g.e("v_xor_b32 v10, 4, v10")
    g.e("v_lshl_add_u32 v8, v10, 4, v9")
    g.e("s_lshl_b32 s24, s3, 15")
    g.e("s_add_u32 s24, s24, s23")
    g.e("s_lshl_b32 s25, s3, 12")
    g.e("v_bfe_u32 v9, v1, 2, 2")
    g.e("v_lshl_add_u32 v10, v4, 3, v9")
    g.e("v_lshlrev_b32 v10, 7, v10")
    g.e("v_bfe_u32 v11, v1, 1, 1")
    g.e("v_lshl_add_u32 v10, v11, 4, v10")
    g.e("v_and_b32 v11, 1, v1")
    g.e("v_lshl_add_u32 v10, v11, 3, v10")
    g.e("v_bfe_u32 v11, v1, 3, 1")
    g.e("v_bfe_u32 v12, v1, 4, 1")
    g.e("v_lshl_or_b32 v11, v12, 1, v11")
    g.e("v_lshlrev_b32 v11, 1, v11")
    TA = 12
    for nt in range(4):
        g.e("v_xor_b32 v20, %d, v11" % (2 * nt))
        g.e("v_lshl_add_u32 v%d, v20, 4, v10" % (TA + nt))
        g.e("v_add_u32 v%d, 0x10000, v%d" % (TA + 4 + nt, TA + nt))
    RES = 20
    ACC = 28
    WF = 44
    D = 7
    NR = D + 1

    def stage_loads(s):
        slot = s % nslots
        out = []
        for q in range(4):
            def f(q=q):
                g.e("s_add_u32 m0, s25, 0x%x" % (slot * 16384 + q * 1024))
                g.e("s_add_u32 s26, s24, 0x%x" % ((s * 128 + q * 8) * 1024))
                g.vm("buffer_load_dwordx4 v%d, s[%d:%d], s26 offen lds" % (7 + (q & 1), SW, SW + 3), ("st", s))
            out.append(f)
            def f2(k4=q):
                ks = s * 4 + k4
                g.e("s_mov_b32 s27, 0x%x" % (s * 4096))
                g.vm("buffer_load_dwordx4 %s, v5, s[%d:%d], s27 offen offset:%d" % (ar(ks * 4), SA, SA + 3, k4 * 1024), ("st", s))
            out.append(f2)
        return out

    def issue_stage(s):
        for f in stage_loads(s):
            f()

    P = min(PRO_RES, nslots - 2) if ring else PRO_RES
    npro = min(nst, P)
    issue_stage(0)
    for nt in range(4):
        g.vm("buffer_load_dwordx2 %s, v%d, s[%d:%d], 0 offen offset:%d" % (vr(RES + 2 * nt, 2), RV, SR, SR + 3, nt * 512), "res")
    for s in range(1, npro):
        issue_stage(s)
    if CUT == 1:
        g.e("s_waitcnt vmcnt(0)")
        g.e("s_endpgm")
    g.ts(1)
    tsst = (0, 1, 2, 3) if nst == 4 else (0, 1, 5, 9, 13)

    items = [(ks, nt) for ks in range(nks) for nt in range(4)]

    def on_stage_start(s):
        g.wait_vm(("st", s))
        g.e("s_barrier")
        if s in tsst:
            g.ts(2 + tsst.index(s))
        if s + P < nst:
            return stage_loads(s + P)

    def issue_reads(j, it):
        ks, nt = it
        s = ks // 4
        slot = s % nslots
        off = slot * 16384 + (ks % 4) * 32 * 128
        a = TA + nt
        if off >= 65536:
            off -= 65536
            a += 4
        w = WF + (j % NR) * 4
        return [lambda: g.lg("ds_read_b64_tr_b16 %s, v%d offset:%d" % (vr(w, 2), a, off), ("it", j)),
                lambda: g.lg("ds_read_b64_tr_b16 %s, v%d offset:%d" % (vr(w + 2, 2), a, off + 512), ("it", j))]

    def do_mfma(i, it):
        ks, nt = it
        w = WF + (i % NR) * 4
        acc = vr(ACC + nt * 4)
        return [lambda: g.e("v_mfma_f32_16x16x32_bf16 %s, %s, %s, %s" % (acc, vr(w), ar(ks * 4), "0" if ks == 0 else acc))]

    pipeline(g, items, D, lambda it: it[0] // 4, on_stage_start, issue_reads, do_mfma)
    g.ts(7)
    g.wait_vm("res")
    g.nop(16)
    T = WF
    for nt in range(4):
        a = ACC + nt * 4
        r = RES + 2 * nt
        g.e("v_lshlrev_b32 v%d, 16, v%d" % (T, r))
        g.e("v_and_b32 v%d, 0xffff0000, v%d" % (T + 1, r))
        g.e("v_lshlrev_b32 v%d, 16, v%d" % (T + 2, r + 1))
        g.e("v_and_b32 v%d, 0xffff0000, v%d" % (T + 3, r + 1))
        for k in range(4):
            g.e("v_add_f32 v%d, v%d, v%d" % (a + k, a + k, T + k))
        g.e("v_cvt_pk_bf16_f32 v%d, v%d, v%d" % (a, a, a + 1))
        g.e("v_cvt_pk_bf16_f32 v%d, v%d, v%d" % (a + 1, a + 2, a + 3))
        g.vm("buffer_store_dwordx2 %s, v6, s[%d:%d], 0 offen offset:%d" % (vr(a, 2), SO, SO + 3, nt * ostep), "out")
    g.ts(8)
    g.ts_dump(2 if nst == 4 else 4)
    g.end(name)
    nv = WF + NR * 4
    return dict(name=name, grid=256, lds=nslots * 16384 if ring else nst * 16384, vgpr=nv, agpr=nks * 4)


def ln_gemm(g, name, mode):
    qkv = mode == "qkv"
    g.begin(name, 256)
    NT = 6 if qkv else 14
    NPM = 6 if qkv else 7
    NW0 = NPM - 3
    CSP = (0, 3) if qkv else (0, 4)
    nks = 16
    nst = 8
    nslots = 5
    SLOTB = 28672
    CSB = 5 * SLOTB
    lds = CSB + 1024
    SA, SW, SO, SX = 4, 8, 12, 16
    ool = []
    if qkv:
        g.srd(SA, P_X, 0, 2048 * 1024)
        g.srd(SW, P_WQKV, 0, 512 * 3072)
        g.srd(SO, P_WS, WS_QKV, 6 * MB)
        g.srd(SX, P_WS, WS_XF, 2 * MB)
    else:
        g.srd(SA, P_WS, WS_H, 2048 * 1024)
        g.e("s_cmp_lt_u32 s3, 2")
        g.e("s_cselect_b32 s%d, s%d, s%d" % (SW, P_W1, P_W3))
        g.e("s_cselect_b32 s%d, s%d, s%d" % (SW + 1, P_W1 + 1, P_W3 + 1))
        g.e("s_mov_b32 s%d, 0x%x" % (SW + 2, 512 * 3584))
        g.e("s_mov_b32 s%d, 0x00020000" % (SW + 3))
        g.srd(SO, P_WS, WS_HMID, 2048 * 3584)
    g.e("s_lshr_b32 s22, s2, 3")
    if qkv:
        g.e("s_and_b32 s20, s2, 3")
        g.e("s_lshl_b32 s20, s20, 2")
        g.e("s_and_b32 s23, s22, 3")
        g.e("s_add_u32 s20, s20, s23")
        g.e("s_bfe_u32 s21, s2, 0x10002")
        g.e("s_lshl_b32 s21, s21, 3")
        g.e("s_lshr_b32 s23, s22, 2")
        g.e("s_add_u32 s21, s21, s23")
    else:
        g.e("s_and_b32 s20, s2, 1")
        g.e("s_lshl_b32 s20, s20, 3")
        g.e("s_and_b32 s23, s22, 7")
        g.e("s_add_u32 s20, s20, s23")
        g.e("s_bfe_u32 s21, s2, 0x20001")
        g.e("s_lshl_b32 s21, s21, 2")
        g.e("s_lshr_b32 s23, s22, 3")
        g.e("s_add_u32 s21, s21, s23")
    g.e("s_lshl_b32 s22, s20, 7")
    g.e("s_lshl_b32 s23, s3, 5")
    g.e("s_add_u32 s22, s22, s23")
    g.e("v_and_b32 v3, 15, v1")
    g.e("v_lshrrev_b32 v4, 4, v1")
    g.e("v_bfe_u32 v9, v1, 2, 2")
    ST = 40
    for p in range(NPM):
        g.e("s_add_u32 s%d, s3, %d" % (ST + p, p))
        if p >= NW0:
            g.e("s_cmp_ge_u32 s%d, %d" % (ST + p, NPM))
            g.e("s_cselect_b32 s26, %d, 0" % NPM)
            g.e("s_sub_u32 s%d, s%d, s26" % (ST + p, ST + p))
    if qkv:
        g.e("v_lshrrev_b32 v10, 3, v1")
        g.e("v_and_b32 v11, 7, v1")
        g.e("v_xor_b32 v11, v11, v10")
        g.e("v_lshlrev_b32 v10, 10, v10")
        g.e("v_lshl_add_u32 v5, v11, 4, v10")
        g.e("s_lshl_b32 s30, s22, 10")
        g.e("s_lshl_b32 s31, s3, 12")
        g.e("s_mul_i32 s24, s3, 192")
        g.e("v_add_u32 v10, s24, v1")
        DV = 16
        for q in range(3):
            g.e("v_add_u32 v11, %d, v10" % (q * 64))
            g.e("v_mul_u32_u24 v12, 5462, v11")
            g.e("v_lshrrev_b32 v12, 16, v12")
            g.e("v_mul_u32_u24 v13, 12, v12")
            g.e("v_sub_u32 v13, v11, v13")
            g.e("v_bfe_u32 v14, v12, 3, 1")
            g.e("v_lshlrev_b32 v14, 1, v14")
            g.e("v_xor_b32 v13, v13, v14")
            g.e("v_mul_u32_u24 v14, 3072, v12")
            g.e("v_lshl_add_u32 v%d, v13, 4, v14" % (DV + q))
        g.e("s_mul_i32 s24, s21, 192")
        g.e("s_mul_i32 s25, s3, 3072")
        g.e("v_add_u32 v10, s22, v3")
        g.e("v_lshlrev_b32 v7, 5, v10")
        g.e("v_lshl_add_u32 v7, v4, 3, v7")
        g.e("s_lshl_b32 s26, s22, 10")
        g.e("s_lshl_b32 s27, s21, 10")
        g.e("s_add_u32 s26, s26, s27")
        g.e("v_lshlrev_b32 v8, 4, v1")
        g.e("v_add_u32 v8, s26, v8")
        g.e("v_and_b32 v10, 7, v1")
        g.e("v_xor_b32 v10, v10, v4")
        g.e("v_lshlrev_b32 v11, 7, v3")
        g.e("v_lshl_add_u32 v11, v10, 4, v11")
        g.e("v_add_u32 v19, s31, v11")
        g.e("v_xor_b32 v20, 64, v19")
        XA = 19
        for b in range(1, 3):
            g.e("v_add_u32 v%d, 0x%x, v19" % (XA + 2 * b, b * 2 * SLOTB))
            g.e("v_add_u32 v%d, 0x%x, v20" % (XA + 2 * b + 1, b * 2 * SLOTB))
        g.e("v_lshl_add_u32 v10, v4, 3, v9")
        g.e("v_mul_u32_u24 v10, 192, v10")
        g.e("v_bfe_u32 v11, v1, 1, 1")
        g.e("v_lshl_add_u32 v10, v11, 4, v10")
        g.e("v_and_b32 v11, 1, v1")
        g.e("v_lshl_add_u32 v10, v11, 3, v10")
        g.e("v_add_u32 v10, 0x4000, v10")
        g.e("v_bfe_u32 v11, v1, 4, 1")
        g.e("v_lshlrev_b32 v11, 5, v11")
        TA = 25
        NA = 5
        ai = lambda p: (p & 1) if p < NW0 else p - 1
        for k, p in enumerate((0, 1, 3, 4, 5)):
            g.e("s_sub_u32 s26, s%d, %d" % (ST + p, p))
            g.e("s_lshl_b32 s26, s26, 5")
            g.e("v_add_u32 v12, s26, v10")
            g.e("s_and_b32 s27, s%d, 1" % (ST + p))
            g.e("s_lshl_b32 s27, s27, 1")
            g.e("s_sub_u32 s27, 1, s27")
            g.e("v_mul_lo_u32 v13, s27, v11")
            g.e("v_add_u32 v%d, v12, v13" % (TA + k))
        for b in range(1, 3):
            for k in range(NA):
                g.e("v_add_u32 v%d, 0x%x, v%d" % (TA + NA * b + k, b * 2 * SLOTB, TA + k))
        nextv = TA + 3 * NA
    else:
        g.e("s_lshl_b32 s26, s22, 10")
        g.e("v_lshlrev_b32 v5, 4, v1")
        g.e("v_add_u32 v5, s26, v5")
        g.e("v_add_u32 v6, 0x4000, v5")
        g.e("s_lshr_b32 s26, s22, 4")
        g.e("s_mul_i32 s26, s26, 57344")
        g.e("s_mul_i32 s27, s21, 3584")
        g.e("s_add_u32 s26, s26, s27")
        g.e("v_lshlrev_b32 v7, 4, v3")
        g.e("v_bfe_u32 v10, v1, 5, 1")
        g.e("v_lshl_add_u32 v7, v10, 8, v7")
        g.e("v_bfe_u32 v10, v1, 4, 1")
        g.e("v_lshl_add_u32 v7, v10, 3, v7")
        g.e("v_add_u32 v7, s26, v7")
        g.e("s_mul_i32 s23, s21, 224")
        g.e("s_and_b32 s24, s3, 1")
        g.e("s_mul_i32 s24, s24, 448")
        g.e("v_add_u32 v10, s24, v1")
        DV = 16
        for q in range(7):
            g.e("v_add_u32 v11, %d, v10" % (q * 64))
            g.e("v_mul_u32_u24 v12, 4682, v11")
            g.e("v_lshrrev_b32 v12, 16, v12")
            g.e("v_mul_u32_u24 v13, 14, v12")
            g.e("v_sub_u32 v13, v11, v13")
            g.e("v_and_b32 v14, 0x33, v12")
            g.e("v_bfe_u32 v15, v12, 2, 1")
            g.e("v_lshl_or_b32 v14, v15, 3, v14")
            g.e("v_bfe_u32 v15, v12, 3, 1")
            g.e("v_lshl_or_b32 v14, v15, 2, v14")
            g.e("v_mul_u32_u24 v14, 3584, v14")
            g.e("v_lshl_add_u32 v%d, v13, 4, v14" % (DV + q))
        g.e("s_mov_b32 s24, s23")
        g.e("s_mul_i32 s25, s3, 7168")
        g.e("v_bfe_u32 v10, v1, 5, 1")
        g.e("v_lshl_add_u32 v10, v10, 4, v9")
        g.e("v_bfe_u32 v11, v1, 4, 1")
        g.e("v_lshl_add_u32 v10, v11, 2, v10")
        g.e("v_mul_u32_u24 v10, 224, v10")
        g.e("v_and_b32 v11, 3, v1")
        g.e("v_lshl_add_u32 v10, v11, 3, v10")
        TA = 23
        NA = 4
        ai = lambda p: 0 if p < NW0 else p - 3
        for k, p in enumerate((0, 4, 5, 6)):
            g.e("s_lshl_b32 s26, s%d, 5" % (ST + p))
            g.e("v_add_u32 v%d, s26, v10" % (TA + k))
        for b in range(1, 3):
            for k in range(NA):
                g.e("v_add_u32 v%d, 0x%x, v%d" % (TA + NA * b + k, b * 2 * SLOTB, TA + k))
        nextv = TA + 3 * NA
    nextv = (nextv + 3) // 4 * 4
    ONES = nextv
    for k in range(4):
        g.e("v_mov_b32 v%d, 0x3f803f80" % (ONES + k))
    SUM = ONES + 4
    GRAM = SUM + 8
    CSA = GRAM + 8
    WF = CSA + 16
    D = 6 if qkv else 7
    NR = 8
    nextv = WF + NR * 4
    AX = 0
    ACCV = nextv
    nextv += 2 * NT * 4
    acc = lambda tt, ct: vr(ACCV + (tt * NT + ct) * 4)
    if qkv:
        XF = nextv
        nextv += 16
        XS = nextv
        nextv += 8
        xfr = lambda ks, tt: vr(XF + ((ks & 1) * 2 + tt) * 4)
    else:
        xfr = lambda ks, tt: ar(AX + (tt * 16 + ks) * 4)

    def stage_loads(s):
        wl, al = [], []
        slot = s % nslots
        if qkv:
            for q in range(3):
                def f(q=q):
                    g.e("s_add_u32 m0, s25, 0x%x" % (slot * SLOTB + 16384 + q * 1024))
                    g.e("s_add_u32 s26, s24, 0x%x" % (s * 64 * 3072))
                    g.vm("buffer_load_dwordx4 v%d, s[%d:%d], s26 offen lds" % (DV + q, SW, SW + 3), ("st", s))
                wl.append(f)
            for q in range(4):
                def f(q=q):
                    g.e("s_add_u32 m0, s31, 0x%x" % (slot * SLOTB + q * 1024))
                    g.e("s_add_u32 s26, s30, 0x%x" % (q * 8192 + s * 128))
                    g.vm("buffer_load_dwordx4 v5, s[%d:%d], s26 offen lds" % (SA, SA + 3), ("st", s))
                al.append(f)
        else:
            for q in range(7):
                def f(q=q):
                    g.e("s_add_u32 m0, s25, 0x%x" % (slot * SLOTB + q * 1024))
                    g.e("s_add_u32 s26, s24, 0x%x" % (s * 64 * 3584))
                    g.vm("buffer_load_dwordx4 v%d, s[%d:%d], s26 offen lds" % (DV + q, SW, SW + 3), ("st", s))
                wl.append(f)
            for k2 in range(2):
                for tt in range(2):
                    def f(k2=k2, tt=tt):
                        ks = s * 2 + k2
                        g.e("s_mov_b32 s27, 0x%x" % (s * 2048))
                        g.vm("buffer_load_dwordx4 %s, v%d, s[%d:%d], s27 offen offset:%d" % (
                            ar(AX + (tt * 16 + ks) * 4), 5 + tt, SA, SA + 3, k2 * 1024), ("st", s))
                    al.append(f)
        out = []
        while wl or al:
            if wl:
                out.append(wl.pop(0))
            if al and (len(al) >= len(wl) or not wl or len(out) % 2 == 0):
                out.append(al.pop(0))
        return out

    def issue_stage(s):
        for f in stage_loads(s):
            f()

    P = min(PRO_LN, nslots - 2)
    for s in range(P):
        issue_stage(s)
    g.ts(1)

    items = [(ks, ct) for ks in range(nks) for ct in range(NT)]

    def on_stage_start(s):
        g.wait_vm(("st", s))
        g.e("s_barrier")
        if s in (0, 1, 3, 5, 7):
            g.ts(2 + (0, 1, 3, 5, 7).index(s))
        if s + P < nst:
            return stage_loads(s + P)

    def issue_reads(j, it):
        ks, ct = it
        w = WF + (j % NR) * 4
        s = ks // 2
        slot = s % nslots
        b, so = slot >> 1, (slot & 1) * SLOTB
        out = []
        if qkv:
            if ct == 0:
                for tt in range(2):
                    out.append(lambda tt=tt: g.lg("ds_read_b128 %s, v%d offset:%d" % (xfr(ks, tt), XA + 2 * b + (ks & 1), so + tt * 2048), ("it", j)))
            a = TA + NA * b + ai(ct)
            off = so + (ks % 2) * 32 * 192 + ct * 32
            off2 = off + 4 * 192
        else:
            mat, p = ct // 7, ct % 7
            a = TA + NA * b + ai(p)
            off = so + mat * 14336 + (ks % 2) * 32 * 224 + (p * 32 if p < NW0 else 0)
            off2 = off + 8 * 224
        out.append(lambda: g.lg("ds_read_b64_tr_b16 %s, v%d offset:%d" % (vr(w, 2), a, off), ("it", j)))
        out.append(lambda: g.lg("ds_read_b64_tr_b16 %s, v%d offset:%d" % (vr(w + 2, 2), a, off2), ("it", j)))
        return out

    def do_mfma(i, it):
        ks, ct = it
        w = WF + (i % NR) * 4
        out = []
        def mf(d, a, b):
            out.append(lambda: g.e("v_mfma_f32_16x16x32_bf16 %s, %s, %s, %s" % (d, a, b, "0" if ks == 0 else d)))
        for tt in range(2):
            mf(acc(tt, ct), vr(w), xfr(ks, tt))
        mat, p = ct // NPM, ct % NPM
        if p in CSP:
            mf(vr(CSA + (mat * 2 + CSP.index(p)) * 4), vr(w), vr(ONES))
        if ct in (1, 2):
            tt = ct - 1
            x = xfr(ks, tt)
            mf(vr(SUM + tt * 4), vr(ONES), x)
            mf(vr(GRAM + tt * 4), x, x)
        if qkv and ct == 4:
            def f():
                L = g.newlabel("xs")
                g.e("s_cmp_eq_u32 s21, %d" % ks)
                g.e("s_cbranch_scc1 %s" % L)
                g.label(L + "_r")
                ool.append((L, ks))
            out.append(f)
        return out

    pipeline(g, items, D, lambda it: it[0] // 2, on_stage_start, issue_reads, do_mfma)
    if qkv:
        g.vm("buffer_store_dwordx4 %s, v8, s[%d:%d], 0 offen" % (vr(XS), SX, SX + 3), "out")
        g.e("v_add_u32 v8, 0x4000, v8")
        g.vm("buffer_store_dwordx4 %s, v8, s[%d:%d], 0 offen" % (vr(XS + 4), SX, SX + 3), "out")
    g.nop(16)
    g.ts(7)
    T = WF
    g.e("v_lshlrev_b32 v%d, 4, v4" % T)
    g.e("v_add_u32 v%d, 0x%x, v%d" % (T + 1, CSB, T))
    for k in range(2):
        g.e("s_lshl_b32 s27, s%d, 6" % (ST + CSP[k]))
        g.e("v_add_u32 v%d, s27, v%d" % (T + 2 + k, T + 1))
    g.e("s_mov_b32 s28, 0x00010001")
    g.e("s_mov_b32 s29, 0x00010001")
    g.e("s_mov_b64 exec, s[28:29]")
    for mat in range(NT // NPM):
        for k in range(2):
            g.lg("ds_write_b128 v%d, %s offset:%d" % (T + 2 + k, vr(CSA + (mat * 2 + k) * 4), mat * NPM * 64), "csw")
    g.e("s_mov_b64 exec, -1")
    for r in range(4):
        m = 0
        for gg in range(4):
            m |= 1 << (20 * gg + r)
        g.e("s_mov_b32 s%d, 0x%x" % (30 + 2 * r, m & 0xffffffff))
        g.e("s_mov_b32 s%d, 0x%x" % (31 + 2 * r, m >> 32))
    for tt in range(2):
        d = T + 4
        g.e("v_mov_b32 v%d, 0" % d)
        for r in range(4):
            g.e("v_cndmask_b32_e64 v%d, v%d, v%d, s[%d:%d]" % (d, d, GRAM + tt * 4 + r, 30 + 2 * r, 31 + 2 * r))
        g.e("v_mov_b32 v%d, v%d" % (d + 1, d))
        g.nop(2)
        g.e("v_permlane16_swap_b32 v%d, v%d" % (d, d + 1))
        g.nop(1)
        g.e("v_add_f32 v%d, v%d, v%d" % (d, d, d + 1))
        g.e("v_mov_b32 v%d, v%d" % (d + 1, d))
        g.nop(2)
        g.e("v_permlane32_swap_b32 v%d, v%d" % (d, d + 1))
        g.nop(1)
        g.e("v_add_f32 v%d, v%d, v%d" % (d, d, d + 1))
        m = SUM + tt * 4
        g.e("v_mul_f32 v%d, %s, v%d" % (m, f32hex(1.0 / 512), m))
        g.e("v_mul_f32 v%d, %s, v%d" % (d, f32hex(1.0 / 512), d))
        g.e("v_fma_f32 v%d, -v%d, v%d, v%d" % (d, m, m, d))
        g.e("v_max_f32 v%d, 0, v%d" % (d, d))
        g.e("v_add_f32 v%d, %s, v%d" % (m + 3, f32hex(1e-5), d))
        g.e("v_rsq_f32 v%d, v%d" % (m + 1, m + 3))
        g.nop(1)
        g.e("v_mul_f32 v%d, %s, v%d" % (m + 2, f32hex(QSCALE if qkv else -LOG2E), m + 1))
    g.wait_lg("csw")
    g.e("s_barrier")
    CS = T + 8
    AD = T + 6
    def pk(op, d, a, b, c=None, sel=None, neg=False):
        ops = [a, b] + ([c] if c is not None else [])
        sel = sel or {}
        lo = [sel.get(i, (0, 1))[0] for i in range(len(ops))]
        hi = [sel.get(i, (0, 1))[1] for i in range(len(ops))]
        t = "%s %s, %s" % (op, vr(d, 2), ", ".join(vr(o, 2) for o in ops))
        t += " op_sel:[%s] op_sel_hi:[%s]" % (",".join(map(str, lo)), ",".join(map(str, hi)))
        if neg:
            z = ["1"] + ["0"] * (len(ops) - 1)
            t += " neg_lo:[%s] neg_hi:[%s]" % (",".join(z), ",".join(z))
        g.e(t)

    def cs_read(p):
        bb = CS + (p & 1) * 8
        g.e("s_lshl_b32 s27, s%d, 6" % (ST + p))
        g.e("v_add_u32 v%d, s27, v%d" % (AD + (p & 1), T + 1))
        g.lg("ds_read_b128 %s, v%d" % (vr(bb), AD + (p & 1)), ("cs", p))
        if not qkv:
            g.lg("ds_read_b128 %s, v%d offset:448" % (vr(bb + 4), AD + (p & 1)), ("cs", p))
    cs_read(0)
    if qkv:
        for p in range(NPM):
            if p + 1 < NPM:
                cs_read(p + 1)
            g.wait_lg(("cs", p))
            bb = CS + (p & 1) * 8
            g.e("s_mul_i32 s26, s21, 6")
            g.e("s_add_u32 s26, s26, s%d" % (ST + p))
            g.e("s_cmp_lt_u32 s26, 32")
            g.e("s_cselect_b32 s28, -1, 0")
            g.e("s_mov_b32 s29, s28")
            g.e("s_lshl_b32 s26, s26, 16")
            for tt in range(2):
                a = ACCV + (tt * NT + p) * 4
                m = SUM + tt * 4
                rs = T + 4
                g.e("v_cndmask_b32_e64 v%d, v%d, v%d, s[28:29]" % (rs, m + 1, m + 2))
                pk("v_pk_fma_f32", a, m, bb, a, sel={0: (0, 0)}, neg=True)
                pk("v_pk_fma_f32", a + 2, m, bb + 2, a + 2, sel={0: (0, 0)}, neg=True)
                pk("v_pk_mul_f32", a, a, rs, sel={1: (0, 0)})
                pk("v_pk_mul_f32", a + 2, a + 2, rs, sel={1: (0, 0)})
                g.e("v_cvt_pk_bf16_f32 v%d, v%d, v%d" % (a, a, a + 1))
                g.e("v_cvt_pk_bf16_f32 v%d, v%d, v%d" % (a + 1, a + 2, a + 3))
                g.vm("buffer_store_dwordx2 %s, v7, s[%d:%d], s26 offen offset:%d" % (vr(a, 2), SO, SO + 3, tt * 512), "out")
    else:
        g.e("v_add_u32 v8, 0x%x, v7" % 57344)
        E = CS + 16
        for p in range(NPM):
            if p + 1 < NPM:
                cs_read(p + 1)
            g.wait_lg(("cs", p))
            bb = CS + (p & 1) * 8
            g.e("s_lshl_b32 s26, s%d, 9" % (ST + p))
            GV = [ACCV + (tt * NT + p) * 4 for tt in range(2)]
            UV = [ACCV + (tt * NT + 7 + p) * 4 for tt in range(2)]
            M = [SUM + tt * 4 for tt in range(2)]
            EV = [E + tt * 4 for tt in range(2)]
            for tt in range(2):
                for h in (0, 2):
                    pk("v_pk_fma_f32", GV[tt] + h, M[tt], bb + h, GV[tt] + h, sel={0: (0, 0)}, neg=True)
                for h in (0, 2):
                    pk("v_pk_mul_f32", EV[tt] + h, GV[tt] + h, M[tt] + 2, sel={1: (0, 0)})
            for tt in range(2):
                for k in range(4):
                    g.e("v_exp_f32 v%d, v%d" % (EV[tt] + k, EV[tt] + k))
            for tt in range(2):
                for h in (0, 2):
                    pk("v_pk_fma_f32", UV[tt] + h, M[tt], bb + 4 + h, UV[tt] + h, sel={0: (0, 0)}, neg=True)
                for h in (0, 2):
                    pk("v_pk_mul_f32", UV[tt] + h, UV[tt] + h, GV[tt] + h)
            for tt in range(2):
                for h in (0, 2):
                    pk("v_pk_fma_f32", EV[tt] + h, EV[tt] + h, M[tt] + 2, M[tt] + 2, sel={1: (1, 1), 2: (1, 1)})
            for tt in range(2):
                for k in range(4):
                    g.e("v_rcp_f32 v%d, v%d" % (EV[tt] + k, EV[tt] + k))
            g.nop(1)
            for tt in range(2):
                for h in (0, 2):
                    pk("v_pk_mul_f32", UV[tt] + h, UV[tt] + h, EV[tt] + h)
                g.e("v_cvt_pk_bf16_f32 v%d, v%d, v%d" % (UV[tt], UV[tt], UV[tt] + 1))
                g.e("v_cvt_pk_bf16_f32 v%d, v%d, v%d" % (UV[tt] + 1, UV[tt] + 2, UV[tt] + 3))
                g.vm("buffer_store_dwordx2 %s, v%d, s[%d:%d], s26 offen" % (vr(UV[tt], 2), 7 + tt, SO, SO + 3), "out")
    g.ts(8)
    g.ts_dump(0 if qkv else 3)
    g.end(name)
    for L, ks in ool:
        g.label(L)
        for k in range(8):
            g.e("v_mov_b32 v%d, v%d" % (XS + k, XF + (ks & 1) * 8 + k))
        g.e("s_branch %s_r" % L)
    return dict(name=name, grid=256, lds=lds, vgpr=nextv, agpr=0 if qkv else 128)


def attention(g, name):
    g.begin(name, 512)
    SQ, SO = 4, 8
    g.srd(SQ, P_WS, WS_QKV, 6 * MB)
    g.srd(SO, P_WS, WS_ATTN, 2 * MB)
    VB = 0
    OB = 12288
    lds = OB + 1024
    g.e("s_and_b32 s20, s2, 31")
    g.e("s_lshr_b32 s21, s2, 5")
    g.e("s_lshl_b32 s22, s21, 7")
    g.e("s_lshl_b32 s23, s3, 5")
    g.e("s_add_u32 s23, s22, s23")
    g.e("s_lshr_b32 s24, s23, 5")
    g.e("s_sub_i32 s24, 8, s24")
    g.e("s_max_i32 s24, s24, 0")
    g.e("v_and_b32 v3, 31, v1")
    g.e("v_lshrrev_b32 v4, 5, v1")
    g.e("s_lshl_b32 s25, s20, 16")
    g.e("v_add_u32 v5, s23, v3")
    g.e("v_lshlrev_b32 v5, 5, v5")
    g.e("v_lshl_add_u32 v5, v4, 4, v5")
    g.e("v_add_u32 v5, s25, v5")
    QF = 8
    KF = 12
    g.vm("buffer_load_dwordx4 %s, v5, s[%d:%d], 0 offen" % (vr(QF), SQ, SQ + 3), "q")
    g.e("v_add_u32 v6, 0x%x, v5" % (2 * MB - 8192))
    for t in range(9):
        if t == 4 or t == 8:
            g.e("v_add_u32 v6, 0x1000, v6")
        g.vm("buffer_load_dwordx4 %s, v6, s[%d:%d], 0 offen offset:%d" % (vr(KF + 4 * t), SQ, SQ + 3, (t % 4) * 1024), ("k", t))
    g.e("s_lshl_b32 s26, s22, 5")
    g.e("s_add_u32 s26, s26, s25")
    g.e("s_add_u32 s26, s26, 0x%x" % (4 * MB - 8192))
    g.e("s_mul_i32 s27, s3, 3072")
    g.e("s_add_u32 s26, s26, s27")
    g.e("v_lshlrev_b32 v7, 4, v1")
    g.e("v_add_u32 v7, s26, v7")
    for q in range(3):
        g.e("s_add_u32 m0, s27, 0x%x" % (VB + q * 1024))
        if q:
            g.e("v_add_u32 v7, 0x400, v7")
        else:
            g.e("s_nop 0")
        g.vm("buffer_load_dwordx4 v7, s[%d:%d], 0 offen lds" % (SQ, SQ + 3), "v")
    NPF = 0
    def do_pf():
        g.srd(32, P_WO, 0, 512 * 1024)
        g.srd(36, P_W1, 0, 512 * 3584)
        g.srd(40, P_W3, 0, 512 * 3584)
        g.srd(44, P_W2, 0, 1792 * 1024)
        PV = 176
        g.e("v_lshlrev_b32 v%d, 4, v1" % PV)
        g.e("s_lshl_b32 s28, s2, 2")
        g.e("s_add_u32 s28, s28, s3")
        g.e("s_lshl_b32 s28, s28, 10")
        for sr in (32, 36, 40, 44):
            g.vm("buffer_load_dwordx4 %s, v%d, s[%d:%d], s28 offen" % (vr(PV + 4), PV, sr, sr + 3), "pf")
    if PFM == 'A':
        do_pf()
        NPF = 4
    M0_ = 48
    M8_ = 64
    NM = 80
    S0 = 96
    PF = 128
    VF = 144
    OA = 160
    for k in range(4):
        g.e("v_mov_b32 v%d, 0x3f803f80" % (S0 + k))
    g.e("v_lshlrev_b32 v2, 4, v1")
    g.lg("ds_write_b128 v2, %s offset:%d" % (vr(S0), OB), "ones")
    g.e("v_lshlrev_b32 v2, 2, v4")
    g.e("v_sub_u32 v2, v3, v2")
    NEG = f32hex(-1e30)
    g.e("v_mov_b32 v%d, %s" % (S0 + 4, NEG))
    for r in range(16):
        jc = (r & 3) + 8 * (r >> 2)
        g.e("v_cmp_gt_i32 vcc, %d, v2" % jc)
        g.nop(2)
        g.e("v_cndmask_b32 v%d, v%d, 0, vcc" % (M0_ + r, S0 + 4))
        g.e("v_cndmask_b32 v%d, 0, v%d, vcc" % (M8_ + r, S0 + 4))
    g.e("v_bfe_u32 v2, v1, 2, 2")
    g.e("v_lshl_add_u32 v2, v4, 2, v2")
    g.e("v_lshlrev_b32 v2, 5, v2")
    g.e("v_and_b32 v5, 3, v1")
    g.e("v_lshl_add_u32 v2, v5, 3, v2")
    g.e("s_lshl_b32 s27, s3, 10")
    g.e("s_add_u32 s27, s27, 0x%x" % VB)
    g.e("v_add_u32 v2, s27, v2")
    g.e("v_lshlrev_b32 v5, 7, v4")
    g.e("v_sub_u32 v5, 0x%x, v5" % (OB + 128))
    g.e("v_bfe_u32 v6, v1, 4, 1")
    g.e("v_cmp_eq_u32 vcc, 1, v6")
    g.nop(2)
    g.e("v_cndmask_b32 v2, v2, v5, vcc")
    g.e("v_mov_b32 v5, 0x400")
    g.e("v_cndmask_b32 v5, v5, 0, vcc")
    g.e("v_mul_lo_u32 v6, v5, s24")
    g.e("v_add_u32 v2, v2, v6")
    VA, VI = 2, 5
    MX = 6
    g.e("v_mov_b32 v%d, %s" % (MX, NEG))
    g.wait_vm("q")
    def smfma(t, dst, c):
        g.e("v_mfma_f32_32x32x16_bf16 %s, %s, %s, %s" % (vr(dst, 16), vr(KF + 4 * t), vr(QF), c))
    for t in range(9):
        L = g.newlabel("p1")
        if t < 8:
            g.e("s_cmp_gt_u32 s24, %d" % t)
            g.e("s_cbranch_scc1 %s" % L)
        g.e("s_waitcnt vmcnt(%d)" % (NPF + 3 + 8 - t))
        c = vr(M0_, 16) if t == 0 else (vr(M8_, 16) if t == 8 else "0")
        dst = S0 + 16 * (t & 1)
        smfma(t, dst, c)
        g.nop(18)
        for r in range(0, 16, 2):
            g.e("v_max3_f32 v%d, v%d, v%d, v%d" % (MX, MX, dst + r, dst + r + 1))
        g.label(L)
    g.vmq = [x for x in g.vmq if x in ("v", "pf")]
    if PFM == 'C':
        do_pf()
    g.e("v_mov_b32 v%d, v%d" % (MX + 1, MX))
    g.nop(2)
    g.e("v_permlane32_swap_b32 v%d, v%d" % (MX, MX + 1))
    g.nop(1)
    g.e("v_max_f32 v%d, v%d, v%d" % (MX, MX, MX + 1))
    for r in range(16):
        g.e("v_sub_f32 v%d, 0, v%d" % (NM + r, MX))
    for r in range(16):
        g.e("v_sub_f32 v%d, v%d, v%d" % (M0_ + r, M0_ + r, MX))
        g.e("v_sub_f32 v%d, v%d, v%d" % (M8_ + r, M8_ + r, MX))
    for r in range(16):
        g.e("v_mov_b32 v%d, 0" % (OA + r))
    g.wait_vm("v")
    g.wait_lg("ones")
    g.e("s_barrier")
    if PFM == 'D':
        do_pf()
    for t in range(9):
        L = g.newlabel("p2")
        if t < 8:
            g.e("s_cmp_gt_u32 s24, %d" % t)
            g.e("s_cbranch_scc1 %s" % L)
        vf = VF + 8 * (t & 1)
        for k in range(4):
            g.lg("ds_read_b64_tr_b16 %s, v%d offset:%d" % (vr(vf + 2 * k, 2), VA, 256 * k), ("vf", t))
        g.e("v_add_u32 v%d, v%d, v%d" % (VA, VA, VI))
        c = vr(M0_, 16) if t == 0 else (vr(M8_, 16) if t == 8 else vr(NM, 16))
        dst = S0 + 16 * (t & 1)
        smfma(t, dst, c)
        g.nop(18)
        for r in range(16):
            g.e("v_exp_f32 v%d, v%d" % (dst + r, dst + r))
        pf = PF + 8 * (t & 1)
        g.nop(1)
        for r in range(8):
            g.e("v_cvt_pk_bf16_f32 v%d, v%d, v%d" % (pf + r, dst + 2 * r, dst + 2 * r + 1))
        g.wait_lg(("vf", t))
        g.nop(2)
        g.e("v_mfma_f32_32x32x16_bf16 %s, %s, %s, %s" % (vr(OA, 16), vr(vf), vr(pf), vr(OA, 16)))
        g.e("v_mfma_f32_32x32x16_bf16 %s, %s, %s, %s" % (vr(OA, 16), vr(vf + 4), vr(pf + 4), vr(OA, 16)))
        g.label(L)
    g.nop(20)
    g.e("v_rcp_f32 v%d, v%d" % (MX, OA + 8))
    g.nop(1)
    for r in range(8):
        g.e("v_mul_f32 v%d, v%d, v%d" % (OA + r, OA + r, MX))
    for r in range(4):
        g.e("v_cvt_pk_bf16_f32 v%d, v%d, v%d" % (PF + r, OA + 2 * r, OA + 2 * r + 1))
    g.e("v_bfe_u32 v7, v3, 4, 1")
    g.e("v_lshlrev_b32 v7, 14, v7")
    g.e("v_and_b32 v6, 15, v3")
    g.e("v_lshl_add_u32 v7, v6, 4, v7")
    g.e("v_lshl_add_u32 v7, v4, 3, v7")
    g.e("s_lshl_b32 s26, s20, 9")
    g.e("s_lshl_b32 s27, s23, 10")
    g.e("s_add_u32 s26, s26, s27")
    g.vm("buffer_store_dwordx2 %s, v7, s[%d:%d], s26 offen" % (vr(PF, 2), SO, SO + 3), "o")
    g.vm("buffer_store_dwordx2 %s, v7, s[%d:%d], s26 offen offset:256" % (vr(PF + 2, 2), SO, SO + 3), "o")
    g.end(name)
    return dict(name=name, grid=512, lds=lds, vgpr=184, agpr=0)


def main():
    g = G()
    ks = []
    ks.append(ln_gemm(g, "k1_qkv_kernel", "qkv"))
    ks.append(attention(g, "k2_attn_kernel"))
    ks.append(gemm_res(g, "k3_wo_kernel", P_WS, WS_ATTN, 1024, 512, P_WO, P_WS, WS_XF, P_WS, WS_H, 8, True))
    ks.append(ln_gemm(g, "k4_ffn_kernel", "ffn"))
    ks.append(gemm_res(g, "k5_w2_kernel", P_WS, WS_HMID, 3584, 1792, P_W2, P_WS, WS_H, P_OUT, 0, 8, False))
    out = []
    for k in ks:
        out.append("; @launch kernel=%s grid=(%d,1,1) block=(256,1,1) lds=%d" % (k["name"], k["grid"], k["lds"]))
    out.append('.amdgcn_target "amdgcn-amd-amdhsa--gfx950"')
    out.append(".text")
    out += g.lines
    out.append('.section .rodata,"a"')
    for k in ks:
        accoff = (k["vgpr"] + 3) // 4 * 4
        assert accoff <= 256
        tot = accoff + k["agpr"]
        assert tot <= 512
        out.append(".p2align 6")
        out.append(".amdhsa_kernel %s" % k["name"])
        out.append("  .amdhsa_next_free_vgpr %d" % tot)
        out.append("  .amdhsa_next_free_sgpr 102")
        out.append("  .amdhsa_accum_offset %d" % accoff)
        out.append("  .amdhsa_group_segment_fixed_size 0")
        out.append("  .amdhsa_kernarg_size 80")
        out.append("  .amdhsa_user_sgpr_count 2")
        out.append("  .amdhsa_user_sgpr_kernarg_segment_ptr 1")
        out.append("  .amdhsa_system_sgpr_workgroup_id_x 1")
        out.append(".end_amdhsa_kernel")
    dst = sys.argv[1] if len(sys.argv) > 1 else "sequential_preLN__sliding_block__glu_gated_swiglu__prompt.s"
    open(dst, "w").write("\n".join(out) + "\n")
    for k in ks:
        print(k)


if __name__ == "__main__":
    main()
```

```python
import sys

MB = 1 << 20
import os
CUT = int(os.environ.get('CUT', '-1'))
EXP = os.environ.get('EXP', '')
TS = int(os.environ.get('TS', '0'))
PRO_RES = int(os.environ.get('PRO_RES', '4'))
PRO_LN = int(os.environ.get('PRO_LN', '4'))
PFM = os.environ.get('PF', 'C')
CPF = int(os.environ.get('CPF', '0'))
WS_QKV = 0
WS_ATTN = 6 * MB
WS_H = 8 * MB
WS_HMID = 10 * MB
WS_XF = 18 * MB
LOG2E = 1.4426950408889634
QSCALE = 0.25 * LOG2E

P_X, P_WQKV, P_WO, P_BX, P_W1, P_W3, P_W2, P_OUT, P_DBG, P_WS = [64 + 2 * i for i in range(10)]


def f32hex(x):
    import struct
    return "0x%08x" % struct.unpack("<I", struct.pack("<f", x))[0]


class G:
    def __init__(self):
        self.lines = []
        self.vmq = []
        self.lgq = []
        self.nlabel = 0

    def e(self, s):
        self.lines.append("    " + s)

    def label(self, s):
        self.lines.append(s + ":")

    def newlabel(self, p):
        self.nlabel += 1
        return "L_%s_%d" % (p, self.nlabel)

    def vm(self, s, tag):
        self.e(s)
        self.vmq.append(tag)
        assert len(self.vmq) <= 63, "too many outstanding vmem"

    def lg(self, s, tag):
        self.e(s)
        self.lgq.append(tag)
        assert len(self.lgq) <= 15, "too many outstanding lgkm"

    def _wait(self, q, tag):
        if tag not in q:
            return None, q
        idx = len(q) - 1 - q[::-1].index(tag)
        return len(q) - 1 - idx, q[idx + 1:]

    def wait_vm(self, tag):
        n, self.vmq = self._wait(self.vmq, tag)
        if n is not None:
            self.e("s_waitcnt vmcnt(%d)" % n)

    def wait_lg(self, tag):
        n, self.lgq = self._wait(self.lgq, tag)
        if n is not None:
            self.e("s_waitcnt lgkmcnt(%d)" % n)

    def wait_all(self):
        self.e("s_waitcnt vmcnt(0) lgkmcnt(0)")
        self.vmq = []
        self.lgq = []

    def ts(self, k):
        if not TS or k > 8:
            return
        self.e("s_memtime s[%d:%d]" % (84 + 2 * k, 85 + 2 * k))
        self.e("s_waitcnt lgkmcnt(0)")
        self.lgq = []

    def ts_dump(self, kidx):
        if not TS:
            return
        L = self.newlabel("ts")
        self.e("s_cmp_lg_u32 s3, 0")
        self.e("s_cbranch_scc1 %s" % L)
        self.e("s_memrealtime s[60:61]")
        self.e("s_waitcnt lgkmcnt(0)")
        self.srd(56, P_WS, 24 * MB + kidx * 65536, 65536)
        self.e("s_lshl_b32 s62, s2, 6")
        self.e("v_mov_b32 v0, 0")
        for k in range(9):
            self.e("v_mov_b32 v1, s%d" % (84 + 2 * k))
            self.e("buffer_store_dword v1, v0, s[56:59], s62 offen offset:%d" % (4 * k))
        self.e("v_mov_b32 v1, s60")
        self.e("buffer_store_dword v1, v0, s[56:59], s62 offen offset:36")
        self.label(L)

    def nop(self, n):
        while n > 0:
            k = min(n, 16)
            self.e("s_nop %d" % (k - 1))
            n -= k

    def begin(self, name, nwg):
        self.lines.append(".globl %s" % name)
        self.lines.append(".p2align 8")
        self.lines.append(".type %s,@function" % name)
        self.label(name)
        self.vmq = []
        self.lgq = []
        self.e("s_cmp_ge_u32 s2, %d" % nwg)
        self.e("s_cbranch_scc1 L_end_%s" % name)
        self.e("s_load_dwordx16 s[64:79], s[0:1], 0")
        self.e("s_load_dwordx4 s[80:83], s[0:1], 64")
        self.e("v_and_b32 v1, 63, v0")
        self.e("v_lshrrev_b32 v2, 6, v0")
        self.e("s_nop 0")
        self.e("v_readfirstlane_b32 s3, v2")
        self.e("s_waitcnt lgkmcnt(0)")
        self.ts(0)

    def end(self, name):
        self.label("L_end_%s" % name)
        self.e("s_endpgm")

    def srd(self, d, ptr, off, size):
        if off:
            self.e("s_add_u32 s%d, s%d, 0x%x" % (d, ptr, off))
            self.e("s_addc_u32 s%d, s%d, 0" % (d + 1, ptr + 1))
        else:
            self.e("s_mov_b32 s%d, s%d" % (d, ptr))
            self.e("s_mov_b32 s%d, s%d" % (d + 1, ptr + 1))
        self.e("s_mov_b32 s%d, 0x%x" % (d + 2, size))
        self.e("s_mov_b32 s%d, 0x00020000" % (d + 3))


def vr(b, n=4):
    return "v[%d:%d]" % (b, b + n - 1)


def ar(b, n=4):
    return "a[%d:%d]" % (b, b + n - 1)


def pipeline(g, items, D, stage_of, on_stage_start, issue_reads, do_mfma):
    n = len(items)
    pend = []
    npend = 0
    r = 0
    nin = 1
    for i in range(-D, n):
        j = i + D
        ms, rs = [], []
        if i >= 0:
            g.wait_lg(("it", i))
            ms = do_mfma(i, items[i]) or []
        if j < n:
            if j == 0 or stage_of(items[j]) != stage_of(items[j - 1]):
                assert not pend
                for m in ms:
                    m()
                ms = []
                pend = list(on_stage_start(stage_of(items[j])) or [])
                npend = len(pend)
                r = 0
                nin = sum(1 for it in items if stage_of(it) == stage_of(items[j]))
            rs = issue_reads(j, items[j]) or []
        vs = []
        if j < n:
            r += 1
            want = (r * npend + nin - 1) // nin
            while npend - len(pend) < want:
                vs.append(pend.pop(0))
        rs = rs + vs
        while ms or rs:
            if ms:
                ms.pop(0)()
            if rs:
                rs.pop(0)()


def gemm_res(g, name, a_ptr, a_off, a_rowb, KD, w_ptr, res_ptr, res_off, out_ptr, out_off, nslots, out_fl):
    g.begin(name, 256)
    if CUT == 0:
        g.e("s_endpgm")
    nks = KD // 32
    nst = KD // 128
    ring = nslots < nst
    SA, SW, SR, SO = 4, 8, 12, 16
    RV = 2
    ostep = 512 if out_fl else 32
    g.srd(SA, a_ptr, a_off, 2048 * a_rowb)
    g.srd(SW, w_ptr, 0, KD * 1024)
    g.srd(SR, res_ptr, res_off, 2048 * 1024)
    g.srd(SO, out_ptr, out_off, 2048 * 1024)
    g.e("s_and_b32 s20, s2, 31")
    g.e("s_lshr_b32 s21, s2, 5")
    g.e("s_lshl_b32 s22, s20, 6")
    g.e("s_lshl_b32 s23, s3, 4")
    g.e("s_add_u32 s22, s22, s23")
    g.e("v_and_b32 v3, 15, v1")
    g.e("v_add_u32 v3, s22, v3")
    g.e("v_lshrrev_b32 v4, 4, v1")
    g.e("s_lshl_b32 s27, s20, 2")
    g.e("s_add_u32 s27, s27, s3")
    g.e("s_mul_i32 s28, s27, %d" % (16 * a_rowb))
    g.e("v_lshlrev_b32 v5, 4, v1")
    g.e("v_add_u32 v5, s28, v5")
    g.e("s_lshl_b32 s28, s27, 14")
    g.e("s_lshl_b32 s29, s21, 11")
    g.e("s_add_u32 s28, s28, s29")
    g.e("v_and_b32 v9, 15, v1")
    g.e("v_lshlrev_b32 v9, 4, v9")
    g.e("v_bfe_u32 v10, v1, 5, 1")
    g.e("v_lshl_add_u32 v9, v10, 8, v9")
    g.e("v_bfe_u32 v10, v1, 4, 1")
    g.e("v_lshl_add_u32 v9, v10, 3, v9")
    g.e("v_add_u32 v%d, s28, v9" % RV)
    g.e("s_lshl_b32 s23, s21, 7")
    if not out_fl:
        g.e("v_lshlrev_b32 v6, 10, v3")
        g.e("v_lshl_add_u32 v6, v4, 3, v6")
        g.e("v_add_u32 v6, s23, v6")
    else:
        g.e("v_mov_b32 v6, v%d" % RV)
    g.e("v_lshrrev_b32 v9, 3, v1")
    g.e("v_and_b32 v10, 7, v1")
    g.e("v_bfe_u32 v11, v1, 4, 1")
    g.e("v_lshlrev_b32 v11, 1, v11")
    g.e("v_xor_b32 v10, v10, v11")
    g.e("v_lshlrev_b32 v9, 10, v9")
    g.e("v_lshl_add_u32 v7, v10, 4, v9")
    g.e("v_xor_b32 v10, 4, v10")
    g.e("v_lshl_add_u32 v8, v10, 4, v9")
    g.e("s_lshl_b32 s24, s3, 15")
    g.e("s_add_u32 s24, s24, s23")
    g.e("s_lshl_b32 s25, s3, 12")
    g.e("v_bfe_u32 v9, v1, 2, 2")
    g.e("v_lshl_add_u32 v10, v4, 3, v9")
    g.e("v_lshlrev_b32 v10, 7, v10")
    g.e("v_bfe_u32 v11, v1, 1, 1")
    g.e("v_lshl_add_u32 v10, v11, 4, v10")
    g.e("v_and_b32 v11, 1, v1")
    g.e("v_lshl_add_u32 v10, v11, 3, v10")
    g.e("v_bfe_u32 v11, v1, 3, 1")
    g.e("v_bfe_u32 v12, v1, 4, 1")
    g.e("v_lshl_or_b32 v11, v12, 1, v11")
    g.e("v_lshlrev_b32 v11, 1, v11")
    TA = 12
    for nt in range(4):
        g.e("v_xor_b32 v20, %d, v11" % (2 * nt))
        g.e("v_lshl_add_u32 v%d, v20, 4, v10" % (TA + nt))
        g.e("v_add_u32 v%d, 0x10000, v%d" % (TA + 4 + nt, TA + nt))
    RES = 20
    ACC = 28
    WF = 44
    D = 7
    NR = D + 1

    def stage_loads(s):
        slot = s % nslots
        out = []
        for q in range(4):
            def f(q=q):
                g.e("s_add_u32 m0, s25, 0x%x" % (slot * 16384 + q * 1024))
                g.e("s_add_u32 s26, s24, 0x%x" % ((s * 128 + q * 8) * 1024))
                g.vm("buffer_load_dwordx4 v%d, s[%d:%d], s26 offen lds" % (7 + (q & 1), SW, SW + 3), ("st", s))
            out.append(f)
            def f2(k4=q):
                ks = s * 4 + k4
                g.e("s_mov_b32 s27, 0x%x" % (s * 4096))
                g.vm("buffer_load_dwordx4 %s, v5, s[%d:%d], s27 offen offset:%d" % (ar(ks * 4), SA, SA + 3, k4 * 1024), ("st", s))
            out.append(f2)
        return out

    def issue_stage(s):
        for f in stage_loads(s):
            f()

    P = min(PRO_RES, nslots - 2) if ring else PRO_RES
    npro = min(nst, P)
    issue_stage(0)
    for nt in range(4):
        g.vm("buffer_load_dwordx2 %s, v%d, s[%d:%d], 0 offen offset:%d" % (vr(RES + 2 * nt, 2), RV, SR, SR + 3, nt * 512), "res")
    for s in range(1, npro):
        issue_stage(s)
    if CUT == 1:
        g.e("s_waitcnt vmcnt(0)")
        g.e("s_endpgm")
    g.ts(1)
    tsst = (0, 1, 2, 3) if nst == 4 else (0, 1, 5, 9, 13)

    items = [(ks, nt) for ks in range(nks) for nt in range(4)]

    def on_stage_start(s):
        g.wait_vm(("st", s))
        g.e("s_barrier")
        if s in tsst:
            g.ts(2 + tsst.index(s))
        if s + P < nst:
            return stage_loads(s + P)

    def issue_reads(j, it):
        ks, nt = it
        s = ks // 4
        slot = s % nslots
        off = slot * 16384 + (ks % 4) * 32 * 128
        a = TA + nt
        if off >= 65536:
            off -= 65536
            a += 4
        w = WF + (j % NR) * 4
        return [lambda: g.lg("ds_read_b64_tr_b16 %s, v%d offset:%d" % (vr(w, 2), a, off), ("it", j)),
                lambda: g.lg("ds_read_b64_tr_b16 %s, v%d offset:%d" % (vr(w + 2, 2), a, off + 512), ("it", j))]

    def do_mfma(i, it):
        ks, nt = it
        w = WF + (i % NR) * 4
        acc = vr(ACC + nt * 4)
        return [lambda: g.e("v_mfma_f32_16x16x32_bf16 %s, %s, %s, %s" % (acc, vr(w), ar(ks * 4), "0" if ks == 0 else acc))]

    pipeline(g, items, D, lambda it: it[0] // 4, on_stage_start, issue_reads, do_mfma)
    g.ts(7)
    g.wait_vm("res")
    g.nop(16)
    T = WF
    for nt in range(4):
        a = ACC + nt * 4
        r = RES + 2 * nt
        g.e("v_lshlrev_b32 v%d, 16, v%d" % (T, r))
        g.e("v_and_b32 v%d, 0xffff0000, v%d" % (T + 1, r))
        g.e("v_lshlrev_b32 v%d, 16, v%d" % (T + 2, r + 1))
        g.e("v_and_b32 v%d, 0xffff0000, v%d" % (T + 3, r + 1))
        for k in range(4):
            g.e("v_add_f32 v%d, v%d, v%d" % (a + k, a + k, T + k))
        g.e("v_cvt_pk_bf16_f32 v%d, v%d, v%d" % (a, a, a + 1))
        g.e("v_cvt_pk_bf16_f32 v%d, v%d, v%d" % (a + 1, a + 2, a + 3))
        g.vm("buffer_store_dwordx2 %s, v6, s[%d:%d], 0 offen offset:%d" % (vr(a, 2), SO, SO + 3, nt * ostep), "out")
    g.ts(8)
    g.ts_dump(2 if nst == 4 else 4)
    g.end(name)
    nv = WF + NR * 4
    return dict(name=name, grid=256, lds=nslots * 16384 if ring else nst * 16384, vgpr=nv, agpr=nks * 4)


def ln_gemm(g, name, mode):
    qkv = mode == "qkv"
    g.begin(name, 256)
    NT = 6 if qkv else 14
    NPM = 6 if qkv else 7
    NW0 = NPM - 3
    CSP = (0, 3) if qkv else (0, 4)
    nks = 16
    nst = 8
    nslots = 5
    SLOTB = 28672
    CSB = 5 * SLOTB
    lds = CSB + 1024
    SA, SW, SO, SX = 4, 8, 12, 16
    ool = []
    if qkv and CPF:
        g.e("s_getpc_b64 s[32:33]")
        g.e("s_and_b32 s32, s32, 0xffffff00")
        g.e("s_and_b32 s33, s33, 0xffff")
        g.e("s_mov_b32 s34, L_code_end-%s" % name)
        g.e("s_mov_b32 s35, 0x00020000")
        g.e("s_lshr_b32 s36, s2, 3")
        g.e("s_lshl_b32 s36, s36, 2")
        g.e("s_add_u32 s36, s36, s3")
        g.e("s_lshl_b32 s36, s36, 10")
        g.e("v_lshlrev_b32 v180, 4, v1")
        g.vm("buffer_load_dwordx4 v[184:187], v180, s[32:35], s36 offen", "pf")
    if qkv:
        g.srd(SA, P_X, 0, 2048 * 1024)
        g.srd(SW, P_WQKV, 0, 512 * 3072)
        g.srd(SO, P_WS, WS_QKV, 6 * MB)
        g.srd(SX, P_WS, WS_XF, 2 * MB)
    else:
        g.srd(SA, P_WS, WS_H, 2048 * 1024)
        g.e("s_cmp_lt_u32 s3, 2")
        g.e("s_cselect_b32 s%d, s%d, s%d" % (SW, P_W1, P_W3))
        g.e("s_cselect_b32 s%d, s%d, s%d" % (SW + 1, P_W1 + 1, P_W3 + 1))
        g.e("s_mov_b32 s%d, 0x%x" % (SW + 2, 512 * 3584))
        g.e("s_mov_b32 s%d, 0x00020000" % (SW + 3))
        g.srd(SO, P_WS, WS_HMID, 2048 * 3584)
    g.e("s_lshr_b32 s22, s2, 3")
    if qkv:
        g.e("s_and_b32 s20, s2, 3")
        g.e("s_lshl_b32 s20, s20, 2")
        g.e("s_and_b32 s23, s22, 3")
        g.e("s_add_u32 s20, s20, s23")
        g.e("s_bfe_u32 s21, s2, 0x10002")
        g.e("s_lshl_b32 s21, s21, 3")
        g.e("s_lshr_b32 s23, s22, 2")
        g.e("s_add_u32 s21, s21, s23")
    else:
        g.e("s_and_b32 s20, s2, 1")
        g.e("s_lshl_b32 s20, s20, 3")
        g.e("s_and_b32 s23, s22, 7")
        g.e("s_add_u32 s20, s20, s23")
        g.e("s_bfe_u32 s21, s2, 0x20001")
        g.e("s_lshl_b32 s21, s21, 2")
        g.e("s_lshr_b32 s23, s22, 3")
        g.e("s_add_u32 s21, s21, s23")
    g.e("s_lshl_b32 s22, s20, 7")
    g.e("s_lshl_b32 s23, s3, 5")
    g.e("s_add_u32 s22, s22, s23")
    g.e("v_and_b32 v3, 15, v1")
    g.e("v_lshrrev_b32 v4, 4, v1")
    g.e("v_bfe_u32 v9, v1, 2, 2")
    ST = 40
    for p in range(NPM):
        g.e("s_add_u32 s%d, s3, %d" % (ST + p, p))
        if p >= NW0:
            g.e("s_cmp_ge_u32 s%d, %d" % (ST + p, NPM))
            g.e("s_cselect_b32 s26, %d, 0" % NPM)
            g.e("s_sub_u32 s%d, s%d, s26" % (ST + p, ST + p))
    if qkv:
        g.e("v_lshrrev_b32 v10, 3, v1")
        g.e("v_and_b32 v11, 7, v1")
        g.e("v_xor_b32 v11, v11, v10")
        g.e("v_lshlrev_b32 v10, 10, v10")
        g.e("v_lshl_add_u32 v5, v11, 4, v10")
        g.e("s_lshl_b32 s30, s22, 10")
        g.e("s_lshl_b32 s31, s3, 12")
        g.e("s_mul_i32 s24, s3, 192")
        g.e("v_add_u32 v10, s24, v1")
        DV = 16
        for q in range(3):
            g.e("v_add_u32 v11, %d, v10" % (q * 64))
            g.e("v_mul_u32_u24 v12, 5462, v11")
            g.e("v_lshrrev_b32 v12, 16, v12")
            g.e("v_mul_u32_u24 v13, 12, v12")
            g.e("v_sub_u32 v13, v11, v13")
            g.e("v_bfe_u32 v14, v12, 3, 1")
            g.e("v_lshlrev_b32 v14, 1, v14")
            g.e("v_xor_b32 v13, v13, v14")
            g.e("v_mul_u32_u24 v14, 3072, v12")
            g.e("v_lshl_add_u32 v%d, v13, 4, v14" % (DV + q))
        g.e("s_mul_i32 s24, s21, 192")
        g.e("s_mul_i32 s25, s3, 3072")
        g.e("v_add_u32 v10, s22, v3")
        g.e("v_lshlrev_b32 v7, 5, v10")
        g.e("v_lshl_add_u32 v7, v4, 3, v7")
        g.e("s_lshl_b32 s26, s22, 10")
        g.e("s_lshl_b32 s27, s21, 10")
        g.e("s_add_u32 s26, s26, s27")
        g.e("v_lshlrev_b32 v8, 4, v1")
        g.e("v_add_u32 v8, s26, v8")
        g.e("v_and_b32 v10, 7, v1")
        g.e("v_xor_b32 v10, v10, v4")
        g.e("v_lshlrev_b32 v11, 7, v3")
        g.e("v_lshl_add_u32 v11, v10, 4, v11")
        g.e("v_add_u32 v19, s31, v11")
        g.e("v_xor_b32 v20, 64, v19")
        XA = 19
        for b in range(1, 3):
            g.e("v_add_u32 v%d, 0x%x, v19" % (XA + 2 * b, b * 2 * SLOTB))
            g.e("v_add_u32 v%d, 0x%x, v20" % (XA + 2 * b + 1, b * 2 * SLOTB))
        g.e("v_lshl_add_u32 v10, v4, 3, v9")
        g.e("v_mul_u32_u24 v10, 192, v10")
        g.e("v_bfe_u32 v11, v1, 1, 1")
        g.e("v_lshl_add_u32 v10, v11, 4, v10")
        g.e("v_and_b32 v11, 1, v1")
        g.e("v_lshl_add_u32 v10, v11, 3, v10")
        g.e("v_add_u32 v10, 0x4000, v10")
        g.e("v_bfe_u32 v11, v1, 4, 1")
        g.e("v_lshlrev_b32 v11, 5, v11")
        TA = 25
        NA = 5
        ai = lambda p: (p & 1) if p < NW0 else p - 1
        for k, p in enumerate((0, 1, 3, 4, 5)):
            g.e("s_sub_u32 s26, s%d, %d" % (ST + p, p))
            g.e("s_lshl_b32 s26, s26, 5")
            g.e("v_add_u32 v12, s26, v10")
            g.e("s_and_b32 s27, s%d, 1" % (ST + p))
            g.e("s_lshl_b32 s27, s27, 1")
            g.e("s_sub_u32 s27, 1, s27")
            g.e("v_mul_lo_u32 v13, s27, v11")
            g.e("v_add_u32 v%d, v12, v13" % (TA + k))
        for b in range(1, 3):
            for k in range(NA):
                g.e("v_add_u32 v%d, 0x%x, v%d" % (TA + NA * b + k, b * 2 * SLOTB, TA + k))
        nextv = TA + 3 * NA
    else:
        g.e("s_lshl_b32 s26, s22, 10")
        g.e("v_lshlrev_b32 v5, 4, v1")
        g.e("v_add_u32 v5, s26, v5")
        g.e("v_add_u32 v6, 0x4000, v5")
        g.e("s_lshr_b32 s26, s22, 4")
        g.e("s_mul_i32 s26, s26, 57344")
        g.e("s_mul_i32 s27, s21, 3584")
        g.e("s_add_u32 s26, s26, s27")
        g.e("v_lshlrev_b32 v7, 4, v3")
        g.e("v_bfe_u32 v10, v1, 5, 1")
        g.e("v_lshl_add_u32 v7, v10, 8, v7")
        g.e("v_bfe_u32 v10, v1, 4, 1")
        g.e("v_lshl_add_u32 v7, v10, 3, v7")
        g.e("v_add_u32 v7, s26, v7")
        g.e("s_mul_i32 s23, s21, 224")
        g.e("s_and_b32 s24, s3, 1")
        g.e("s_mul_i32 s24, s24, 448")
        g.e("v_add_u32 v10, s24, v1")
        DV = 16
        for q in range(7):
            g.e("v_add_u32 v11, %d, v10" % (q * 64))
            g.e("v_mul_u32_u24 v12, 4682, v11")
            g.e("v_lshrrev_b32 v12, 16, v12")
            g.e("v_mul_u32_u24 v13, 14, v12")
            g.e("v_sub_u32 v13, v11, v13")
            g.e("v_and_b32 v14, 0x33, v12")
            g.e("v_bfe_u32 v15, v12, 2, 1")
            g.e("v_lshl_or_b32 v14, v15, 3, v14")
            g.e("v_bfe_u32 v15, v12, 3, 1")
            g.e("v_lshl_or_b32 v14, v15, 2, v14")
            g.e("v_mul_u32_u24 v14, 3584, v14")
            g.e("v_lshl_add_u32 v%d, v13, 4, v14" % (DV + q))
        g.e("s_mov_b32 s24, s23")
        g.e("s_mul_i32 s25, s3, 7168")
        g.e("v_bfe_u32 v10, v1, 5, 1")
        g.e("v_lshl_add_u32 v10, v10, 4, v9")
        g.e("v_bfe_u32 v11, v1, 4, 1")
        g.e("v_lshl_add_u32 v10, v11, 2, v10")
        g.e("v_mul_u32_u24 v10, 224, v10")
        g.e("v_and_b32 v11, 3, v1")
        g.e("v_lshl_add_u32 v10, v11, 3, v10")
        TA = 23
        NA = 4
        ai = lambda p: 0 if p < NW0 else p - 3
        for k, p in enumerate((0, 4, 5, 6)):
            g.e("s_lshl_b32 s26, s%d, 5" % (ST + p))
            g.e("v_add_u32 v%d, s26, v10" % (TA + k))
        for b in range(1, 3):
            for k in range(NA):
                g.e("v_add_u32 v%d, 0x%x, v%d" % (TA + NA * b + k, b * 2 * SLOTB, TA + k))
        nextv = TA + 3 * NA
    nextv = (nextv + 3) // 4 * 4
    ONES = nextv
    for k in range(4):
        g.e("v_mov_b32 v%d, 0x3f803f80" % (ONES + k))
    SUM = ONES + 4
    GRAM = SUM + 8
    CSA = GRAM + 8
    WF = CSA + 16
    D = 6 if qkv else 7
    NR = 8
    nextv = WF + NR * 4
    AX = 0
    ACCV = nextv
    nextv += 2 * NT * 4
    acc = lambda tt, ct: vr(ACCV + (tt * NT + ct) * 4)
    if qkv:
        XF = nextv
        nextv += 16
        XS = nextv
        nextv += 8
        xfr = lambda ks, tt: vr(XF + ((ks & 1) * 2 + tt) * 4)
    else:
        xfr = lambda ks, tt: ar(AX + (tt * 16 + ks) * 4)

    def stage_loads(s):
        wl, al = [], []
        slot = s % nslots
        if qkv:
            for q in range(3):
                def f(q=q):
                    g.e("s_add_u32 m0, s25, 0x%x" % (slot * SLOTB + 16384 + q * 1024))
                    g.e("s_add_u32 s26, s24, 0x%x" % (s * 64 * 3072))
                    g.vm("buffer_load_dwordx4 v%d, s[%d:%d], s26 offen lds" % (DV + q, SW, SW + 3), ("st", s))
                wl.append(f)
            for q in range(4):
                def f(q=q):
                    g.e("s_add_u32 m0, s31, 0x%x" % (slot * SLOTB + q * 1024))
                    g.e("s_add_u32 s26, s30, 0x%x" % (q * 8192 + s * 128))
                    g.vm("buffer_load_dwordx4 v5, s[%d:%d], s26 offen lds" % (SA, SA + 3), ("st", s))
                al.append(f)
        else:
            for q in range(7):
                def f(q=q):
                    g.e("s_add_u32 m0, s25, 0x%x" % (slot * SLOTB + q * 1024))
                    g.e("s_add_u32 s26, s24, 0x%x" % (s * 64 * 3584))
                    g.vm("buffer_load_dwordx4 v%d, s[%d:%d], s26 offen lds" % (DV + q, SW, SW + 3), ("st", s))
                wl.append(f)
            for k2 in range(2):
                for tt in range(2):
                    def f(k2=k2, tt=tt):
                        ks = s * 2 + k2
                        g.e("s_mov_b32 s27, 0x%x" % (s * 2048))
                        g.vm("buffer_load_dwordx4 %s, v%d, s[%d:%d], s27 offen offset:%d" % (
                            ar(AX + (tt * 16 + ks) * 4), 5 + tt, SA, SA + 3, k2 * 1024), ("st", s))
                    al.append(f)
        out = []
        while wl or al:
            if wl:
                out.append(wl.pop(0))
            if al and (len(al) >= len(wl) or not wl or len(out) % 2 == 0):
                out.append(al.pop(0))
        return out

    def issue_stage(s):
        for f in stage_loads(s):
            f()

    P = min(PRO_LN, nslots - 2)
    for s in range(P):
        issue_stage(s)
    g.ts(1)

    items = [(ks, ct) for ks in range(nks) for ct in range(NT)]

    def on_stage_start(s):
        g.wait_vm(("st", s))
        g.e("s_barrier")
        if s in (0, 1, 3, 5, 7):
            g.ts(2 + (0, 1, 3, 5, 7).index(s))
        if s + P < nst:
            return stage_loads(s + P)

    def issue_reads(j, it):
        ks, ct = it
        w = WF + (j % NR) * 4
        s = ks // 2
        slot = s % nslots
        b, so = slot >> 1, (slot & 1) * SLOTB
        out = []
        if qkv:
            if ct == 0:
                for tt in range(2):
                    out.append(lambda tt=tt: g.lg("ds_read_b128 %s, v%d offset:%d" % (xfr(ks, tt), XA + 2 * b + (ks & 1), so + tt * 2048), ("it", j)))
            a = TA + NA * b + ai(ct)
            off = so + (ks % 2) * 32 * 192 + ct * 32
            off2 = off + 4 * 192
        else:
            mat, p = ct // 7, ct % 7
            a = TA + NA * b + ai(p)
            off = so + mat * 14336 + (ks % 2) * 32 * 224 + (p * 32 if p < NW0 else 0)
            off2 = off + 8 * 224
        out.append(lambda: g.lg("ds_read_b64_tr_b16 %s, v%d offset:%d" % (vr(w, 2), a, off), ("it", j)))
        out.append(lambda: g.lg("ds_read_b64_tr_b16 %s, v%d offset:%d" % (vr(w + 2, 2), a, off2), ("it", j)))
        return out

    def do_mfma(i, it):
        ks, ct = it
        w = WF + (i % NR) * 4
        out = []
        def mf(d, a, b):
            out.append(lambda: g.e("v_mfma_f32_16x16x32_bf16 %s, %s, %s, %s" % (d, a, b, "0" if ks == 0 else d)))
        for tt in range(2):
            mf(acc(tt, ct), vr(w), xfr(ks, tt))
        mat, p = ct // NPM, ct % NPM
        if p in CSP:
            mf(vr(CSA + (mat * 2 + CSP.index(p)) * 4), vr(w), vr(ONES))
        if ct in (1, 2):
            tt = ct - 1
            x = xfr(ks, tt)
            mf(vr(SUM + tt * 4), vr(ONES), x)
            mf(vr(GRAM + tt * 4), x, x)
        if qkv and ct == 4:
            def f():
                L = g.newlabel("xs")
                g.e("s_cmp_eq_u32 s21, %d" % ks)
                g.e("s_cbranch_scc1 %s" % L)
                g.label(L + "_r")
                ool.append((L, ks))
            out.append(f)
        return out

    pipeline(g, items, D, lambda it: it[0] // 2, on_stage_start, issue_reads, do_mfma)
    if qkv:
        g.vm("buffer_store_dwordx4 %s, v8, s[%d:%d], 0 offen" % (vr(XS), SX, SX + 3), "out")
        g.e("v_add_u32 v8, 0x4000, v8")
        g.vm("buffer_store_dwordx4 %s, v8, s[%d:%d], 0 offen" % (vr(XS + 4), SX, SX + 3), "out")
    g.nop(16)
    g.ts(7)
    T = WF
    g.e("v_lshlrev_b32 v%d, 4, v4" % T)
    g.e("v_add_u32 v%d, 0x%x, v%d" % (T + 1, CSB, T))
    for k in range(2):
        g.e("s_lshl_b32 s27, s%d, 6" % (ST + CSP[k]))
        g.e("v_add_u32 v%d, s27, v%d" % (T + 2 + k, T + 1))
    g.e("s_mov_b32 s28, 0x00010001")
    g.e("s_mov_b32 s29, 0x00010001")
    g.e("s_mov_b64 exec, s[28:29]")
    for mat in range(NT // NPM):
        for k in range(2):
            g.lg("ds_write_b128 v%d, %s offset:%d" % (T + 2 + k, vr(CSA + (mat * 2 + k) * 4), mat * NPM * 64), "csw")
    g.e("s_mov_b64 exec, -1")
    for r in range(4):
        m = 0
        for gg in range(4):
            m |= 1 << (20 * gg + r)
        g.e("s_mov_b32 s%d, 0x%x" % (30 + 2 * r, m & 0xffffffff))
        g.e("s_mov_b32 s%d, 0x%x" % (31 + 2 * r, m >> 32))
    for tt in range(2):
        d = T + 4
        g.e("v_mov_b32 v%d, 0" % d)
        for r in range(4):
            g.e("v_cndmask_b32_e64 v%d, v%d, v%d, s[%d:%d]" % (d, d, GRAM + tt * 4 + r, 30 + 2 * r, 31 + 2 * r))
        g.e("v_mov_b32 v%d, v%d" % (d + 1, d))
        g.nop(2)
        g.e("v_permlane16_swap_b32 v%d, v%d" % (d, d + 1))
        g.nop(1)
        g.e("v_add_f32 v%d, v%d, v%d" % (d, d, d + 1))
        g.e("v_mov_b32 v%d, v%d" % (d + 1, d))
        g.nop(2)
        g.e("v_permlane32_swap_b32 v%d, v%d" % (d, d + 1))
        g.nop(1)
        g.e("v_add_f32 v%d, v%d, v%d" % (d, d, d + 1))
        m = SUM + tt * 4
        g.e("v_mul_f32 v%d, %s, v%d" % (m, f32hex(1.0 / 512), m))
        g.e("v_mul_f32 v%d, %s, v%d" % (d, f32hex(1.0 / 512), d))
        g.e("v_fma_f32 v%d, -v%d, v%d, v%d" % (d, m, m, d))
        g.e("v_max_f32 v%d, 0, v%d" % (d, d))
        g.e("v_add_f32 v%d, %s, v%d" % (m + 3, f32hex(1e-5), d))
        g.e("v_rsq_f32 v%d, v%d" % (m + 1, m + 3))
        g.nop(1)
        g.e("v_mul_f32 v%d, %s, v%d" % (m + 2, f32hex(QSCALE if qkv else -LOG2E), m + 1))
    g.wait_lg("csw")
    g.e("s_barrier")
    CS = T + 8
    AD = T + 6
    def pk(op, d, a, b, c=None, sel=None, neg=False):
        ops = [a, b] + ([c] if c is not None else [])
        sel = sel or {}
        lo = [sel.get(i, (0, 1))[0] for i in range(len(ops))]
        hi = [sel.get(i, (0, 1))[1] for i in range(len(ops))]
        t = "%s %s, %s" % (op, vr(d, 2), ", ".join(vr(o, 2) for o in ops))
        t += " op_sel:[%s] op_sel_hi:[%s]" % (",".join(map(str, lo)), ",".join(map(str, hi)))
        if neg:
            z = ["1"] + ["0"] * (len(ops) - 1)
            t += " neg_lo:[%s] neg_hi:[%s]" % (",".join(z), ",".join(z))
        g.e(t)

    def cs_read(p):
        bb = CS + (p & 1) * 8
        g.e("s_lshl_b32 s27, s%d, 6" % (ST + p))
        g.e("v_add_u32 v%d, s27, v%d" % (AD + (p & 1), T + 1))
        g.lg("ds_read_b128 %s, v%d" % (vr(bb), AD + (p & 1)), ("cs", p))
        if not qkv:
            g.lg("ds_read_b128 %s, v%d offset:448" % (vr(bb + 4), AD + (p & 1)), ("cs", p))
    cs_read(0)
    if qkv:
        for p in range(NPM):
            if p + 1 < NPM:
                cs_read(p + 1)
            g.wait_lg(("cs", p))
            bb = CS + (p & 1) * 8
            g.e("s_mul_i32 s26, s21, 6")
            g.e("s_add_u32 s26, s26, s%d" % (ST + p))
            g.e("s_cmp_lt_u32 s26, 32")
            g.e("s_cselect_b32 s28, -1, 0")
            g.e("s_mov_b32 s29, s28")
            g.e("s_lshl_b32 s26, s26, 16")
            for tt in range(2):
                a = ACCV + (tt * NT + p) * 4
                m = SUM + tt * 4
                rs = T + 4
                g.e("v_cndmask_b32_e64 v%d, v%d, v%d, s[28:29]" % (rs, m + 1, m + 2))
                pk("v_pk_fma_f32", a, m, bb, a, sel={0: (0, 0)}, neg=True)
                pk("v_pk_fma_f32", a + 2, m, bb + 2, a + 2, sel={0: (0, 0)}, neg=True)
                pk("v_pk_mul_f32", a, a, rs, sel={1: (0, 0)})
                pk("v_pk_mul_f32", a + 2, a + 2, rs, sel={1: (0, 0)})
                g.e("v_cvt_pk_bf16_f32 v%d, v%d, v%d" % (a, a, a + 1))
                g.e("v_cvt_pk_bf16_f32 v%d, v%d, v%d" % (a + 1, a + 2, a + 3))
                g.vm("buffer_store_dwordx2 %s, v7, s[%d:%d], s26 offen offset:%d" % (vr(a, 2), SO, SO + 3, tt * 512), "out")
    else:
        g.e("v_add_u32 v8, 0x%x, v7" % 57344)
        E = CS + 16
        for p in range(NPM):
            if p + 1 < NPM:
                cs_read(p + 1)
            g.wait_lg(("cs", p))
            bb = CS + (p & 1) * 8
            g.e("s_lshl_b32 s26, s%d, 9" % (ST + p))
            GV = [ACCV + (tt * NT + p) * 4 for tt in range(2)]
            UV = [ACCV + (tt * NT + 7 + p) * 4 for tt in range(2)]
            M = [SUM + tt * 4 for tt in range(2)]
            EV = [E + tt * 4 for tt in range(2)]
            for tt in range(2):
                for h in (0, 2):
                    pk("v_pk_fma_f32", GV[tt] + h, M[tt], bb + h, GV[tt] + h, sel={0: (0, 0)}, neg=True)
                for h in (0, 2):
                    pk("v_pk_mul_f32", EV[tt] + h, GV[tt] + h, M[tt] + 2, sel={1: (0, 0)})
            for tt in range(2):
                for k in range(4):
                    g.e("v_exp_f32 v%d, v%d" % (EV[tt] + k, EV[tt] + k))
            for tt in range(2):
                for h in (0, 2):
                    pk("v_pk_fma_f32", UV[tt] + h, M[tt], bb + 4 + h, UV[tt] + h, sel={0: (0, 0)}, neg=True)
                for h in (0, 2):
                    pk("v_pk_mul_f32", UV[tt] + h, UV[tt] + h, GV[tt] + h)
            for tt in range(2):
                for h in (0, 2):
                    pk("v_pk_fma_f32", EV[tt] + h, EV[tt] + h, M[tt] + 2, M[tt] + 2, sel={1: (1, 1), 2: (1, 1)})
            for tt in range(2):
                for k in range(4):
                    g.e("v_rcp_f32 v%d, v%d" % (EV[tt] + k, EV[tt] + k))
            g.nop(1)
            for tt in range(2):
                for h in (0, 2):
                    pk("v_pk_mul_f32", UV[tt] + h, UV[tt] + h, EV[tt] + h)
                g.e("v_cvt_pk_bf16_f32 v%d, v%d, v%d" % (UV[tt], UV[tt], UV[tt] + 1))
                g.e("v_cvt_pk_bf16_f32 v%d, v%d, v%d" % (UV[tt] + 1, UV[tt] + 2, UV[tt] + 3))
                g.vm("buffer_store_dwordx2 %s, v%d, s[%d:%d], s26 offen" % (vr(UV[tt], 2), 7 + tt, SO, SO + 3), "out")
    g.ts(8)
    g.ts_dump(0 if qkv else 3)
    g.end(name)
    for L, ks in ool:
        g.label(L)
        for k in range(8):
            g.e("v_mov_b32 v%d, v%d" % (XS + k, XF + (ks & 1) * 8 + k))
        g.e("s_branch %s_r" % L)
    return dict(name=name, grid=256, lds=lds, vgpr=max(nextv, 188) if qkv else nextv, agpr=0 if qkv else 128)


def attention(g, name):
    g.begin(name, 512)
    SQ, SO = 4, 8
    g.srd(SQ, P_WS, WS_QKV, 6 * MB)
    g.srd(SO, P_WS, WS_ATTN, 2 * MB)
    VB = 0
    OB = 12288
    lds = OB + 1024
    g.e("s_and_b32 s20, s2, 31")
    g.e("s_lshr_b32 s21, s2, 5")
    g.e("s_lshl_b32 s22, s21, 7")
    g.e("s_lshl_b32 s23, s3, 5")
    g.e("s_add_u32 s23, s22, s23")
    g.e("s_lshr_b32 s24, s23, 5")
    g.e("s_sub_i32 s24, 8, s24")
    g.e("s_max_i32 s24, s24, 0")
    g.e("v_and_b32 v3, 31, v1")
    g.e("v_lshrrev_b32 v4, 5, v1")
    g.e("s_lshl_b32 s25, s20, 16")
    g.e("v_add_u32 v5, s23, v3")
    g.e("v_lshlrev_b32 v5, 5, v5")
    g.e("v_lshl_add_u32 v5, v4, 4, v5")
    g.e("v_add_u32 v5, s25, v5")
    QF = 8
    KF = 12
    g.vm("buffer_load_dwordx4 %s, v5, s[%d:%d], 0 offen" % (vr(QF), SQ, SQ + 3), "q")
    g.e("v_add_u32 v6, 0x%x, v5" % (2 * MB - 8192))
    for t in range(9):
        if t == 4 or t == 8:
            g.e("v_add_u32 v6, 0x1000, v6")
        g.vm("buffer_load_dwordx4 %s, v6, s[%d:%d], 0 offen offset:%d" % (vr(KF + 4 * t), SQ, SQ + 3, (t % 4) * 1024), ("k", t))
    g.e("s_lshl_b32 s26, s22, 5")
    g.e("s_add_u32 s26, s26, s25")
    g.e("s_add_u32 s26, s26, 0x%x" % (4 * MB - 8192))
    g.e("s_mul_i32 s27, s3, 3072")
    g.e("s_add_u32 s26, s26, s27")
    g.e("v_lshlrev_b32 v7, 4, v1")
    g.e("v_add_u32 v7, s26, v7")
    for q in range(3):
        g.e("s_add_u32 m0, s27, 0x%x" % (VB + q * 1024))
        if q:
            g.e("v_add_u32 v7, 0x400, v7")
        else:
            g.e("s_nop 0")
        g.vm("buffer_load_dwordx4 v7, s[%d:%d], 0 offen lds" % (SQ, SQ + 3), "v")
    NPF = 0
    def do_pf():
        g.srd(32, P_WO, 0, 512 * 1024)
        g.srd(36, P_W1, 0, 512 * 3584)
        g.srd(40, P_W3, 0, 512 * 3584)
        g.srd(44, P_W2, 0, 1792 * 1024)
        PV = 176
        g.e("v_lshlrev_b32 v%d, 4, v1" % PV)
        g.e("s_lshl_b32 s28, s2, 2")
        g.e("s_add_u32 s28, s28, s3")
        g.e("s_lshl_b32 s28, s28, 10")
        for sr in (32, 36, 40, 44):
            g.vm("buffer_load_dwordx4 %s, v%d, s[%d:%d], s28 offen" % (vr(PV + 4), PV, sr, sr + 3), "pf")
    if PFM == 'A':
        do_pf()
        NPF = 4
    M0_ = 48
    M8_ = 64
    NM = 80
    S0 = 96
    PF = 128
    VF = 144
    OA = 160
    for k in range(4):
        g.e("v_mov_b32 v%d, 0x3f803f80" % (S0 + k))
    g.e("v_lshlrev_b32 v2, 4, v1")
    g.lg("ds_write_b128 v2, %s offset:%d" % (vr(S0), OB), "ones")
    g.e("v_lshlrev_b32 v2, 2, v4")
    g.e("v_sub_u32 v2, v3, v2")
    NEG = f32hex(-1e30)
    g.e("v_mov_b32 v%d, %s" % (S0 + 4, NEG))
    for r in range(16):
        jc = (r & 3) + 8 * (r >> 2)
        g.e("v_cmp_gt_i32 vcc, %d, v2" % jc)
        g.nop(2)
        g.e("v_cndmask_b32 v%d, v%d, 0, vcc" % (M0_ + r, S0 + 4))
        g.e("v_cndmask_b32 v%d, 0, v%d, vcc" % (M8_ + r, S0 + 4))
    g.e("v_bfe_u32 v2, v1, 2, 2")
    g.e("v_lshl_add_u32 v2, v4, 2, v2")
    g.e("v_lshlrev_b32 v2, 5, v2")
    g.e("v_and_b32 v5, 3, v1")
    g.e("v_lshl_add_u32 v2, v5, 3, v2")
    g.e("s_lshl_b32 s27, s3, 10")
    g.e("s_add_u32 s27, s27, 0x%x" % VB)
    g.e("v_add_u32 v2, s27, v2")
    g.e("v_lshlrev_b32 v5, 7, v4")
    g.e("v_sub_u32 v5, 0x%x, v5" % (OB + 128))
    g.e("v_bfe_u32 v6, v1, 4, 1")
    g.e("v_cmp_eq_u32 vcc, 1, v6")
    g.nop(2)
    g.e("v_cndmask_b32 v2, v2, v5, vcc")
    g.e("v_mov_b32 v5, 0x400")
    g.e("v_cndmask_b32 v5, v5, 0, vcc")
    g.e("v_mul_lo_u32 v6, v5, s24")
    g.e("v_add_u32 v2, v2, v6")
    VA, VI = 2, 5
    MX = 6
    g.e("v_mov_b32 v%d, %s" % (MX, NEG))
    g.wait_vm("q")
    def smfma(t, dst, c):
        g.e("v_mfma_f32_32x32x16_bf16 %s, %s, %s, %s" % (vr(dst, 16), vr(KF + 4 * t), vr(QF), c))
    for t in range(9):
        L = g.newlabel("p1")
        if t < 8:
            g.e("s_cmp_gt_u32 s24, %d" % t)
            g.e("s_cbranch_scc1 %s" % L)
        g.e("s_waitcnt vmcnt(%d)" % (NPF + 3 + 8 - t))
        c = vr(M0_, 16) if t == 0 else (vr(M8_, 16) if t == 8 else "0")
        dst = S0 + 16 * (t & 1)
        smfma(t, dst, c)
        g.nop(18)
        for r in range(0, 16, 2):
            g.e("v_max3_f32 v%d, v%d, v%d, v%d" % (MX, MX, dst + r, dst + r + 1))
        g.label(L)
    g.vmq = [x for x in g.vmq if x in ("v", "pf")]
    if PFM == 'C':
        do_pf()
    g.e("v_mov_b32 v%d, v%d" % (MX + 1, MX))
    g.nop(2)
    g.e("v_permlane32_swap_b32 v%d, v%d" % (MX, MX + 1))
    g.nop(1)
    g.e("v_max_f32 v%d, v%d, v%d" % (MX, MX, MX + 1))
    for r in range(16):
        g.e("v_sub_f32 v%d, 0, v%d" % (NM + r, MX))
    for r in range(16):
        g.e("v_sub_f32 v%d, v%d, v%d" % (M0_ + r, M0_ + r, MX))
        g.e("v_sub_f32 v%d, v%d, v%d" % (M8_ + r, M8_ + r, MX))
    for r in range(16):
        g.e("v_mov_b32 v%d, 0" % (OA + r))
    g.wait_vm("v")
    g.wait_lg("ones")
    g.e("s_barrier")
    if PFM == 'D':
        do_pf()
    for t in range(9):
        L = g.newlabel("p2")
        if t < 8:
            g.e("s_cmp_gt_u32 s24, %d" % t)
            g.e("s_cbranch_scc1 %s" % L)
        vf = VF + 8 * (t & 1)
        for k in range(4):
            g.lg("ds_read_b64_tr_b16 %s, v%d offset:%d" % (vr(vf + 2 * k, 2), VA, 256 * k), ("vf", t))
        g.e("v_add_u32 v%d, v%d, v%d" % (VA, VA, VI))
        c = vr(M0_, 16) if t == 0 else (vr(M8_, 16) if t == 8 else vr(NM, 16))
        dst = S0 + 16 * (t & 1)
        smfma(t, dst, c)
        g.nop(18)
        for r in range(16):
            g.e("v_exp_f32 v%d, v%d" % (dst + r, dst + r))
        pf = PF + 8 * (t & 1)
        g.nop(1)
        for r in range(8):
            g.e("v_cvt_pk_bf16_f32 v%d, v%d, v%d" % (pf + r, dst + 2 * r, dst + 2 * r + 1))
        g.wait_lg(("vf", t))
        g.nop(2)
        g.e("v_mfma_f32_32x32x16_bf16 %s, %s, %s, %s" % (vr(OA, 16), vr(vf), vr(pf), vr(OA, 16)))
        g.e("v_mfma_f32_32x32x16_bf16 %s, %s, %s, %s" % (vr(OA, 16), vr(vf + 4), vr(pf + 4), vr(OA, 16)))
        g.label(L)
    g.nop(20)
    g.e("v_rcp_f32 v%d, v%d" % (MX, OA + 8))
    g.nop(1)
    for r in range(8):
        g.e("v_mul_f32 v%d, v%d, v%d" % (OA + r, OA + r, MX))
    for r in range(4):
        g.e("v_cvt_pk_bf16_f32 v%d, v%d, v%d" % (PF + r, OA + 2 * r, OA + 2 * r + 1))
    g.e("v_bfe_u32 v7, v3, 4, 1")
    g.e("v_lshlrev_b32 v7, 14, v7")
    g.e("v_and_b32 v6, 15, v3")
    g.e("v_lshl_add_u32 v7, v6, 4, v7")
    g.e("v_lshl_add_u32 v7, v4, 3, v7")
    g.e("s_lshl_b32 s26, s20, 9")
    g.e("s_lshl_b32 s27, s23, 10")
    g.e("s_add_u32 s26, s26, s27")
    g.vm("buffer_store_dwordx2 %s, v7, s[%d:%d], s26 offen" % (vr(PF, 2), SO, SO + 3), "o")
    g.vm("buffer_store_dwordx2 %s, v7, s[%d:%d], s26 offen offset:256" % (vr(PF + 2, 2), SO, SO + 3), "o")
    g.end(name)
    return dict(name=name, grid=512, lds=lds, vgpr=184, agpr=0)


def main():
    g = G()
    ks = []
    ks.append(ln_gemm(g, "k1_qkv_kernel", "qkv"))
    ks.append(attention(g, "k2_attn_kernel"))
    ks.append(gemm_res(g, "k3_wo_kernel", P_WS, WS_ATTN, 1024, 512, P_WO, P_WS, WS_XF, P_WS, WS_H, 8, True))
    ks.append(ln_gemm(g, "k4_ffn_kernel", "ffn"))
    ks.append(gemm_res(g, "k5_w2_kernel", P_WS, WS_HMID, 3584, 1792, P_W2, P_WS, WS_H, P_OUT, 0, 8, False))
    out = []
    for k in ks:
        out.append("; @launch kernel=%s grid=(%d,1,1) block=(256,1,1) lds=%d" % (k["name"], k["grid"], k["lds"]))
    out.append('.amdgcn_target "amdgcn-amd-amdhsa--gfx950"')
    out.append(".text")
    out += g.lines
    out.append("L_code_end:")
    out.append('.section .rodata,"a"')
    for k in ks:
        accoff = (k["vgpr"] + 3) // 4 * 4
        assert accoff <= 256
        tot = accoff + k["agpr"]
        assert tot <= 512
        out.append(".p2align 6")
        out.append(".amdhsa_kernel %s" % k["name"])
        out.append("  .amdhsa_next_free_vgpr %d" % tot)
        out.append("  .amdhsa_next_free_sgpr 102")
        out.append("  .amdhsa_accum_offset %d" % accoff)
        out.append("  .amdhsa_group_segment_fixed_size 0")
        out.append("  .amdhsa_kernarg_size 80")
        out.append("  .amdhsa_user_sgpr_count 2")
        out.append("  .amdhsa_user_sgpr_kernarg_segment_ptr 1")
        out.append("  .amdhsa_system_sgpr_workgroup_id_x 1")
        out.append(".end_amdhsa_kernel")
    dst = sys.argv[1] if len(sys.argv) > 1 else "sequential_preLN__sliding_block__glu_gated_swiglu__prompt.s"
    open(dst, "w").write("\n".join(out) + "\n")
    for k in ks:
        print(k)


if __name__ == "__main__":
    main()
```

```python
import sys

MB = 1 << 20
import os
CUT = int(os.environ.get('CUT', '-1'))
EXP = os.environ.get('EXP', '')
TS = int(os.environ.get('TS', '0'))
PRO_RES = int(os.environ.get('PRO_RES', '4'))
PRO_LN = int(os.environ.get('PRO_LN', '4'))
P0_RES = int(os.environ.get('P0_RES', '2'))
P0_LN = int(os.environ.get('P0_LN', '2'))
CU_RATE = int(os.environ.get('CU_RATE', '2'))
PFM = os.environ.get('PF', 'C')
CPF = int(os.environ.get('CPF', '0'))
WS_QKV = 0
WS_ATTN = 6 * MB
WS_H = 8 * MB
WS_HMID = 10 * MB
WS_XF = 18 * MB
LOG2E = 1.4426950408889634
QSCALE = 0.25 * LOG2E

P_X, P_WQKV, P_WO, P_BX, P_W1, P_W3, P_W2, P_OUT, P_DBG, P_WS = [64 + 2 * i for i in range(10)]


def f32hex(x):
    import struct
    return "0x%08x" % struct.unpack("<I", struct.pack("<f", x))[0]


class G:
    def __init__(self):
        self.lines = []
        self.vmq = []
        self.lgq = []
        self.nlabel = 0

    def e(self, s):
        self.lines.append("    " + s)

    def label(self, s):
        self.lines.append(s + ":")

    def newlabel(self, p):
        self.nlabel += 1
        return "L_%s_%d" % (p, self.nlabel)

    def vm(self, s, tag):
        self.e(s)
        self.vmq.append(tag)
        assert len(self.vmq) <= 63, "too many outstanding vmem"

    def lg(self, s, tag):
        self.e(s)
        self.lgq.append(tag)
        assert len(self.lgq) <= 15, "too many outstanding lgkm"

    def _wait(self, q, tag):
        if tag not in q:
            return None, q
        idx = len(q) - 1 - q[::-1].index(tag)
        return len(q) - 1 - idx, q[idx + 1:]

    def wait_vm(self, tag):
        n, self.vmq = self._wait(self.vmq, tag)
        if n is not None:
            self.e("s_waitcnt vmcnt(%d)" % n)

    def wait_lg(self, tag):
        n, self.lgq = self._wait(self.lgq, tag)
        if n is not None:
            self.e("s_waitcnt lgkmcnt(%d)" % n)

    def wait_all(self):
        self.e("s_waitcnt vmcnt(0) lgkmcnt(0)")
        self.vmq = []
        self.lgq = []

    def ts(self, k):
        if not TS or k > 8:
            return
        self.e("s_memtime s[%d:%d]" % (84 + 2 * k, 85 + 2 * k))
        self.e("s_waitcnt lgkmcnt(0)")
        self.lgq = []

    def ts_dump(self, kidx):
        if not TS:
            return
        L = self.newlabel("ts")
        self.e("s_cmp_lg_u32 s3, 0")
        self.e("s_cbranch_scc1 %s" % L)
        self.e("s_memrealtime s[60:61]")
        self.e("s_waitcnt lgkmcnt(0)")
        self.srd(56, P_WS, 24 * MB + kidx * 65536, 65536)
        self.e("s_lshl_b32 s62, s2, 6")
        self.e("v_mov_b32 v0, 0")
        for k in range(9):
            self.e("v_mov_b32 v1, s%d" % (84 + 2 * k))
            self.e("buffer_store_dword v1, v0, s[56:59], s62 offen offset:%d" % (4 * k))
        self.e("v_mov_b32 v1, s60")
        self.e("buffer_store_dword v1, v0, s[56:59], s62 offen offset:36")
        self.label(L)

    def nop(self, n):
        while n > 0:
            k = min(n, 16)
            self.e("s_nop %d" % (k - 1))
            n -= k

    def begin(self, name, nwg):
        self.lines.append(".globl %s" % name)
        self.lines.append(".p2align 8")
        self.lines.append(".type %s,@function" % name)
        self.label(name)
        self.vmq = []
        self.lgq = []
        self.e("s_cmp_ge_u32 s2, %d" % nwg)
        self.e("s_cbranch_scc1 L_end_%s" % name)
        self.e("s_load_dwordx16 s[64:79], s[0:1], 0")
        self.e("s_load_dwordx4 s[80:83], s[0:1], 64")
        self.e("v_and_b32 v1, 63, v0")
        self.e("v_lshrrev_b32 v2, 6, v0")
        self.e("s_nop 0")
        self.e("v_readfirstlane_b32 s3, v2")
        self.e("s_waitcnt lgkmcnt(0)")
        self.ts(0)

    def end(self, name):
        self.label("L_end_%s" % name)
        self.e("s_endpgm")

    def srd(self, d, ptr, off, size):
        if off:
            self.e("s_add_u32 s%d, s%d, 0x%x" % (d, ptr, off))
            self.e("s_addc_u32 s%d, s%d, 0" % (d + 1, ptr + 1))
        else:
            self.e("s_mov_b32 s%d, s%d" % (d, ptr))
            self.e("s_mov_b32 s%d, s%d" % (d + 1, ptr + 1))
        self.e("s_mov_b32 s%d, 0x%x" % (d + 2, size))
        self.e("s_mov_b32 s%d, 0x00020000" % (d + 3))


def vr(b, n=4):
    return "v[%d:%d]" % (b, b + n - 1)


def ar(b, n=4):
    return "a[%d:%d]" % (b, b + n - 1)


def pipeline(g, items, D, stage_of, on_stage_start, issue_reads, do_mfma):
    n = len(items)
    pend = []
    npend = 0
    r = 0
    nin = 1
    for i in range(-D, n):
        j = i + D
        ms, rs = [], []
        if i >= 0:
            g.wait_lg(("it", i))
            ms = do_mfma(i, items[i]) or []
        if j < n:
            if j == 0 or stage_of(items[j]) != stage_of(items[j - 1]):
                assert not pend
                for m in ms:
                    m()
                ms = []
                pend = list(on_stage_start(stage_of(items[j])) or [])
                npend = len(pend)
                r = 0
                nin = sum(1 for it in items if stage_of(it) == stage_of(items[j]))
            rs = issue_reads(j, items[j]) or []
        vs = []
        if j < n:
            r += 1
            want = (r * npend + nin - 1) // nin
            while npend - len(pend) < want:
                vs.append(pend.pop(0))
        rs = rs + vs
        while ms or rs:
            if ms:
                ms.pop(0)()
            if rs:
                rs.pop(0)()


def gemm_res(g, name, a_ptr, a_off, a_rowb, KD, w_ptr, res_ptr, res_off, out_ptr, out_off, nslots, out_fl):
    g.begin(name, 256)
    if CUT == 0:
        g.e("s_endpgm")
    nks = KD // 32
    nst = KD // 128
    ring = nslots < nst
    SA, SW, SR, SO = 4, 8, 12, 16
    RV = 2
    ostep = 512 if out_fl else 32
    g.srd(SA, a_ptr, a_off, 2048 * a_rowb)
    g.srd(SW, w_ptr, 0, KD * 1024)
    g.srd(SR, res_ptr, res_off, 2048 * 1024)
    g.srd(SO, out_ptr, out_off, 2048 * 1024)
    g.e("s_and_b32 s20, s2, 31")
    g.e("s_lshr_b32 s21, s2, 5")
    g.e("s_lshl_b32 s22, s20, 6")
    g.e("s_lshl_b32 s23, s3, 4")
    g.e("s_add_u32 s22, s22, s23")
    g.e("v_and_b32 v3, 15, v1")
    g.e("v_add_u32 v3, s22, v3")
    g.e("v_lshrrev_b32 v4, 4, v1")
    g.e("s_lshl_b32 s27, s20, 2")
    g.e("s_add_u32 s27, s27, s3")
    g.e("s_mul_i32 s28, s27, %d" % (16 * a_rowb))
    g.e("v_lshlrev_b32 v5, 4, v1")
    g.e("v_add_u32 v5, s28, v5")
    g.e("s_lshl_b32 s28, s27, 14")
    g.e("s_lshl_b32 s29, s21, 11")
    g.e("s_add_u32 s28, s28, s29")
    g.e("v_and_b32 v9, 15, v1")
    g.e("v_lshlrev_b32 v9, 4, v9")
    g.e("v_bfe_u32 v10, v1, 5, 1")
    g.e("v_lshl_add_u32 v9, v10, 8, v9")
    g.e("v_bfe_u32 v10, v1, 4, 1")
    g.e("v_lshl_add_u32 v9, v10, 3, v9")
    g.e("v_add_u32 v%d, s28, v9" % RV)
    g.e("s_lshl_b32 s23, s21, 7")
    if not out_fl:
        g.e("v_lshlrev_b32 v6, 10, v3")
        g.e("v_lshl_add_u32 v6, v4, 3, v6")
        g.e("v_add_u32 v6, s23, v6")
    else:
        g.e("v_mov_b32 v6, v%d" % RV)
    g.e("v_lshrrev_b32 v9, 3, v1")
    g.e("v_and_b32 v10, 7, v1")
    g.e("v_bfe_u32 v11, v1, 4, 1")
    g.e("v_lshlrev_b32 v11, 1, v11")
    g.e("v_xor_b32 v10, v10, v11")
    g.e("v_lshlrev_b32 v9, 10, v9")
    g.e("v_lshl_add_u32 v7, v10, 4, v9")
    g.e("v_xor_b32 v10, 4, v10")
    g.e("v_lshl_add_u32 v8, v10, 4, v9")
    g.e("s_lshl_b32 s24, s3, 15")
    g.e("s_add_u32 s24, s24, s23")
    g.e("s_lshl_b32 s25, s3, 12")
    g.e("v_bfe_u32 v9, v1, 2, 2")
    g.e("v_lshl_add_u32 v10, v4, 3, v9")
    g.e("v_lshlrev_b32 v10, 7, v10")
    g.e("v_bfe_u32 v11, v1, 1, 1")
    g.e("v_lshl_add_u32 v10, v11, 4, v10")
    g.e("v_and_b32 v11, 1, v1")
    g.e("v_lshl_add_u32 v10, v11, 3, v10")
    g.e("v_bfe_u32 v11, v1, 3, 1")
    g.e("v_bfe_u32 v12, v1, 4, 1")
    g.e("v_lshl_or_b32 v11, v12, 1, v11")
    g.e("v_lshlrev_b32 v11, 1, v11")
    TA = 12
    for nt in range(4):
        g.e("v_xor_b32 v20, %d, v11" % (2 * nt))
        g.e("v_lshl_add_u32 v%d, v20, 4, v10" % (TA + nt))
        g.e("v_add_u32 v%d, 0x10000, v%d" % (TA + 4 + nt, TA + nt))
    RES = 20
    ACC = 28
    WF = 44
    D = 7
    NR = D + 1

    def stage_loads(s):
        slot = s % nslots
        out = []
        for q in range(4):
            def f(q=q):
                g.e("s_add_u32 m0, s25, 0x%x" % (slot * 16384 + q * 1024))
                g.e("s_add_u32 s26, s24, 0x%x" % ((s * 128 + q * 8) * 1024))
                g.vm("buffer_load_dwordx4 v%d, s[%d:%d], s26 offen lds" % (7 + (q & 1), SW, SW + 3), ("st", s))
            out.append(f)
            def f2(k4=q):
                ks = s * 4 + k4
                g.e("s_mov_b32 s27, 0x%x" % (s * 4096))
                g.vm("buffer_load_dwordx4 %s, v5, s[%d:%d], s27 offen offset:%d" % (ar(ks * 4), SA, SA + 3, k4 * 1024), ("st", s))
            out.append(f2)
        return out

    def issue_stage(s):
        for f in stage_loads(s):
            f()

    P = min(PRO_RES, nslots - 2) if ring else PRO_RES
    npro = min(nst, P, P0_RES)
    nxt = [npro]
    issue_stage(0)
    for nt in range(4):
        g.vm("buffer_load_dwordx2 %s, v%d, s[%d:%d], 0 offen offset:%d" % (vr(RES + 2 * nt, 2), RV, SR, SR + 3, nt * 512), "res")
    for s in range(1, npro):
        issue_stage(s)
    if CUT == 1:
        g.e("s_waitcnt vmcnt(0)")
        g.e("s_endpgm")
    g.ts(1)
    tsst = (0, 1, 2, 3) if nst == 4 else (0, 1, 5, 9, 13)

    items = [(ks, nt) for ks in range(nks) for nt in range(4)]

    def on_stage_start(s):
        g.wait_vm(("st", s))
        g.e("s_barrier")
        if s in tsst:
            g.ts(2 + tsst.index(s))
        out = []
        for _ in range(CU_RATE):
            if nxt[0] <= s + P and nxt[0] < nst:
                out += stage_loads(nxt[0])
                nxt[0] += 1
        return out

    def issue_reads(j, it):
        ks, nt = it
        s = ks // 4
        slot = s % nslots
        off = slot * 16384 + (ks % 4) * 32 * 128
        a = TA + nt
        if off >= 65536:
            off -= 65536
            a += 4
        w = WF + (j % NR) * 4
        return [lambda: g.lg("ds_read_b64_tr_b16 %s, v%d offset:%d" % (vr(w, 2), a, off), ("it", j)),
                lambda: g.lg("ds_read_b64_tr_b16 %s, v%d offset:%d" % (vr(w + 2, 2), a, off + 512), ("it", j))]

    def do_mfma(i, it):
        ks, nt = it
        w = WF + (i % NR) * 4
        acc = vr(ACC + nt * 4)
        return [lambda: g.e("v_mfma_f32_16x16x32_bf16 %s, %s, %s, %s" % (acc, vr(w), ar(ks * 4), "0" if ks == 0 else acc))]

    pipeline(g, items, D, lambda it: it[0] // 4, on_stage_start, issue_reads, do_mfma)
    g.ts(7)
    g.wait_vm("res")
    g.nop(16)
    T = WF
    for nt in range(4):
        a = ACC + nt * 4
        r = RES + 2 * nt
        g.e("v_lshlrev_b32 v%d, 16, v%d" % (T, r))
        g.e("v_and_b32 v%d, 0xffff0000, v%d" % (T + 1, r))
        g.e("v_lshlrev_b32 v%d, 16, v%d" % (T + 2, r + 1))
        g.e("v_and_b32 v%d, 0xffff0000, v%d" % (T + 3, r + 1))
        for k in range(4):
            g.e("v_add_f32 v%d, v%d, v%d" % (a + k, a + k, T + k))
        g.e("v_cvt_pk_bf16_f32 v%d, v%d, v%d" % (a, a, a + 1))
        g.e("v_cvt_pk_bf16_f32 v%d, v%d, v%d" % (a + 1, a + 2, a + 3))
        g.vm("buffer_store_dwordx2 %s, v6, s[%d:%d], 0 offen offset:%d" % (vr(a, 2), SO, SO + 3, nt * ostep), "out")
    g.ts(8)
    g.ts_dump(2 if nst == 4 else 4)
    g.end(name)
    nv = WF + NR * 4
    return dict(name=name, grid=256, lds=nslots * 16384 if ring else nst * 16384, vgpr=nv, agpr=nks * 4)


def ln_gemm(g, name, mode):
    qkv = mode == "qkv"
    g.begin(name, 256)
    NT = 6 if qkv else 14
    NPM = 6 if qkv else 7
    NW0 = NPM - 3
    CSP = (0, 3) if qkv else (0, 4)
    nks = 16
    nst = 8
    nslots = 5
    SLOTB = 28672
    CSB = 5 * SLOTB
    lds = CSB + 1024
    SA, SW, SO, SX = 4, 8, 12, 16
    ool = []
    if qkv and CPF:
        g.e("s_getpc_b64 s[32:33]")
        g.e("s_and_b32 s32, s32, 0xffffff00")
        g.e("s_and_b32 s33, s33, 0xffff")
        g.e("s_mov_b32 s34, L_code_end-%s" % name)
        g.e("s_mov_b32 s35, 0x00020000")
        g.e("s_lshr_b32 s36, s2, 3")
        g.e("s_lshl_b32 s36, s36, 2")
        g.e("s_add_u32 s36, s36, s3")
        g.e("s_lshl_b32 s36, s36, 10")
        g.e("v_lshlrev_b32 v180, 4, v1")
        g.vm("buffer_load_dwordx4 v[184:187], v180, s[32:35], s36 offen", "pf")
    if qkv:
        g.srd(SA, P_X, 0, 2048 * 1024)
        g.srd(SW, P_WQKV, 0, 512 * 3072)
        g.srd(SO, P_WS, WS_QKV, 6 * MB)
        g.srd(SX, P_WS, WS_XF, 2 * MB)
    else:
        g.srd(SA, P_WS, WS_H, 2048 * 1024)
        g.e("s_cmp_lt_u32 s3, 2")
        g.e("s_cselect_b32 s%d, s%d, s%d" % (SW, P_W1, P_W3))
        g.e("s_cselect_b32 s%d, s%d, s%d" % (SW + 1, P_W1 + 1, P_W3 + 1))
        g.e("s_mov_b32 s%d, 0x%x" % (SW + 2, 512 * 3584))
        g.e("s_mov_b32 s%d, 0x00020000" % (SW + 3))
        g.srd(SO, P_WS, WS_HMID, 2048 * 3584)
    g.e("s_lshr_b32 s22, s2, 3")
    if qkv:
        g.e("s_and_b32 s20, s2, 3")
        g.e("s_lshl_b32 s20, s20, 2")
        g.e("s_and_b32 s23, s22, 3")
        g.e("s_add_u32 s20, s20, s23")
        g.e("s_bfe_u32 s21, s2, 0x10002")
        g.e("s_lshl_b32 s21, s21, 3")
        g.e("s_lshr_b32 s23, s22, 2")
        g.e("s_add_u32 s21, s21, s23")
    else:
        g.e("s_and_b32 s20, s2, 1")
        g.e("s_lshl_b32 s20, s20, 3")
        g.e("s_and_b32 s23, s22, 7")
        g.e("s_add_u32 s20, s20, s23")
        g.e("s_bfe_u32 s21, s2, 0x20001")
        g.e("s_lshl_b32 s21, s21, 2")
        g.e("s_lshr_b32 s23, s22, 3")
        g.e("s_add_u32 s21, s21, s23")
    g.e("s_lshl_b32 s22, s20, 7")
    g.e("s_lshl_b32 s23, s3, 5")
    g.e("s_add_u32 s22, s22, s23")
    g.e("v_and_b32 v3, 15, v1")
    g.e("v_lshrrev_b32 v4, 4, v1")
    g.e("v_bfe_u32 v9, v1, 2, 2")
    ST = 40
    for p in range(NPM):
        g.e("s_add_u32 s%d, s3, %d" % (ST + p, p))
        if p >= NW0:
            g.e("s_cmp_ge_u32 s%d, %d" % (ST + p, NPM))
            g.e("s_cselect_b32 s26, %d, 0" % NPM)
            g.e("s_sub_u32 s%d, s%d, s26" % (ST + p, ST + p))
    if qkv:
        g.e("v_lshrrev_b32 v10, 3, v1")
        g.e("v_and_b32 v11, 7, v1")
        g.e("v_xor_b32 v11, v11, v10")
        g.e("v_lshlrev_b32 v10, 10, v10")
        g.e("v_lshl_add_u32 v5, v11, 4, v10")
        g.e("s_lshl_b32 s30, s22, 10")
        g.e("s_lshl_b32 s31, s3, 12")
        g.e("s_mul_i32 s24, s3, 192")
        g.e("v_add_u32 v10, s24, v1")
        DV = 16
        for q in range(3):
            g.e("v_add_u32 v11, %d, v10" % (q * 64))
            g.e("v_mul_u32_u24 v12, 5462, v11")
            g.e("v_lshrrev_b32 v12, 16, v12")
            g.e("v_mul_u32_u24 v13, 12, v12")
            g.e("v_sub_u32 v13, v11, v13")
            g.e("v_bfe_u32 v14, v12, 3, 1")
            g.e("v_lshlrev_b32 v14, 1, v14")
            g.e("v_xor_b32 v13, v13, v14")
            g.e("v_mul_u32_u24 v14, 3072, v12")
            g.e("v_lshl_add_u32 v%d, v13, 4, v14" % (DV + q))
        g.e("s_mul_i32 s24, s21, 192")
        g.e("s_mul_i32 s25, s3, 3072")
        g.e("v_add_u32 v10, s22, v3")
        g.e("v_lshlrev_b32 v7, 5, v10")
        g.e("v_lshl_add_u32 v7, v4, 3, v7")
        g.e("s_lshl_b32 s26, s22, 10")
        g.e("s_lshl_b32 s27, s21, 10")
        g.e("s_add_u32 s26, s26, s27")
        g.e("v_lshlrev_b32 v8, 4, v1")
        g.e("v_add_u32 v8, s26, v8")
        g.e("v_and_b32 v10, 7, v1")
        g.e("v_xor_b32 v10, v10, v4")
        g.e("v_lshlrev_b32 v11, 7, v3")
        g.e("v_lshl_add_u32 v11, v10, 4, v11")
        g.e("v_add_u32 v19, s31, v11")
        g.e("v_xor_b32 v20, 64, v19")
        XA = 19
        for b in range(1, 3):
            g.e("v_add_u32 v%d, 0x%x, v19" % (XA + 2 * b, b * 2 * SLOTB))
            g.e("v_add_u32 v%d, 0x%x, v20" % (XA + 2 * b + 1, b * 2 * SLOTB))
        g.e("v_lshl_add_u32 v10, v4, 3, v9")
        g.e("v_mul_u32_u24 v10, 192, v10")
        g.e("v_bfe_u32 v11, v1, 1, 1")
        g.e("v_lshl_add_u32 v10, v11, 4, v10")
        g.e("v_and_b32 v11, 1, v1")
        g.e("v_lshl_add_u32 v10, v11, 3, v10")
        g.e("v_add_u32 v10, 0x4000, v10")
        g.e("v_bfe_u32 v11, v1, 4, 1")
        g.e("v_lshlrev_b32 v11, 5, v11")
        TA = 25
        NA = 5
        ai = lambda p: (p & 1) if p < NW0 else p - 1
        for k, p in enumerate((0, 1, 3, 4, 5)):
            g.e("s_sub_u32 s26, s%d, %d" % (ST + p, p))
            g.e("s_lshl_b32 s26, s26, 5")
            g.e("v_add_u32 v12, s26, v10")
            g.e("s_and_b32 s27, s%d, 1" % (ST + p))
            g.e("s_lshl_b32 s27, s27, 1")
            g.e("s_sub_u32 s27, 1, s27")
            g.e("v_mul_lo_u32 v13, s27, v11")
            g.e("v_add_u32 v%d, v12, v13" % (TA + k))
        for b in range(1, 3):
            for k in range(NA):
                g.e("v_add_u32 v%d, 0x%x, v%d" % (TA + NA * b + k, b * 2 * SLOTB, TA + k))
        nextv = TA + 3 * NA
    else:
        g.e("s_lshl_b32 s26, s22, 10")
        g.e("v_lshlrev_b32 v5, 4, v1")
        g.e("v_add_u32 v5, s26, v5")
        g.e("v_add_u32 v6, 0x4000, v5")
        g.e("s_lshr_b32 s26, s22, 4")
        g.e("s_mul_i32 s26, s26, 57344")
        g.e("s_mul_i32 s27, s21, 3584")
        g.e("s_add_u32 s26, s26, s27")
        g.e("v_lshlrev_b32 v7, 4, v3")
        g.e("v_bfe_u32 v10, v1, 5, 1")
        g.e("v_lshl_add_u32 v7, v10, 8, v7")
        g.e("v_bfe_u32 v10, v1, 4, 1")
        g.e("v_lshl_add_u32 v7, v10, 3, v7")
        g.e("v_add_u32 v7, s26, v7")
        g.e("s_mul_i32 s23, s21, 224")
        g.e("s_and_b32 s24, s3, 1")
        g.e("s_mul_i32 s24, s24, 448")
        g.e("v_add_u32 v10, s24, v1")
        DV = 16
        for q in range(7):
            g.e("v_add_u32 v11, %d, v10" % (q * 64))
            g.e("v_mul_u32_u24 v12, 4682, v11")
            g.e("v_lshrrev_b32 v12, 16, v12")
            g.e("v_mul_u32_u24 v13, 14, v12")
            g.e("v_sub_u32 v13, v11, v13")
            g.e("v_and_b32 v14, 0x33, v12")
            g.e("v_bfe_u32 v15, v12, 2, 1")
            g.e("v_lshl_or_b32 v14, v15, 3, v14")
            g.e("v_bfe_u32 v15, v12, 3, 1")
            g.e("v_lshl_or_b32 v14, v15, 2, v14")
            g.e("v_mul_u32_u24 v14, 3584, v14")
            g.e("v_lshl_add_u32 v%d, v13, 4, v14" % (DV + q))
        g.e("s_mov_b32 s24, s23")
        g.e("s_mul_i32 s25, s3, 7168")
        g.e("v_bfe_u32 v10, v1, 5, 1")
        g.e("v_lshl_add_u32 v10, v10, 4, v9")
        g.e("v_bfe_u32 v11, v1, 4, 1")
        g.e("v_lshl_add_u32 v10, v11, 2, v10")
        g.e("v_mul_u32_u24 v10, 224, v10")
        g.e("v_and_b32 v11, 3, v1")
        g.e("v_lshl_add_u32 v10, v11, 3, v10")
        TA = 23
        NA = 4
        ai = lambda p: 0 if p < NW0 else p - 3
        for k, p in enumerate((0, 4, 5, 6)):
            g.e("s_lshl_b32 s26, s%d, 5" % (ST + p))
            g.e("v_add_u32 v%d, s26, v10" % (TA + k))
        for b in range(1, 3):
            for k in range(NA):
                g.e("v_add_u32 v%d, 0x%x, v%d" % (TA + NA * b + k, b * 2 * SLOTB, TA + k))
        nextv = TA + 3 * NA
    nextv = (nextv + 3) // 4 * 4
    ONES = nextv
    for k in range(4):
        g.e("v_mov_b32 v%d, 0x3f803f80" % (ONES + k))
    SUM = ONES + 4
    GRAM = SUM + 8
    CSA = GRAM + 8
    WF = CSA + 16
    D = 6 if qkv else 7
    NR = 8
    nextv = WF + NR * 4
    AX = 0
    ACCV = nextv
    nextv += 2 * NT * 4
    acc = lambda tt, ct: vr(ACCV + (tt * NT + ct) * 4)
    if qkv:
        XF = nextv
        nextv += 16
        XS = nextv
        nextv += 8
        xfr = lambda ks, tt: vr(XF + ((ks & 1) * 2 + tt) * 4)
    else:
        xfr = lambda ks, tt: ar(AX + (tt * 16 + ks) * 4)

    def stage_loads(s):
        wl, al = [], []
        slot = s % nslots
        if qkv:
            for q in range(3):
                def f(q=q):
                    g.e("s_add_u32 m0, s25, 0x%x" % (slot * SLOTB + 16384 + q * 1024))
                    g.e("s_add_u32 s26, s24, 0x%x" % (s * 64 * 3072))
                    g.vm("buffer_load_dwordx4 v%d, s[%d:%d], s26 offen lds" % (DV + q, SW, SW + 3), ("st", s))
                wl.append(f)
            for q in range(4):
                def f(q=q):
                    g.e("s_add_u32 m0, s31, 0x%x" % (slot * SLOTB + q * 1024))
                    g.e("s_add_u32 s26, s30, 0x%x" % (q * 8192 + s * 128))
                    g.vm("buffer_load_dwordx4 v5, s[%d:%d], s26 offen lds" % (SA, SA + 3), ("st", s))
                al.append(f)
        else:
            for q in range(7):
                def f(q=q):
                    g.e("s_add_u32 m0, s25, 0x%x" % (slot * SLOTB + q * 1024))
                    g.e("s_add_u32 s26, s24, 0x%x" % (s * 64 * 3584))
                    g.vm("buffer_load_dwordx4 v%d, s[%d:%d], s26 offen lds" % (DV + q, SW, SW + 3), ("st", s))
                wl.append(f)
            for k2 in range(2):
                for tt in range(2):
                    def f(k2=k2, tt=tt):
                        ks = s * 2 + k2
                        g.e("s_mov_b32 s27, 0x%x" % (s * 2048))
                        g.vm("buffer_load_dwordx4 %s, v%d, s[%d:%d], s27 offen offset:%d" % (
                            ar(AX + (tt * 16 + ks) * 4), 5 + tt, SA, SA + 3, k2 * 1024), ("st", s))
                    al.append(f)
        out = []
        while wl or al:
            if wl:
                out.append(wl.pop(0))
            if al and (len(al) >= len(wl) or not wl or len(out) % 2 == 0):
                out.append(al.pop(0))
        return out

    def issue_stage(s):
        for f in stage_loads(s):
            f()

    P = min(PRO_LN, nslots - 2)
    nxt = [min(P, P0_LN)]
    for s in range(nxt[0]):
        issue_stage(s)
    g.ts(1)

    items = [(ks, ct) for ks in range(nks) for ct in range(NT)]

    def on_stage_start(s):
        g.wait_vm(("st", s))
        g.e("s_barrier")
        if s in (0, 1, 3, 5, 7):
            g.ts(2 + (0, 1, 3, 5, 7).index(s))
        out = []
        for _ in range(CU_RATE):
            if nxt[0] <= s + P and nxt[0] < nst:
                out += stage_loads(nxt[0])
                nxt[0] += 1
        return out

    def issue_reads(j, it):
        ks, ct = it
        w = WF + (j % NR) * 4
        s = ks // 2
        slot = s % nslots
        b, so = slot >> 1, (slot & 1) * SLOTB
        out = []
        if qkv:
            if ct == 0:
                for tt in range(2):
                    out.append(lambda tt=tt: g.lg("ds_read_b128 %s, v%d offset:%d" % (xfr(ks, tt), XA + 2 * b + (ks & 1), so + tt * 2048), ("it", j)))
            a = TA + NA * b + ai(ct)
            off = so + (ks % 2) * 32 * 192 + ct * 32
            off2 = off + 4 * 192
        else:
            mat, p = ct // 7, ct % 7
            a = TA + NA * b + ai(p)
            off = so + mat * 14336 + (ks % 2) * 32 * 224 + (p * 32 if p < NW0 else 0)
            off2 = off + 8 * 224
        out.append(lambda: g.lg("ds_read_b64_tr_b16 %s, v%d offset:%d" % (vr(w, 2), a, off), ("it", j)))
        out.append(lambda: g.lg("ds_read_b64_tr_b16 %s, v%d offset:%d" % (vr(w + 2, 2), a, off2), ("it", j)))
        return out

    def do_mfma(i, it):
        ks, ct = it
        w = WF + (i % NR) * 4
        out = []
        def mf(d, a, b):
            out.append(lambda: g.e("v_mfma_f32_16x16x32_bf16 %s, %s, %s, %s" % (d, a, b, "0" if ks == 0 else d)))
        for tt in range(2):
            mf(acc(tt, ct), vr(w), xfr(ks, tt))
        mat, p = ct // NPM, ct % NPM
        if p in CSP:
            mf(vr(CSA + (mat * 2 + CSP.index(p)) * 4), vr(w), vr(ONES))
        if ct in (1, 2):
            tt = ct - 1
            x = xfr(ks, tt)
            mf(vr(SUM + tt * 4), vr(ONES), x)
            mf(vr(GRAM + tt * 4), x, x)
        if qkv and ct == 4:
            def f():
                L = g.newlabel("xs")
                g.e("s_cmp_eq_u32 s21, %d" % ks)
                g.e("s_cbranch_scc1 %s" % L)
                g.label(L + "_r")
                ool.append((L, ks))
            out.append(f)
        return out

    pipeline(g, items, D, lambda it: it[0] // 2, on_stage_start, issue_reads, do_mfma)
    if qkv:
        g.vm("buffer_store_dwordx4 %s, v8, s[%d:%d], 0 offen" % (vr(XS), SX, SX + 3), "out")
        g.e("v_add_u32 v8, 0x4000, v8")
        g.vm("buffer_store_dwordx4 %s, v8, s[%d:%d], 0 offen" % (vr(XS + 4), SX, SX + 3), "out")
    g.nop(16)
    g.ts(7)
    T = WF
    g.e("v_lshlrev_b32 v%d, 4, v4" % T)
    g.e("v_add_u32 v%d, 0x%x, v%d" % (T + 1, CSB, T))
    for k in range(2):
        g.e("s_lshl_b32 s27, s%d, 6" % (ST + CSP[k]))
        g.e("v_add_u32 v%d, s27, v%d" % (T + 2 + k, T + 1))
    g.e("s_mov_b32 s28, 0x00010001")
    g.e("s_mov_b32 s29, 0x00010001")
    g.e("s_mov_b64 exec, s[28:29]")
    for mat in range(NT // NPM):
        for k in range(2):
            g.lg("ds_write_b128 v%d, %s offset:%d" % (T + 2 + k, vr(CSA + (mat * 2 + k) * 4), mat * NPM * 64), "csw")
    g.e("s_mov_b64 exec, -1")
    for r in range(4):
        m = 0
        for gg in range(4):
            m |= 1 << (20 * gg + r)
        g.e("s_mov_b32 s%d, 0x%x" % (30 + 2 * r, m & 0xffffffff))
        g.e("s_mov_b32 s%d, 0x%x" % (31 + 2 * r, m >> 32))
    for tt in range(2):
        d = T + 4
        g.e("v_mov_b32 v%d, 0" % d)
        for r in range(4):
            g.e("v_cndmask_b32_e64 v%d, v%d, v%d, s[%d:%d]" % (d, d, GRAM + tt * 4 + r, 30 + 2 * r, 31 + 2 * r))
        g.e("v_mov_b32 v%d, v%d" % (d + 1, d))
        g.nop(2)
        g.e("v_permlane16_swap_b32 v%d, v%d" % (d, d + 1))
        g.nop(1)
        g.e("v_add_f32 v%d, v%d, v%d" % (d, d, d + 1))
        g.e("v_mov_b32 v%d, v%d" % (d + 1, d))
        g.nop(2)
        g.e("v_permlane32_swap_b32 v%d, v%d" % (d, d + 1))
        g.nop(1)
        g.e("v_add_f32 v%d, v%d, v%d" % (d, d, d + 1))
        m = SUM + tt * 4
        g.e("v_mul_f32 v%d, %s, v%d" % (m, f32hex(1.0 / 512), m))
        g.e("v_mul_f32 v%d, %s, v%d" % (d, f32hex(1.0 / 512), d))
        g.e("v_fma_f32 v%d, -v%d, v%d, v%d" % (d, m, m, d))
        g.e("v_max_f32 v%d, 0, v%d" % (d, d))
        g.e("v_add_f32 v%d, %s, v%d" % (m + 3, f32hex(1e-5), d))
        g.e("v_rsq_f32 v%d, v%d" % (m + 1, m + 3))
        g.nop(1)
        g.e("v_mul_f32 v%d, %s, v%d" % (m + 2, f32hex(QSCALE if qkv else -LOG2E), m + 1))
    g.wait_lg("csw")
    g.e("s_barrier")
    CS = T + 8
    AD = T + 6
    def pk(op, d, a, b, c=None, sel=None, neg=False):
        ops = [a, b] + ([c] if c is not None else [])
        sel = sel or {}
        lo = [sel.get(i, (0, 1))[0] for i in range(len(ops))]
        hi = [sel.get(i, (0, 1))[1] for i in range(len(ops))]
        t = "%s %s, %s" % (op, vr(d, 2), ", ".join(vr(o, 2) for o in ops))
        t += " op_sel:[%s] op_sel_hi:[%s]" % (",".join(map(str, lo)), ",".join(map(str, hi)))
        if neg:
            z = ["1"] + ["0"] * (len(ops) - 1)
            t += " neg_lo:[%s] neg_hi:[%s]" % (",".join(z), ",".join(z))
        g.e(t)

    def cs_read(p):
        bb = CS + (p & 1) * 8
        g.e("s_lshl_b32 s27, s%d, 6" % (ST + p))
        g.e("v_add_u32 v%d, s27, v%d" % (AD + (p & 1), T + 1))
        g.lg("ds_read_b128 %s, v%d" % (vr(bb), AD + (p & 1)), ("cs", p))
        if not qkv:
            g.lg("ds_read_b128 %s, v%d offset:448" % (vr(bb + 4), AD + (p & 1)), ("cs", p))
    cs_read(0)
    if qkv:
        for p in range(NPM):
            if p + 1 < NPM:
                cs_read(p + 1)
            g.wait_lg(("cs", p))
            bb = CS + (p & 1) * 8
            g.e("s_mul_i32 s26, s21, 6")
            g.e("s_add_u32 s26, s26, s%d" % (ST + p))
            g.e("s_cmp_lt_u32 s26, 32")
            g.e("s_cselect_b32 s28, -1, 0")
            g.e("s_mov_b32 s29, s28")
            g.e("s_lshl_b32 s26, s26, 16")
            for tt in range(2):
                a = ACCV + (tt * NT + p) * 4
                m = SUM + tt * 4
                rs = T + 4
                g.e("v_cndmask_b32_e64 v%d, v%d, v%d, s[28:29]" % (rs, m + 1, m + 2))
                pk("v_pk_fma_f32", a, m, bb, a, sel={0: (0, 0)}, neg=True)
                pk("v_pk_fma_f32", a + 2, m, bb + 2, a + 2, sel={0: (0, 0)}, neg=True)
                pk("v_pk_mul_f32", a, a, rs, sel={1: (0, 0)})
                pk("v_pk_mul_f32", a + 2, a + 2, rs, sel={1: (0, 0)})
                g.e("v_cvt_pk_bf16_f32 v%d, v%d, v%d" % (a, a, a + 1))
                g.e("v_cvt_pk_bf16_f32 v%d, v%d, v%d" % (a + 1, a + 2, a + 3))
                g.vm("buffer_store_dwordx2 %s, v7, s[%d:%d], s26 offen offset:%d" % (vr(a, 2), SO, SO + 3, tt * 512), "out")
    else:
        g.e("v_add_u32 v8, 0x%x, v7" % 57344)
        E = CS + 16
        for p in range(NPM):
            if p + 1 < NPM:
                cs_read(p + 1)
            g.wait_lg(("cs", p))
            bb = CS + (p & 1) * 8
            g.e("s_lshl_b32 s26, s%d, 9" % (ST + p))
            GV = [ACCV + (tt * NT + p) * 4 for tt in range(2)]
            UV = [ACCV + (tt * NT + 7 + p) * 4 for tt in range(2)]
            M = [SUM + tt * 4 for tt in range(2)]
            EV = [E + tt * 4 for tt in range(2)]
            for tt in range(2):
                for h in (0, 2):
                    pk("v_pk_fma_f32", GV[tt] + h, M[tt], bb + h, GV[tt] + h, sel={0: (0, 0)}, neg=True)
                for h in (0, 2):
                    pk("v_pk_mul_f32", EV[tt] + h, GV[tt] + h, M[tt] + 2, sel={1: (0, 0)})
            for tt in range(2):
                for k in range(4):
                    g.e("v_exp_f32 v%d, v%d" % (EV[tt] + k, EV[tt] + k))
            for tt in range(2):
                for h in (0, 2):
                    pk("v_pk_fma_f32", UV[tt] + h, M[tt], bb + 4 + h, UV[tt] + h, sel={0: (0, 0)}, neg=True)
                for h in (0, 2):
                    pk("v_pk_mul_f32", UV[tt] + h, UV[tt] + h, GV[tt] + h)
            for tt in range(2):
                for h in (0, 2):
                    pk("v_pk_fma_f32", EV[tt] + h, EV[tt] + h, M[tt] + 2, M[tt] + 2, sel={1: (1, 1), 2: (1, 1)})
            for tt in range(2):
                for k in range(4):
                    g.e("v_rcp_f32 v%d, v%d" % (EV[tt] + k, EV[tt] + k))
            g.nop(1)
            for tt in range(2):
                for h in (0, 2):
                    pk("v_pk_mul_f32", UV[tt] + h, UV[tt] + h, EV[tt] + h)
                g.e("v_cvt_pk_bf16_f32 v%d, v%d, v%d" % (UV[tt], UV[tt], UV[tt] + 1))
                g.e("v_cvt_pk_bf16_f32 v%d, v%d, v%d" % (UV[tt] + 1, UV[tt] + 2, UV[tt] + 3))
                g.vm("buffer_store_dwordx2 %s, v%d, s[%d:%d], s26 offen" % (vr(UV[tt], 2), 7 + tt, SO, SO + 3), "out")
    g.ts(8)
    g.ts_dump(0 if qkv else 3)
    g.end(name)
    for L, ks in ool:
        g.label(L)
        for k in range(8):
            g.e("v_mov_b32 v%d, v%d" % (XS + k, XF + (ks & 1) * 8 + k))
        g.e("s_branch %s_r" % L)
    return dict(name=name, grid=256, lds=lds, vgpr=max(nextv, 188) if qkv else nextv, agpr=0 if qkv else 128)


def attention(g, name):
    g.begin(name, 512)
    SQ, SO = 4, 8
    g.srd(SQ, P_WS, WS_QKV, 6 * MB)
    g.srd(SO, P_WS, WS_ATTN, 2 * MB)
    VB = 0
    OB = 12288
    lds = OB + 1024
    g.e("s_and_b32 s20, s2, 31")
    g.e("s_lshr_b32 s21, s2, 5")
    g.e("s_lshl_b32 s22, s21, 7")
    g.e("s_lshl_b32 s23, s3, 5")
    g.e("s_add_u32 s23, s22, s23")
    g.e("s_lshr_b32 s24, s23, 5")
    g.e("s_sub_i32 s24, 8, s24")
    g.e("s_max_i32 s24, s24, 0")
    g.e("v_and_b32 v3, 31, v1")
    g.e("v_lshrrev_b32 v4, 5, v1")
    g.e("s_lshl_b32 s25, s20, 16")
    g.e("v_add_u32 v5, s23, v3")
    g.e("v_lshlrev_b32 v5, 5, v5")
    g.e("v_lshl_add_u32 v5, v4, 4, v5")
    g.e("v_add_u32 v5, s25, v5")
    QF = 8
    KF = 12
    g.vm("buffer_load_dwordx4 %s, v5, s[%d:%d], 0 offen" % (vr(QF), SQ, SQ + 3), "q")
    g.e("v_add_u32 v6, 0x%x, v5" % (2 * MB - 8192))
    for t in range(9):
        if t == 4 or t == 8:
            g.e("v_add_u32 v6, 0x1000, v6")
        g.vm("buffer_load_dwordx4 %s, v6, s[%d:%d], 0 offen offset:%d" % (vr(KF + 4 * t), SQ, SQ + 3, (t % 4) * 1024), ("k", t))
    g.e("s_lshl_b32 s26, s22, 5")
    g.e("s_add_u32 s26, s26, s25")
    g.e("s_add_u32 s26, s26, 0x%x" % (4 * MB - 8192))
    g.e("s_mul_i32 s27, s3, 3072")
    g.e("s_add_u32 s26, s26, s27")
    g.e("v_lshlrev_b32 v7, 4, v1")
    g.e("v_add_u32 v7, s26, v7")
    for q in range(3):
        g.e("s_add_u32 m0, s27, 0x%x" % (VB + q * 1024))
        if q:
            g.e("v_add_u32 v7, 0x400, v7")
        else:
            g.e("s_nop 0")
        g.vm("buffer_load_dwordx4 v7, s[%d:%d], 0 offen lds" % (SQ, SQ + 3), "v")
    NPF = 0
    def do_pf():
        g.srd(32, P_WO, 0, 512 * 1024)
        g.srd(36, P_W1, 0, 512 * 3584)
        g.srd(40, P_W3, 0, 512 * 3584)
        g.srd(44, P_W2, 0, 1792 * 1024)
        PV = 176
        g.e("v_lshlrev_b32 v%d, 4, v1" % PV)
        g.e("s_lshl_b32 s28, s2, 2")
        g.e("s_add_u32 s28, s28, s3")
        g.e("s_lshl_b32 s28, s28, 10")
        for sr in (32, 36, 40, 44):
            g.vm("buffer_load_dwordx4 %s, v%d, s[%d:%d], s28 offen" % (vr(PV + 4), PV, sr, sr + 3), "pf")
    if PFM == 'A':
        do_pf()
        NPF = 4
    M0_ = 48
    M8_ = 64
    NM = 80
    S0 = 96
    PF = 128
    VF = 144
    OA = 160
    for k in range(4):
        g.e("v_mov_b32 v%d, 0x3f803f80" % (S0 + k))
    g.e("v_lshlrev_b32 v2, 4, v1")
    g.lg("ds_write_b128 v2, %s offset:%d" % (vr(S0), OB), "ones")
    g.e("v_lshlrev_b32 v2, 2, v4")
    g.e("v_sub_u32 v2, v3, v2")
    NEG = f32hex(-1e30)
    g.e("v_mov_b32 v%d, %s" % (S0 + 4, NEG))
    for r in range(16):
        jc = (r & 3) + 8 * (r >> 2)
        g.e("v_cmp_gt_i32 vcc, %d, v2" % jc)
        g.nop(2)
        g.e("v_cndmask_b32 v%d, v%d, 0, vcc" % (M0_ + r, S0 + 4))
        g.e("v_cndmask_b32 v%d, 0, v%d, vcc" % (M8_ + r, S0 + 4))
    g.e("v_bfe_u32 v2, v1, 2, 2")
    g.e("v_lshl_add_u32 v2, v4, 2, v2")
    g.e("v_lshlrev_b32 v2, 5, v2")
    g.e("v_and_b32 v5, 3, v1")
    g.e("v_lshl_add_u32 v2, v5, 3, v2")
    g.e("s_lshl_b32 s27, s3, 10")
    g.e("s_add_u32 s27, s27, 0x%x" % VB)
    g.e("v_add_u32 v2, s27, v2")
    g.e("v_lshlrev_b32 v5, 7, v4")
    g.e("v_sub_u32 v5, 0x%x, v5" % (OB + 128))
    g.e("v_bfe_u32 v6, v1, 4, 1")
    g.e("v_cmp_eq_u32 vcc, 1, v6")
    g.nop(2)
    g.e("v_cndmask_b32 v2, v2, v5, vcc")
    g.e("v_mov_b32 v5, 0x400")
    g.e("v_cndmask_b32 v5, v5, 0, vcc")
    g.e("v_mul_lo_u32 v6, v5, s24")
    g.e("v_add_u32 v2, v2, v6")
    VA, VI = 2, 5
    MX = 6
    g.e("v_mov_b32 v%d, %s" % (MX, NEG))
    g.wait_vm("q")
    def smfma(t, dst, c):
        g.e("v_mfma_f32_32x32x16_bf16 %s, %s, %s, %s" % (vr(dst, 16), vr(KF + 4 * t), vr(QF), c))
    for t in range(9):
        L = g.newlabel("p1")
        if t < 8:
            g.e("s_cmp_gt_u32 s24, %d" % t)
            g.e("s_cbranch_scc1 %s" % L)
        g.e("s_waitcnt vmcnt(%d)" % (NPF + 3 + 8 - t))
        c = vr(M0_, 16) if t == 0 else (vr(M8_, 16) if t == 8 else "0")
        dst = S0 + 16 * (t & 1)
        smfma(t, dst, c)
        g.nop(18)
        for r in range(0, 16, 2):
            g.e("v_max3_f32 v%d, v%d, v%d, v%d" % (MX, MX, dst + r, dst + r + 1))
        g.label(L)
    g.vmq = [x for x in g.vmq if x in ("v", "pf")]
    if PFM == 'C':
        do_pf()
    g.e("v_mov_b32 v%d, v%d" % (MX + 1, MX))
    g.nop(2)
    g.e("v_permlane32_swap_b32 v%d, v%d" % (MX, MX + 1))
    g.nop(1)
    g.e("v_max_f32 v%d, v%d, v%d" % (MX, MX, MX + 1))
    for r in range(16):
        g.e("v_sub_f32 v%d, 0, v%d" % (NM + r, MX))
    for r in range(16):
        g.e("v_sub_f32 v%d, v%d, v%d" % (M0_ + r, M0_ + r, MX))
        g.e("v_sub_f32 v%d, v%d, v%d" % (M8_ + r, M8_ + r, MX))
    for r in range(16):
        g.e("v_mov_b32 v%d, 0" % (OA + r))
    g.wait_vm("v")
    g.wait_lg("ones")
    g.e("s_barrier")
    if PFM == 'D':
        do_pf()
    for t in range(9):
        L = g.newlabel("p2")
        if t < 8:
            g.e("s_cmp_gt_u32 s24, %d" % t)
            g.e("s_cbranch_scc1 %s" % L)
        vf = VF + 8 * (t & 1)
        for k in range(4):
            g.lg("ds_read_b64_tr_b16 %s, v%d offset:%d" % (vr(vf + 2 * k, 2), VA, 256 * k), ("vf", t))
        g.e("v_add_u32 v%d, v%d, v%d" % (VA, VA, VI))
        c = vr(M0_, 16) if t == 0 else (vr(M8_, 16) if t == 8 else vr(NM, 16))
        dst = S0 + 16 * (t & 1)
        smfma(t, dst, c)
        g.nop(18)
        for r in range(16):
            g.e("v_exp_f32 v%d, v%d" % (dst + r, dst + r))
        pf = PF + 8 * (t & 1)
        g.nop(1)
        for r in range(8):
            g.e("v_cvt_pk_bf16_f32 v%d, v%d, v%d" % (pf + r, dst + 2 * r, dst + 2 * r + 1))
        g.wait_lg(("vf", t))
        g.nop(2)
        g.e("v_mfma_f32_32x32x16_bf16 %s, %s, %s, %s" % (vr(OA, 16), vr(vf), vr(pf), vr(OA, 16)))
        g.e("v_mfma_f32_32x32x16_bf16 %s, %s, %s, %s" % (vr(OA, 16), vr(vf + 4), vr(pf + 4), vr(OA, 16)))
        g.label(L)
    g.nop(20)
    g.e("v_rcp_f32 v%d, v%d" % (MX, OA + 8))
    g.nop(1)
    for r in range(8):
        g.e("v_mul_f32 v%d, v%d, v%d" % (OA + r, OA + r, MX))
    for r in range(4):
        g.e("v_cvt_pk_bf16_f32 v%d, v%d, v%d" % (PF + r, OA + 2 * r, OA + 2 * r + 1))
    g.e("v_bfe_u32 v7, v3, 4, 1")
    g.e("v_lshlrev_b32 v7, 14, v7")
    g.e("v_and_b32 v6, 15, v3")
    g.e("v_lshl_add_u32 v7, v6, 4, v7")
    g.e("v_lshl_add_u32 v7, v4, 3, v7")
    g.e("s_lshl_b32 s26, s20, 9")
    g.e("s_lshl_b32 s27, s23, 10")
    g.e("s_add_u32 s26, s26, s27")
    g.vm("buffer_store_dwordx2 %s, v7, s[%d:%d], s26 offen" % (vr(PF, 2), SO, SO + 3), "o")
    g.vm("buffer_store_dwordx2 %s, v7, s[%d:%d], s26 offen offset:256" % (vr(PF + 2, 2), SO, SO + 3), "o")
    g.end(name)
    return dict(name=name, grid=512, lds=lds, vgpr=184, agpr=0)


def main():
    g = G()
    ks = []
    ks.append(ln_gemm(g, "k1_qkv_kernel", "qkv"))
    ks.append(attention(g, "k2_attn_kernel"))
    ks.append(gemm_res(g, "k3_wo_kernel", P_WS, WS_ATTN, 1024, 512, P_WO, P_WS, WS_XF, P_WS, WS_H, 8, True))
    ks.append(ln_gemm(g, "k4_ffn_kernel", "ffn"))
    ks.append(gemm_res(g, "k5_w2_kernel", P_WS, WS_HMID, 3584, 1792, P_W2, P_WS, WS_H, P_OUT, 0, 8, False))
    out = []
    for k in ks:
        out.append("; @launch kernel=%s grid=(%d,1,1) block=(256,1,1) lds=%d" % (k["name"], k["grid"], k["lds"]))
    out.append('.amdgcn_target "amdgcn-amd-amdhsa--gfx950"')
    out.append(".text")
    out += g.lines
    out.append("L_code_end:")
    out.append('.section .rodata,"a"')
    for k in ks:
        accoff = (k["vgpr"] + 3) // 4 * 4
        assert accoff <= 256
        tot = accoff + k["agpr"]
        assert tot <= 512
        out.append(".p2align 6")
        out.append(".amdhsa_kernel %s" % k["name"])
        out.append("  .amdhsa_next_free_vgpr %d" % tot)
        out.append("  .amdhsa_next_free_sgpr 102")
        out.append("  .amdhsa_accum_offset %d" % accoff)
        out.append("  .amdhsa_group_segment_fixed_size 0")
        out.append("  .amdhsa_kernarg_size 80")
        out.append("  .amdhsa_user_sgpr_count 2")
        out.append("  .amdhsa_user_sgpr_kernarg_segment_ptr 1")
        out.append("  .amdhsa_system_sgpr_workgroup_id_x 1")
        out.append(".end_amdhsa_kernel")
    dst = sys.argv[1] if len(sys.argv) > 1 else "sequential_preLN__sliding_block__glu_gated_swiglu__prompt.s"
    open(dst, "w").write("\n".join(out) + "\n")
    for k in ks:
        print(k)


if __name__ == "__main__":
    main()
```

```python
import sys

MB = 1 << 20
import os
CUT = int(os.environ.get('CUT', '-1'))
EXP = os.environ.get('EXP', '')
TS = int(os.environ.get('TS', '0'))
PRO_RES = int(os.environ.get('PRO_RES', '4'))
PRO_LN = int(os.environ.get('PRO_LN', '4'))
P0_RES = int(os.environ.get('P0_RES', '2'))
P0_LN = int(os.environ.get('P0_LN', '2'))
CU_RATE = int(os.environ.get('CU_RATE', '2'))
PFM = os.environ.get('PF', 'C')
CPF = int(os.environ.get('CPF', '0'))
K1PF = int(os.environ.get('K1PF', '0'))
TLB1 = int(os.environ.get('TLB1', '0'))
TLB2 = int(os.environ.get('TLB2', '0'))
WS_QKV = 0
WS_ATTN = 6 * MB
WS_H = 8 * MB
WS_HMID = 10 * MB
WS_XF = 18 * MB
LOG2E = 1.4426950408889634
QSCALE = 0.25 * LOG2E

P_X, P_WQKV, P_WO, P_BX, P_W1, P_W3, P_W2, P_OUT, P_DBG, P_WS = [64 + 2 * i for i in range(10)]


def f32hex(x):
    import struct
    return "0x%08x" % struct.unpack("<I", struct.pack("<f", x))[0]


class G:
    def __init__(self):
        self.lines = []
        self.vmq = []
        self.lgq = []
        self.nlabel = 0

    def e(self, s):
        self.lines.append("    " + s)

    def label(self, s):
        self.lines.append(s + ":")

    def newlabel(self, p):
        self.nlabel += 1
        return "L_%s_%d" % (p, self.nlabel)

    def vm(self, s, tag):
        self.e(s)
        self.vmq.append(tag)
        assert len(self.vmq) <= 63, "too many outstanding vmem"

    def lg(self, s, tag):
        self.e(s)
        self.lgq.append(tag)
        assert len(self.lgq) <= 15, "too many outstanding lgkm"

    def _wait(self, q, tag):
        if tag not in q:
            return None, q
        idx = len(q) - 1 - q[::-1].index(tag)
        return len(q) - 1 - idx, q[idx + 1:]

    def wait_vm(self, tag):
        n, self.vmq = self._wait(self.vmq, tag)
        if n is not None:
            self.e("s_waitcnt vmcnt(%d)" % n)

    def wait_lg(self, tag):
        n, self.lgq = self._wait(self.lgq, tag)
        if n is not None:
            self.e("s_waitcnt lgkmcnt(%d)" % n)

    def wait_all(self):
        self.e("s_waitcnt vmcnt(0) lgkmcnt(0)")
        self.vmq = []
        self.lgq = []

    def ts(self, k):
        if not TS or k > 8:
            return
        self.e("s_memtime s[%d:%d]" % (84 + 2 * k, 85 + 2 * k))
        self.e("s_waitcnt lgkmcnt(0)")
        self.lgq = []

    def ts_dump(self, kidx):
        if not TS:
            return
        L = self.newlabel("ts")
        self.e("s_cmp_lg_u32 s3, 0")
        self.e("s_cbranch_scc1 %s" % L)
        self.e("s_memrealtime s[60:61]")
        self.e("s_waitcnt lgkmcnt(0)")
        self.srd(56, P_WS, 24 * MB + kidx * 65536, 65536)
        self.e("s_lshl_b32 s62, s2, 6")
        self.e("v_mov_b32 v0, 0")
        for k in range(9):
            self.e("v_mov_b32 v1, s%d" % (84 + 2 * k))
            self.e("buffer_store_dword v1, v0, s[56:59], s62 offen offset:%d" % (4 * k))
        self.e("v_mov_b32 v1, s60")
        self.e("buffer_store_dword v1, v0, s[56:59], s62 offen offset:36")
        self.label(L)

    def nop(self, n):
        while n > 0:
            k = min(n, 16)
            self.e("s_nop %d" % (k - 1))
            n -= k

    def begin(self, name, nwg):
        self.lines.append(".globl %s" % name)
        self.lines.append(".p2align 8")
        self.lines.append(".type %s,@function" % name)
        self.label(name)
        self.vmq = []
        self.lgq = []
        self.e("s_cmp_ge_u32 s2, %d" % nwg)
        self.e("s_cbranch_scc1 L_end_%s" % name)
        self.e("s_load_dwordx16 s[64:79], s[0:1], 0")
        self.e("s_load_dwordx4 s[80:83], s[0:1], 64")
        self.e("v_and_b32 v1, 63, v0")
        self.e("v_lshrrev_b32 v2, 6, v0")
        self.e("s_nop 0")
        self.e("v_readfirstlane_b32 s3, v2")
        self.e("s_waitcnt lgkmcnt(0)")
        self.ts(0)

    def end(self, name):
        self.label("L_end_%s" % name)
        self.e("s_endpgm")

    def srd(self, d, ptr, off, size):
        if off:
            self.e("s_add_u32 s%d, s%d, 0x%x" % (d, ptr, off))
            self.e("s_addc_u32 s%d, s%d, 0" % (d + 1, ptr + 1))
        else:
            self.e("s_mov_b32 s%d, s%d" % (d, ptr))
            self.e("s_mov_b32 s%d, s%d" % (d + 1, ptr + 1))
        self.e("s_mov_b32 s%d, 0x%x" % (d + 2, size))
        self.e("s_mov_b32 s%d, 0x00020000" % (d + 3))


def vr(b, n=4):
    return "v[%d:%d]" % (b, b + n - 1)


def ar(b, n=4):
    return "a[%d:%d]" % (b, b + n - 1)


def pipeline(g, items, D, stage_of, on_stage_start, issue_reads, do_mfma):
    n = len(items)
    pend = []
    npend = 0
    r = 0
    nin = 1
    for i in range(-D, n):
        j = i + D
        ms, rs = [], []
        if i >= 0:
            g.wait_lg(("it", i))
            ms = do_mfma(i, items[i]) or []
        if j < n:
            if j == 0 or stage_of(items[j]) != stage_of(items[j - 1]):
                assert not pend
                for m in ms:
                    m()
                ms = []
                pend = list(on_stage_start(stage_of(items[j])) or [])
                npend = len(pend)
                r = 0
                nin = sum(1 for it in items if stage_of(it) == stage_of(items[j]))
            rs = issue_reads(j, items[j]) or []
        vs = []
        if j < n:
            r += 1
            want = (r * npend + nin - 1) // nin
            while npend - len(pend) < want:
                vs.append(pend.pop(0))
        rs = rs + vs
        while ms or rs:
            if ms:
                ms.pop(0)()
            if rs:
                rs.pop(0)()


def gemm_res(g, name, a_ptr, a_off, a_rowb, KD, w_ptr, res_ptr, res_off, out_ptr, out_off, nslots, out_fl):
    g.begin(name, 256)
    if CUT == 0:
        g.e("s_endpgm")
    nks = KD // 32
    nst = KD // 128
    ring = nslots < nst
    SA, SW, SR, SO = 4, 8, 12, 16
    RV = 2
    ostep = 512 if out_fl else 32
    g.srd(SA, a_ptr, a_off, 2048 * a_rowb)
    g.srd(SW, w_ptr, 0, KD * 1024)
    g.srd(SR, res_ptr, res_off, 2048 * 1024)
    g.srd(SO, out_ptr, out_off, 2048 * 1024)
    g.e("s_and_b32 s20, s2, 31")
    g.e("s_lshr_b32 s21, s2, 5")
    g.e("s_lshl_b32 s22, s20, 6")
    g.e("s_lshl_b32 s23, s3, 4")
    g.e("s_add_u32 s22, s22, s23")
    g.e("v_and_b32 v3, 15, v1")
    g.e("v_add_u32 v3, s22, v3")
    g.e("v_lshrrev_b32 v4, 4, v1")
    g.e("s_lshl_b32 s27, s20, 2")
    g.e("s_add_u32 s27, s27, s3")
    g.e("s_mul_i32 s28, s27, %d" % (16 * a_rowb))
    g.e("v_lshlrev_b32 v5, 4, v1")
    g.e("v_add_u32 v5, s28, v5")
    g.e("s_lshl_b32 s28, s27, 14")
    g.e("s_lshl_b32 s29, s21, 11")
    g.e("s_add_u32 s28, s28, s29")
    g.e("v_and_b32 v9, 15, v1")
    g.e("v_lshlrev_b32 v9, 4, v9")
    g.e("v_bfe_u32 v10, v1, 5, 1")
    g.e("v_lshl_add_u32 v9, v10, 8, v9")
    g.e("v_bfe_u32 v10, v1, 4, 1")
    g.e("v_lshl_add_u32 v9, v10, 3, v9")
    g.e("v_add_u32 v%d, s28, v9" % RV)
    g.e("s_lshl_b32 s23, s21, 7")
    if not out_fl:
        g.e("v_lshlrev_b32 v6, 10, v3")
        g.e("v_lshl_add_u32 v6, v4, 3, v6")
        g.e("v_add_u32 v6, s23, v6")
    else:
        g.e("v_mov_b32 v6, v%d" % RV)
    g.e("v_lshrrev_b32 v9, 3, v1")
    g.e("v_and_b32 v10, 7, v1")
    g.e("v_bfe_u32 v11, v1, 4, 1")
    g.e("v_lshlrev_b32 v11, 1, v11")
    g.e("v_xor_b32 v10, v10, v11")
    g.e("v_lshlrev_b32 v9, 10, v9")
    g.e("v_lshl_add_u32 v7, v10, 4, v9")
    g.e("v_xor_b32 v10, 4, v10")
    g.e("v_lshl_add_u32 v8, v10, 4, v9")
    g.e("s_lshl_b32 s24, s3, 15")
    g.e("s_add_u32 s24, s24, s23")
    g.e("s_lshl_b32 s25, s3, 12")
    g.e("v_bfe_u32 v9, v1, 2, 2")
    g.e("v_lshl_add_u32 v10, v4, 3, v9")
    g.e("v_lshlrev_b32 v10, 7, v10")
    g.e("v_bfe_u32 v11, v1, 1, 1")
    g.e("v_lshl_add_u32 v10, v11, 4, v10")
    g.e("v_and_b32 v11, 1, v1")
    g.e("v_lshl_add_u32 v10, v11, 3, v10")
    g.e("v_bfe_u32 v11, v1, 3, 1")
    g.e("v_bfe_u32 v12, v1, 4, 1")
    g.e("v_lshl_or_b32 v11, v12, 1, v11")
    g.e("v_lshlrev_b32 v11, 1, v11")
    TA = 12
    for nt in range(4):
        g.e("v_xor_b32 v20, %d, v11" % (2 * nt))
        g.e("v_lshl_add_u32 v%d, v20, 4, v10" % (TA + nt))
        g.e("v_add_u32 v%d, 0x10000, v%d" % (TA + 4 + nt, TA + nt))
    RES = 20
    ACC = 28
    WF = 44
    D = 7
    NR = D + 1

    def stage_loads(s):
        slot = s % nslots
        out = []
        for q in range(4):
            def f(q=q):
                g.e("s_add_u32 m0, s25, 0x%x" % (slot * 16384 + q * 1024))
                g.e("s_add_u32 s26, s24, 0x%x" % ((s * 128 + q * 8) * 1024))
                g.vm("buffer_load_dwordx4 v%d, s[%d:%d], s26 offen lds" % (7 + (q & 1), SW, SW + 3), ("st", s))
            out.append(f)
            def f2(k4=q):
                ks = s * 4 + k4
                g.e("s_mov_b32 s27, 0x%x" % (s * 4096))
                g.vm("buffer_load_dwordx4 %s, v5, s[%d:%d], s27 offen offset:%d" % (ar(ks * 4), SA, SA + 3, k4 * 1024), ("st", s))
            out.append(f2)
        return out

    def issue_stage(s):
        for f in stage_loads(s):
            f()

    P = min(PRO_RES, nslots - 2) if ring else PRO_RES
    npro = min(nst, P, P0_RES)
    nxt = [npro]
    issue_stage(0)
    for nt in range(4):
        g.vm("buffer_load_dwordx2 %s, v%d, s[%d:%d], 0 offen offset:%d" % (vr(RES + 2 * nt, 2), RV, SR, SR + 3, nt * 512), "res")
    for s in range(1, npro):
        issue_stage(s)
    if CUT == 1:
        g.e("s_waitcnt vmcnt(0)")
        g.e("s_endpgm")
    g.ts(1)
    tsst = (0, 1, 2, 3) if nst == 4 else (0, 1, 5, 9, 13)

    items = [(ks, nt) for ks in range(nks) for nt in range(4)]

    def on_stage_start(s):
        g.wait_vm(("st", s))
        g.e("s_barrier")
        if s in tsst:
            g.ts(2 + tsst.index(s))
        out = []
        for _ in range(CU_RATE):
            if nxt[0] <= s + P and nxt[0] < nst:
                out += stage_loads(nxt[0])
                nxt[0] += 1
        return out

    def issue_reads(j, it):
        ks, nt = it
        s = ks // 4
        slot = s % nslots
        off = slot * 16384 + (ks % 4) * 32 * 128
        a = TA + nt
        if off >= 65536:
            off -= 65536
            a += 4
        w = WF + (j % NR) * 4
        return [lambda: g.lg("ds_read_b64_tr_b16 %s, v%d offset:%d" % (vr(w, 2), a, off), ("it", j)),
                lambda: g.lg("ds_read_b64_tr_b16 %s, v%d offset:%d" % (vr(w + 2, 2), a, off + 512), ("it", j))]

    def do_mfma(i, it):
        ks, nt = it
        w = WF + (i % NR) * 4
        acc = vr(ACC + nt * 4)
        return [lambda: g.e("v_mfma_f32_16x16x32_bf16 %s, %s, %s, %s" % (acc, vr(w), ar(ks * 4), "0" if ks == 0 else acc))]

    pipeline(g, items, D, lambda it: it[0] // 4, on_stage_start, issue_reads, do_mfma)
    g.ts(7)
    g.wait_vm("res")
    g.nop(16)
    T = WF
    for nt in range(4):
        a = ACC + nt * 4
        r = RES + 2 * nt
        g.e("v_lshlrev_b32 v%d, 16, v%d" % (T, r))
        g.e("v_and_b32 v%d, 0xffff0000, v%d" % (T + 1, r))
        g.e("v_lshlrev_b32 v%d, 16, v%d" % (T + 2, r + 1))
        g.e("v_and_b32 v%d, 0xffff0000, v%d" % (T + 3, r + 1))
        for k in range(4):
            g.e("v_add_f32 v%d, v%d, v%d" % (a + k, a + k, T + k))
        g.e("v_cvt_pk_bf16_f32 v%d, v%d, v%d" % (a, a, a + 1))
        g.e("v_cvt_pk_bf16_f32 v%d, v%d, v%d" % (a + 1, a + 2, a + 3))
        g.vm("buffer_store_dwordx2 %s, v6, s[%d:%d], 0 offen offset:%d" % (vr(a, 2), SO, SO + 3, nt * ostep), "out")
    g.ts(8)
    g.ts_dump(2 if nst == 4 else 4)
    g.end(name)
    nv = WF + NR * 4
    return dict(name=name, grid=256, lds=nslots * 16384 if ring else nst * 16384, vgpr=nv, agpr=nks * 4)


def ln_gemm(g, name, mode):
    qkv = mode == "qkv"
    g.begin(name, 256)
    NT = 6 if qkv else 14
    NPM = 6 if qkv else 7
    NW0 = NPM - 3
    CSP = (0, 3) if qkv else (0, 4)
    nks = 16
    nst = 8
    nslots = 5
    SLOTB = 28672
    CSB = 5 * SLOTB
    lds = CSB + 1024
    SA, SW, SO, SX = 4, 8, 12, 16
    ool = []
    if qkv and CPF:
        g.e("s_getpc_b64 s[32:33]")
        g.e("s_and_b32 s32, s32, 0xffffff00")
        g.e("s_and_b32 s33, s33, 0xffff")
        g.e("s_mov_b32 s34, L_code_end-%s" % name)
        g.e("s_mov_b32 s35, 0x00020000")
        g.e("s_lshr_b32 s36, s2, 3")
        g.e("s_lshl_b32 s36, s36, 2")
        g.e("s_add_u32 s36, s36, s3")
        g.e("s_lshl_b32 s36, s36, 10")
        g.e("v_lshlrev_b32 v180, 4, v1")
        g.vm("buffer_load_dwordx4 v[184:187], v180, s[32:35], s36 offen", "pf")
    if qkv:
        g.srd(SA, P_X, 0, 2048 * 1024)
        g.srd(SW, P_WQKV, 0, 512 * 3072)
        g.srd(SO, P_WS, WS_QKV, 6 * MB)
        g.srd(SX, P_WS, WS_XF, 2 * MB)
    else:
        g.srd(SA, P_WS, WS_H, 2048 * 1024)
        g.e("s_cmp_lt_u32 s3, 2")
        g.e("s_cselect_b32 s%d, s%d, s%d" % (SW, P_W1, P_W3))
        g.e("s_cselect_b32 s%d, s%d, s%d" % (SW + 1, P_W1 + 1, P_W3 + 1))
        g.e("s_mov_b32 s%d, 0x%x" % (SW + 2, 512 * 3584))
        g.e("s_mov_b32 s%d, 0x00020000" % (SW + 3))
        g.srd(SO, P_WS, WS_HMID, 2048 * 3584)
    g.e("s_lshr_b32 s22, s2, 3")
    if qkv:
        g.e("s_and_b32 s20, s2, 3")
        g.e("s_lshl_b32 s20, s20, 2")
        g.e("s_and_b32 s23, s22, 3")
        g.e("s_add_u32 s20, s20, s23")
        g.e("s_bfe_u32 s21, s2, 0x10002")
        g.e("s_lshl_b32 s21, s21, 3")
        g.e("s_lshr_b32 s23, s22, 2")
        g.e("s_add_u32 s21, s21, s23")
    else:
        g.e("s_and_b32 s20, s2, 1")
        g.e("s_lshl_b32 s20, s20, 3")
        g.e("s_and_b32 s23, s22, 7")
        g.e("s_add_u32 s20, s20, s23")
        g.e("s_bfe_u32 s21, s2, 0x20001")
        g.e("s_lshl_b32 s21, s21, 2")
        g.e("s_lshr_b32 s23, s22, 3")
        g.e("s_add_u32 s21, s21, s23")
    g.e("s_lshl_b32 s22, s20, 7")
    g.e("s_lshl_b32 s23, s3, 5")
    g.e("s_add_u32 s22, s22, s23")
    g.e("v_and_b32 v3, 15, v1")
    g.e("v_lshrrev_b32 v4, 4, v1")
    g.e("v_bfe_u32 v9, v1, 2, 2")
    ST = 40
    for p in range(NPM):
        g.e("s_add_u32 s%d, s3, %d" % (ST + p, p))
        if p >= NW0:
            g.e("s_cmp_ge_u32 s%d, %d" % (ST + p, NPM))
            g.e("s_cselect_b32 s26, %d, 0" % NPM)
            g.e("s_sub_u32 s%d, s%d, s26" % (ST + p, ST + p))
    if qkv:
        g.e("v_lshrrev_b32 v10, 3, v1")
        g.e("v_and_b32 v11, 7, v1")
        g.e("v_xor_b32 v11, v11, v10")
        g.e("v_lshlrev_b32 v10, 10, v10")
        g.e("v_lshl_add_u32 v5, v11, 4, v10")
        g.e("s_lshl_b32 s30, s22, 10")
        g.e("s_lshl_b32 s31, s3, 12")
        g.e("s_mul_i32 s24, s3, 192")
        g.e("v_add_u32 v10, s24, v1")
        DV = 16
        for q in range(3):
            g.e("v_add_u32 v11, %d, v10" % (q * 64))
            g.e("v_mul_u32_u24 v12, 5462, v11")
            g.e("v_lshrrev_b32 v12, 16, v12")
            g.e("v_mul_u32_u24 v13, 12, v12")
            g.e("v_sub_u32 v13, v11, v13")
            g.e("v_bfe_u32 v14, v12, 3, 1")
            g.e("v_lshlrev_b32 v14, 1, v14")
            g.e("v_xor_b32 v13, v13, v14")
            g.e("v_mul_u32_u24 v14, 3072, v12")
            g.e("v_lshl_add_u32 v%d, v13, 4, v14" % (DV + q))
        g.e("s_mul_i32 s24, s21, 192")
        g.e("s_mul_i32 s25, s3, 3072")
        g.e("v_add_u32 v10, s22, v3")
        g.e("v_lshlrev_b32 v7, 5, v10")
        g.e("v_lshl_add_u32 v7, v4, 3, v7")
        g.e("s_lshl_b32 s26, s22, 10")
        g.e("s_lshl_b32 s27, s21, 10")
        g.e("s_add_u32 s26, s26, s27")
        g.e("v_lshlrev_b32 v8, 4, v1")
        g.e("v_add_u32 v8, s26, v8")
        g.e("v_and_b32 v10, 7, v1")
        g.e("v_xor_b32 v10, v10, v4")
        g.e("v_lshlrev_b32 v11, 7, v3")
        g.e("v_lshl_add_u32 v11, v10, 4, v11")
        g.e("v_add_u32 v19, s31, v11")
        g.e("v_xor_b32 v20, 64, v19")
        XA = 19
        for b in range(1, 3):
            g.e("v_add_u32 v%d, 0x%x, v19" % (XA + 2 * b, b * 2 * SLOTB))
            g.e("v_add_u32 v%d, 0x%x, v20" % (XA + 2 * b + 1, b * 2 * SLOTB))
        g.e("v_lshl_add_u32 v10, v4, 3, v9")
        g.e("v_mul_u32_u24 v10, 192, v10")
        g.e("v_bfe_u32 v11, v1, 1, 1")
        g.e("v_lshl_add_u32 v10, v11, 4, v10")
        g.e("v_and_b32 v11, 1, v1")
        g.e("v_lshl_add_u32 v10, v11, 3, v10")
        g.e("v_add_u32 v10, 0x4000, v10")
        g.e("v_bfe_u32 v11, v1, 4, 1")
        g.e("v_lshlrev_b32 v11, 5, v11")
        TA = 25
        NA = 5
        ai = lambda p: (p & 1) if p < NW0 else p - 1
        for k, p in enumerate((0, 1, 3, 4, 5)):
            g.e("s_sub_u32 s26, s%d, %d" % (ST + p, p))
            g.e("s_lshl_b32 s26, s26, 5")
            g.e("v_add_u32 v12, s26, v10")
            g.e("s_and_b32 s27, s%d, 1" % (ST + p))
            g.e("s_lshl_b32 s27, s27, 1")
            g.e("s_sub_u32 s27, 1, s27")
            g.e("v_mul_lo_u32 v13, s27, v11")
            g.e("v_add_u32 v%d, v12, v13" % (TA + k))
        for b in range(1, 3):
            for k in range(NA):
                g.e("v_add_u32 v%d, 0x%x, v%d" % (TA + NA * b + k, b * 2 * SLOTB, TA + k))
        nextv = TA + 3 * NA
    else:
        g.e("s_lshl_b32 s26, s22, 10")
        g.e("v_lshlrev_b32 v5, 4, v1")
        g.e("v_add_u32 v5, s26, v5")
        g.e("v_add_u32 v6, 0x4000, v5")
        g.e("s_lshr_b32 s26, s22, 4")
        g.e("s_mul_i32 s26, s26, 57344")
        g.e("s_mul_i32 s27, s21, 3584")
        g.e("s_add_u32 s26, s26, s27")
        g.e("v_lshlrev_b32 v7, 4, v3")
        g.e("v_bfe_u32 v10, v1, 5, 1")
        g.e("v_lshl_add_u32 v7, v10, 8, v7")
        g.e("v_bfe_u32 v10, v1, 4, 1")
        g.e("v_lshl_add_u32 v7, v10, 3, v7")
        g.e("v_add_u32 v7, s26, v7")
        g.e("s_mul_i32 s23, s21, 224")
        g.e("s_and_b32 s24, s3, 1")
        g.e("s_mul_i32 s24, s24, 448")
        g.e("v_add_u32 v10, s24, v1")
        DV = 16
        for q in range(7):
            g.e("v_add_u32 v11, %d, v10" % (q * 64))
            g.e("v_mul_u32_u24 v12, 4682, v11")
            g.e("v_lshrrev_b32 v12, 16, v12")
            g.e("v_mul_u32_u24 v13, 14, v12")
            g.e("v_sub_u32 v13, v11, v13")
            g.e("v_and_b32 v14, 0x33, v12")
            g.e("v_bfe_u32 v15, v12, 2, 1")
            g.e("v_lshl_or_b32 v14, v15, 3, v14")
            g.e("v_bfe_u32 v15, v12, 3, 1")
            g.e("v_lshl_or_b32 v14, v15, 2, v14")
            g.e("v_mul_u32_u24 v14, 3584, v14")
            g.e("v_lshl_add_u32 v%d, v13, 4, v14" % (DV + q))
        g.e("s_mov_b32 s24, s23")
        g.e("s_mul_i32 s25, s3, 7168")
        g.e("v_bfe_u32 v10, v1, 5, 1")
        g.e("v_lshl_add_u32 v10, v10, 4, v9")
        g.e("v_bfe_u32 v11, v1, 4, 1")
        g.e("v_lshl_add_u32 v10, v11, 2, v10")
        g.e("v_mul_u32_u24 v10, 224, v10")
        g.e("v_and_b32 v11, 3, v1")
        g.e("v_lshl_add_u32 v10, v11, 3, v10")
        TA = 23
        NA = 4
        ai = lambda p: 0 if p < NW0 else p - 3
        for k, p in enumerate((0, 4, 5, 6)):
            g.e("s_lshl_b32 s26, s%d, 5" % (ST + p))
            g.e("v_add_u32 v%d, s26, v10" % (TA + k))
        for b in range(1, 3):
            for k in range(NA):
                g.e("v_add_u32 v%d, 0x%x, v%d" % (TA + NA * b + k, b * 2 * SLOTB, TA + k))
        nextv = TA + 3 * NA
    nextv = (nextv + 3) // 4 * 4
    ONES = nextv
    for k in range(4):
        g.e("v_mov_b32 v%d, 0x3f803f80" % (ONES + k))
    SUM = ONES + 4
    GRAM = SUM + 8
    CSA = GRAM + 8
    WF = CSA + 16
    D = 6 if qkv else 7
    NR = 8
    nextv = WF + NR * 4
    AX = 0
    ACCV = nextv
    nextv += 2 * NT * 4
    acc = lambda tt, ct: vr(ACCV + (tt * NT + ct) * 4)
    if qkv:
        XF = nextv
        nextv += 16
        XS = nextv
        nextv += 8
        xfr = lambda ks, tt: vr(XF + ((ks & 1) * 2 + tt) * 4)
    else:
        xfr = lambda ks, tt: ar(AX + (tt * 16 + ks) * 4)

    def stage_loads(s):
        wl, al = [], []
        slot = s % nslots
        if qkv:
            for q in range(3):
                def f(q=q):
                    g.e("s_add_u32 m0, s25, 0x%x" % (slot * SLOTB + 16384 + q * 1024))
                    g.e("s_add_u32 s26, s24, 0x%x" % (s * 64 * 3072))
                    g.vm("buffer_load_dwordx4 v%d, s[%d:%d], s26 offen lds" % (DV + q, SW, SW + 3), ("st", s))
                wl.append(f)
            for q in range(4):
                def f(q=q):
                    g.e("s_add_u32 m0, s31, 0x%x" % (slot * SLOTB + q * 1024))
                    g.e("s_add_u32 s26, s30, 0x%x" % (q * 8192 + s * 128))
                    g.vm("buffer_load_dwordx4 v5, s[%d:%d], s26 offen lds" % (SA, SA + 3), ("st", s))
                al.append(f)
        else:
            for q in range(7):
                def f(q=q):
                    g.e("s_add_u32 m0, s25, 0x%x" % (slot * SLOTB + q * 1024))
                    g.e("s_add_u32 s26, s24, 0x%x" % (s * 64 * 3584))
                    g.vm("buffer_load_dwordx4 v%d, s[%d:%d], s26 offen lds" % (DV + q, SW, SW + 3), ("st", s))
                wl.append(f)
            for k2 in range(2):
                for tt in range(2):
                    def f(k2=k2, tt=tt):
                        ks = s * 2 + k2
                        g.e("s_mov_b32 s27, 0x%x" % (s * 2048))
                        g.vm("buffer_load_dwordx4 %s, v%d, s[%d:%d], s27 offen offset:%d" % (
                            ar(AX + (tt * 16 + ks) * 4), 5 + tt, SA, SA + 3, k2 * 1024), ("st", s))
                    al.append(f)
        out = []
        while wl or al:
            if wl:
                out.append(wl.pop(0))
            if al and (len(al) >= len(wl) or not wl or len(out) % 2 == 0):
                out.append(al.pop(0))
        return out

    def issue_stage(s):
        for f in stage_loads(s):
            f()

    def k1pf():
        g.e("s_lshl_b32 s36, s2, 2")
        g.e("s_add_u32 s36, s36, s3")
        g.e("s_lshl_b32 s37, s36, 11")
        g.e("s_mul_i32 s36, s36, 1536")
        g.e("v_lshlrev_b32 v180, 4, v1")
        g.vm("buffer_load_dwordx4 v[184:187], v180, s[%d:%d], s37 offen" % (SA, SA + 3), "pf")
        g.vm("buffer_load_dwordx4 v[184:187], v180, s[%d:%d], s37 offen offset:1024" % (SA, SA + 3), "pf")
        g.vm("buffer_load_dwordx4 v[184:187], v180, s[%d:%d], s36 offen" % (SW, SW + 3), "pf")
        g.vm("buffer_load_dwordx4 v[184:187], v180, s[%d:%d], s36 offen offset:1024" % (SW, SW + 3), "pf")

    P = min(PRO_LN, nslots - 2)
    nxt = [min(P, P0_LN)]
    for s in range(nxt[0]):
        issue_stage(s)
        if qkv and K1PF == 2 and s == 0:
            k1pf()
    if qkv and K1PF == 1:
        k1pf()
    if qkv and TLB1:
        g.srd(32, P_WS, 0, 20 * MB)
        g.srd(36, P_OUT, 0, 2 * MB)
        g.e("v_mul_u32_u24 v180, 0x50000, v1")
        g.vm("buffer_load_dword v184, v180, s[32:35], 0 offen", "pf")
        g.e("v_lshlrev_b32 v181, 15, v1")
        g.vm("buffer_load_dword v185, v181, s[36:39], 0 offen", "pf")
    g.ts(1)

    items = [(ks, ct) for ks in range(nks) for ct in range(NT)]

    def on_stage_start(s):
        g.wait_vm(("st", s))
        g.e("s_barrier")
        if s in (0, 1, 3, 5, 7):
            g.ts(2 + (0, 1, 3, 5, 7).index(s))
        out = []
        for _ in range(CU_RATE):
            if nxt[0] <= s + P and nxt[0] < nst:
                out += stage_loads(nxt[0])
                nxt[0] += 1
        return out

    def issue_reads(j, it):
        ks, ct = it
        w = WF + (j % NR) * 4
        s = ks // 2
        slot = s % nslots
        b, so = slot >> 1, (slot & 1) * SLOTB
        out = []
        if qkv:
            if ct == 0:
                for tt in range(2):
                    out.append(lambda tt=tt: g.lg("ds_read_b128 %s, v%d offset:%d" % (xfr(ks, tt), XA + 2 * b + (ks & 1), so + tt * 2048), ("it", j)))
            a = TA + NA * b + ai(ct)
            off = so + (ks % 2) * 32 * 192 + ct * 32
            off2 = off + 4 * 192
        else:
            mat, p = ct // 7, ct % 7
            a = TA + NA * b + ai(p)
            off = so + mat * 14336 + (ks % 2) * 32 * 224 + (p * 32 if p < NW0 else 0)
            off2 = off + 8 * 224
        out.append(lambda: g.lg("ds_read_b64_tr_b16 %s, v%d offset:%d" % (vr(w, 2), a, off), ("it", j)))
        out.append(lambda: g.lg("ds_read_b64_tr_b16 %s, v%d offset:%d" % (vr(w + 2, 2), a, off2), ("it", j)))
        return out

    def do_mfma(i, it):
        ks, ct = it
        w = WF + (i % NR) * 4
        out = []
        def mf(d, a, b):
            out.append(lambda: g.e("v_mfma_f32_16x16x32_bf16 %s, %s, %s, %s" % (d, a, b, "0" if ks == 0 else d)))
        for tt in range(2):
            mf(acc(tt, ct), vr(w), xfr(ks, tt))
        mat, p = ct // NPM, ct % NPM
        if p in CSP:
            mf(vr(CSA + (mat * 2 + CSP.index(p)) * 4), vr(w), vr(ONES))
        if ct in (1, 2):
            tt = ct - 1
            x = xfr(ks, tt)
            mf(vr(SUM + tt * 4), vr(ONES), x)
            mf(vr(GRAM + tt * 4), x, x)
        if qkv and ct == 4:
            def f():
                L = g.newlabel("xs")
                g.e("s_cmp_eq_u32 s21, %d" % ks)
                g.e("s_cbranch_scc1 %s" % L)
                g.label(L + "_r")
                ool.append((L, ks))
            out.append(f)
        return out

    pipeline(g, items, D, lambda it: it[0] // 2, on_stage_start, issue_reads, do_mfma)
    if qkv:
        g.vm("buffer_store_dwordx4 %s, v8, s[%d:%d], 0 offen" % (vr(XS), SX, SX + 3), "out")
        g.e("v_add_u32 v8, 0x4000, v8")
        g.vm("buffer_store_dwordx4 %s, v8, s[%d:%d], 0 offen" % (vr(XS + 4), SX, SX + 3), "out")
    g.nop(16)
    g.ts(7)
    T = WF
    g.e("v_lshlrev_b32 v%d, 4, v4" % T)
    g.e("v_add_u32 v%d, 0x%x, v%d" % (T + 1, CSB, T))
    for k in range(2):
        g.e("s_lshl_b32 s27, s%d, 6" % (ST + CSP[k]))
        g.e("v_add_u32 v%d, s27, v%d" % (T + 2 + k, T + 1))
    g.e("s_mov_b32 s28, 0x00010001")
    g.e("s_mov_b32 s29, 0x00010001")
    g.e("s_mov_b64 exec, s[28:29]")
    for mat in range(NT // NPM):
        for k in range(2):
            g.lg("ds_write_b128 v%d, %s offset:%d" % (T + 2 + k, vr(CSA + (mat * 2 + k) * 4), mat * NPM * 64), "csw")
    g.e("s_mov_b64 exec, -1")
    for r in range(4):
        m = 0
        for gg in range(4):
            m |= 1 << (20 * gg + r)
        g.e("s_mov_b32 s%d, 0x%x" % (30 + 2 * r, m & 0xffffffff))
        g.e("s_mov_b32 s%d, 0x%x" % (31 + 2 * r, m >> 32))
    for tt in range(2):
        d = T + 4
        g.e("v_mov_b32 v%d, 0" % d)
        for r in range(4):
            g.e("v_cndmask_b32_e64 v%d, v%d, v%d, s[%d:%d]" % (d, d, GRAM + tt * 4 + r, 30 + 2 * r, 31 + 2 * r))
        g.e("v_mov_b32 v%d, v%d" % (d + 1, d))
        g.nop(2)
        g.e("v_permlane16_swap_b32 v%d, v%d" % (d, d + 1))
        g.nop(1)
        g.e("v_add_f32 v%d, v%d, v%d" % (d, d, d + 1))
        g.e("v_mov_b32 v%d, v%d" % (d + 1, d))
        g.nop(2)
        g.e("v_permlane32_swap_b32 v%d, v%d" % (d, d + 1))
        g.nop(1)
        g.e("v_add_f32 v%d, v%d, v%d" % (d, d, d + 1))
        m = SUM + tt * 4
        g.e("v_mul_f32 v%d, %s, v%d" % (m, f32hex(1.0 / 512), m))
        g.e("v_mul_f32 v%d, %s, v%d" % (d, f32hex(1.0 / 512), d))
        g.e("v_fma_f32 v%d, -v%d, v%d, v%d" % (d, m, m, d))
        g.e("v_max_f32 v%d, 0, v%d" % (d, d))
        g.e("v_add_f32 v%d, %s, v%d" % (m + 3, f32hex(1e-5), d))
        g.e("v_rsq_f32 v%d, v%d" % (m + 1, m + 3))
        g.nop(1)
        g.e("v_mul_f32 v%d, %s, v%d" % (m + 2, f32hex(QSCALE if qkv else -LOG2E), m + 1))
    g.wait_lg("csw")
    g.e("s_barrier")
    CS = T + 8
    AD = T + 6
    def pk(op, d, a, b, c=None, sel=None, neg=False):
        ops = [a, b] + ([c] if c is not None else [])
        sel = sel or {}
        lo = [sel.get(i, (0, 1))[0] for i in range(len(ops))]
        hi = [sel.get(i, (0, 1))[1] for i in range(len(ops))]
        t = "%s %s, %s" % (op, vr(d, 2), ", ".join(vr(o, 2) for o in ops))
        t += " op_sel:[%s] op_sel_hi:[%s]" % (",".join(map(str, lo)), ",".join(map(str, hi)))
        if neg:
            z = ["1"] + ["0"] * (len(ops) - 1)
            t += " neg_lo:[%s] neg_hi:[%s]" % (",".join(z), ",".join(z))
        g.e(t)

    def cs_read(p):
        bb = CS + (p & 1) * 8
        g.e("s_lshl_b32 s27, s%d, 6" % (ST + p))
        g.e("v_add_u32 v%d, s27, v%d" % (AD + (p & 1), T + 1))
        g.lg("ds_read_b128 %s, v%d" % (vr(bb), AD + (p & 1)), ("cs", p))
        if not qkv:
            g.lg("ds_read_b128 %s, v%d offset:448" % (vr(bb + 4), AD + (p & 1)), ("cs", p))
    cs_read(0)
    if qkv:
        for p in range(NPM):
            if p + 1 < NPM:
                cs_read(p + 1)
            g.wait_lg(("cs", p))
            bb = CS + (p & 1) * 8
            g.e("s_mul_i32 s26, s21, 6")
            g.e("s_add_u32 s26, s26, s%d" % (ST + p))
            g.e("s_cmp_lt_u32 s26, 32")
            g.e("s_cselect_b32 s28, -1, 0")
            g.e("s_mov_b32 s29, s28")
            g.e("s_lshl_b32 s26, s26, 16")
            for tt in range(2):
                a = ACCV + (tt * NT + p) * 4
                m = SUM + tt * 4
                rs = T + 4
                g.e("v_cndmask_b32_e64 v%d, v%d, v%d, s[28:29]" % (rs, m + 1, m + 2))
                pk("v_pk_fma_f32", a, m, bb, a, sel={0: (0, 0)}, neg=True)
                pk("v_pk_fma_f32", a + 2, m, bb + 2, a + 2, sel={0: (0, 0)}, neg=True)
                pk("v_pk_mul_f32", a, a, rs, sel={1: (0, 0)})
                pk("v_pk_mul_f32", a + 2, a + 2, rs, sel={1: (0, 0)})
                g.e("v_cvt_pk_bf16_f32 v%d, v%d, v%d" % (a, a, a + 1))
                g.e("v_cvt_pk_bf16_f32 v%d, v%d, v%d" % (a + 1, a + 2, a + 3))
                g.vm("buffer_store_dwordx2 %s, v7, s[%d:%d], s26 offen offset:%d" % (vr(a, 2), SO, SO + 3, tt * 512), "out")
    else:
        g.e("v_add_u32 v8, 0x%x, v7" % 57344)
        E = CS + 16
        for p in range(NPM):
            if p + 1 < NPM:
                cs_read(p + 1)
            g.wait_lg(("cs", p))
            bb = CS + (p & 1) * 8
            g.e("s_lshl_b32 s26, s%d, 9" % (ST + p))
            GV = [ACCV + (tt * NT + p) * 4 for tt in range(2)]
            UV = [ACCV + (tt * NT + 7 + p) * 4 for tt in range(2)]
            M = [SUM + tt * 4 for tt in range(2)]
            EV = [E + tt * 4 for tt in range(2)]
            for tt in range(2):
                for h in (0, 2):
                    pk("v_pk_fma_f32", GV[tt] + h, M[tt], bb + h, GV[tt] + h, sel={0: (0, 0)}, neg=True)
                for h in (0, 2):
                    pk("v_pk_mul_f32", EV[tt] + h, GV[tt] + h, M[tt] + 2, sel={1: (0, 0)})
            for tt in range(2):
                for k in range(4):
                    g.e("v_exp_f32 v%d, v%d" % (EV[tt] + k, EV[tt] + k))
            for tt in range(2):
                for h in (0, 2):
                    pk("v_pk_fma_f32", UV[tt] + h, M[tt], bb + 4 + h, UV[tt] + h, sel={0: (0, 0)}, neg=True)
                for h in (0, 2):
                    pk("v_pk_mul_f32", UV[tt] + h, UV[tt] + h, GV[tt] + h)
            for tt in range(2):
                for h in (0, 2):
                    pk("v_pk_fma_f32", EV[tt] + h, EV[tt] + h, M[tt] + 2, M[tt] + 2, sel={1: (1, 1), 2: (1, 1)})
            for tt in range(2):
                for k in range(4):
                    g.e("v_rcp_f32 v%d, v%d" % (EV[tt] + k, EV[tt] + k))
            g.nop(1)
            for tt in range(2):
                for h in (0, 2):
                    pk("v_pk_mul_f32", UV[tt] + h, UV[tt] + h, EV[tt] + h)
                g.e("v_cvt_pk_bf16_f32 v%d, v%d, v%d" % (UV[tt], UV[tt], UV[tt] + 1))
                g.e("v_cvt_pk_bf16_f32 v%d, v%d, v%d" % (UV[tt] + 1, UV[tt] + 2, UV[tt] + 3))
                g.vm("buffer_store_dwordx2 %s, v%d, s[%d:%d], s26 offen" % (vr(UV[tt], 2), 7 + tt, SO, SO + 3), "out")
    g.ts(8)
    g.ts_dump(0 if qkv else 3)
    g.end(name)
    for L, ks in ool:
        g.label(L)
        for k in range(8):
            g.e("v_mov_b32 v%d, v%d" % (XS + k, XF + (ks & 1) * 8 + k))
        g.e("s_branch %s_r" % L)
    return dict(name=name, grid=256, lds=lds, vgpr=max(nextv, 188) if qkv else nextv, agpr=0 if qkv else 128)


def attention(g, name):
    g.begin(name, 512)
    SQ, SO = 4, 8
    g.srd(SQ, P_WS, WS_QKV, 6 * MB)
    g.srd(SO, P_WS, WS_ATTN, 2 * MB)
    VB = 0
    OB = 12288
    lds = OB + 1024
    g.e("s_and_b32 s20, s2, 31")
    g.e("s_lshr_b32 s21, s2, 5")
    g.e("s_lshl_b32 s22, s21, 7")
    g.e("s_lshl_b32 s23, s3, 5")
    g.e("s_add_u32 s23, s22, s23")
    g.e("s_lshr_b32 s24, s23, 5")
    g.e("s_sub_i32 s24, 8, s24")
    g.e("s_max_i32 s24, s24, 0")
    g.e("v_and_b32 v3, 31, v1")
    g.e("v_lshrrev_b32 v4, 5, v1")
    g.e("s_lshl_b32 s25, s20, 16")
    g.e("v_add_u32 v5, s23, v3")
    g.e("v_lshlrev_b32 v5, 5, v5")
    g.e("v_lshl_add_u32 v5, v4, 4, v5")
    g.e("v_add_u32 v5, s25, v5")
    QF = 8
    KF = 12
    g.vm("buffer_load_dwordx4 %s, v5, s[%d:%d], 0 offen" % (vr(QF), SQ, SQ + 3), "q")
    g.e("v_add_u32 v6, 0x%x, v5" % (2 * MB - 8192))
    for t in range(9):
        if t == 4 or t == 8:
            g.e("v_add_u32 v6, 0x1000, v6")
        g.vm("buffer_load_dwordx4 %s, v6, s[%d:%d], 0 offen offset:%d" % (vr(KF + 4 * t), SQ, SQ + 3, (t % 4) * 1024), ("k", t))
    g.e("s_lshl_b32 s26, s22, 5")
    g.e("s_add_u32 s26, s26, s25")
    g.e("s_add_u32 s26, s26, 0x%x" % (4 * MB - 8192))
    g.e("s_mul_i32 s27, s3, 3072")
    g.e("s_add_u32 s26, s26, s27")
    g.e("v_lshlrev_b32 v7, 4, v1")
    g.e("v_add_u32 v7, s26, v7")
    for q in range(3):
        g.e("s_add_u32 m0, s27, 0x%x" % (VB + q * 1024))
        if q:
            g.e("v_add_u32 v7, 0x400, v7")
        else:
            g.e("s_nop 0")
        g.vm("buffer_load_dwordx4 v7, s[%d:%d], 0 offen lds" % (SQ, SQ + 3), "v")
    NPF = 0
    def do_pf():
        g.srd(32, P_WO, 0, 512 * 1024)
        g.srd(36, P_W1, 0, 512 * 3584)
        g.srd(40, P_W3, 0, 512 * 3584)
        g.srd(44, P_W2, 0, 1792 * 1024)
        PV = 176
        g.e("v_lshlrev_b32 v%d, 4, v1" % PV)
        g.e("s_lshl_b32 s28, s2, 2")
        g.e("s_add_u32 s28, s28, s3")
        g.e("s_lshl_b32 s28, s28, 10")
        for sr in (32, 36, 40, 44):
            g.vm("buffer_load_dwordx4 %s, v%d, s[%d:%d], s28 offen" % (vr(PV + 4), PV, sr, sr + 3), "pf")
        if TLB2:
            g.srd(32, P_WS, 8 * MB, 10 * MB)
            g.srd(36, P_OUT, 0, 2 * MB)
            g.e("v_mul_u32_u24 v%d, 0x28000, v1" % (PV + 1))
            g.vm("buffer_load_dword v%d, v%d, s[32:35], 0 offen" % (PV + 4, PV + 1), "pf")
            g.e("v_lshlrev_b32 v%d, 15, v1" % (PV + 2))
            g.vm("buffer_load_dword v%d, v%d, s[36:39], 0 offen" % (PV + 5, PV + 2), "pf")
    if PFM == 'A':
        do_pf()
        NPF = 4
    M0_ = 48
    M8_ = 64
    NM = 80
    S0 = 96
    PF = 128
    VF = 144
    OA = 160
    for k in range(4):
        g.e("v_mov_b32 v%d, 0x3f803f80" % (S0 + k))
    g.e("v_lshlrev_b32 v2, 4, v1")
    g.lg("ds_write_b128 v2, %s offset:%d" % (vr(S0), OB), "ones")
    g.e("v_lshlrev_b32 v2, 2, v4")
    g.e("v_sub_u32 v2, v3, v2")
    NEG = f32hex(-1e30)
    g.e("v_mov_b32 v%d, %s" % (S0 + 4, NEG))
    for r in range(16):
        jc = (r & 3) + 8 * (r >> 2)
        g.e("v_cmp_gt_i32 vcc, %d, v2" % jc)
        g.nop(2)
        g.e("v_cndmask_b32 v%d, v%d, 0, vcc" % (M0_ + r, S0 + 4))
        g.e("v_cndmask_b32 v%d, 0, v%d, vcc" % (M8_ + r, S0 + 4))
    g.e("v_bfe_u32 v2, v1, 2, 2")
    g.e("v_lshl_add_u32 v2, v4, 2, v2")
    g.e("v_lshlrev_b32 v2, 5, v2")
    g.e("v_and_b32 v5, 3, v1")
    g.e("v_lshl_add_u32 v2, v5, 3, v2")
    g.e("s_lshl_b32 s27, s3, 10")
    g.e("s_add_u32 s27, s27, 0x%x" % VB)
    g.e("v_add_u32 v2, s27, v2")
    g.e("v_lshlrev_b32 v5, 7, v4")
    g.e("v_sub_u32 v5, 0x%x, v5" % (OB + 128))
    g.e("v_bfe_u32 v6, v1, 4, 1")
    g.e("v_cmp_eq_u32 vcc, 1, v6")
    g.nop(2)
    g.e("v_cndmask_b32 v2, v2, v5, vcc")
    g.e("v_mov_b32 v5, 0x400")
    g.e("v_cndmask_b32 v5, v5, 0, vcc")
    g.e("v_mul_lo_u32 v6, v5, s24")
    g.e("v_add_u32 v2, v2, v6")
    VA, VI = 2, 5
    MX = 6
    g.e("v_mov_b32 v%d, %s" % (MX, NEG))
    g.wait_vm("q")
    def smfma(t, dst, c):
        g.e("v_mfma_f32_32x32x16_bf16 %s, %s, %s, %s" % (vr(dst, 16), vr(KF + 4 * t), vr(QF), c))
    for t in range(9):
        L = g.newlabel("p1")
        if t < 8:
            g.e("s_cmp_gt_u32 s24, %d" % t)
            g.e("s_cbranch_scc1 %s" % L)
        g.e("s_waitcnt vmcnt(%d)" % (NPF + 3 + 8 - t))
        c = vr(M0_, 16) if t == 0 else (vr(M8_, 16) if t == 8 else "0")
        dst = S0 + 16 * (t & 1)
        smfma(t, dst, c)
        g.nop(18)
        for r in range(0, 16, 2):
            g.e("v_max3_f32 v%d, v%d, v%d, v%d" % (MX, MX, dst + r, dst + r + 1))
        g.label(L)
    g.vmq = [x for x in g.vmq if x in ("v", "pf")]
    if PFM == 'C':
        do_pf()
    g.e("v_mov_b32 v%d, v%d" % (MX + 1, MX))
    g.nop(2)
    g.e("v_permlane32_swap_b32 v%d, v%d" % (MX, MX + 1))
    g.nop(1)
    g.e("v_max_f32 v%d, v%d, v%d" % (MX, MX, MX + 1))
    for r in range(16):
        g.e("v_sub_f32 v%d, 0, v%d" % (NM + r, MX))
    for r in range(16):
        g.e("v_sub_f32 v%d, v%d, v%d" % (M0_ + r, M0_ + r, MX))
        g.e("v_sub_f32 v%d, v%d, v%d" % (M8_ + r, M8_ + r, MX))
    for r in range(16):
        g.e("v_mov_b32 v%d, 0" % (OA + r))
    g.wait_vm("v")
    g.wait_lg("ones")
    g.e("s_barrier")
    if PFM == 'D':
        do_pf()
    for t in range(9):
        L = g.newlabel("p2")
        if t < 8:
            g.e("s_cmp_gt_u32 s24, %d" % t)
            g.e("s_cbranch_scc1 %s" % L)
        vf = VF + 8 * (t & 1)
        for k in range(4):
            g.lg("ds_read_b64_tr_b16 %s, v%d offset:%d" % (vr(vf + 2 * k, 2), VA, 256 * k), ("vf", t))
        g.e("v_add_u32 v%d, v%d, v%d" % (VA, VA, VI))
        c = vr(M0_, 16) if t == 0 else (vr(M8_, 16) if t == 8 else vr(NM, 16))
        dst = S0 + 16 * (t & 1)
        smfma(t, dst, c)
        g.nop(18)
        for r in range(16):
            g.e("v_exp_f32 v%d, v%d" % (dst + r, dst + r))
        pf = PF + 8 * (t & 1)
        g.nop(1)
        for r in range(8):
            g.e("v_cvt_pk_bf16_f32 v%d, v%d, v%d" % (pf + r, dst + 2 * r, dst + 2 * r + 1))
        g.wait_lg(("vf", t))
        g.nop(2)
        g.e("v_mfma_f32_32x32x16_bf16 %s, %s, %s, %s" % (vr(OA, 16), vr(vf), vr(pf), vr(OA, 16)))
        g.e("v_mfma_f32_32x32x16_bf16 %s, %s, %s, %s" % (vr(OA, 16), vr(vf + 4), vr(pf + 4), vr(OA, 16)))
        g.label(L)
    g.nop(20)
    g.e("v_rcp_f32 v%d, v%d" % (MX, OA + 8))
    g.nop(1)
    for r in range(8):
        g.e("v_mul_f32 v%d, v%d, v%d" % (OA + r, OA + r, MX))
    for r in range(4):
        g.e("v_cvt_pk_bf16_f32 v%d, v%d, v%d" % (PF + r, OA + 2 * r, OA + 2 * r + 1))
    g.e("v_bfe_u32 v7, v3, 4, 1")
    g.e("v_lshlrev_b32 v7, 14, v7")
    g.e("v_and_b32 v6, 15, v3")
    g.e("v_lshl_add_u32 v7, v6, 4, v7")
    g.e("v_lshl_add_u32 v7, v4, 3, v7")
    g.e("s_lshl_b32 s26, s20, 9")
    g.e("s_lshl_b32 s27, s23, 10")
    g.e("s_add_u32 s26, s26, s27")
    g.vm("buffer_store_dwordx2 %s, v7, s[%d:%d], s26 offen" % (vr(PF, 2), SO, SO + 3), "o")
    g.vm("buffer_store_dwordx2 %s, v7, s[%d:%d], s26 offen offset:256" % (vr(PF + 2, 2), SO, SO + 3), "o")
    g.end(name)
    return dict(name=name, grid=512, lds=lds, vgpr=184, agpr=0)


def main():
    g = G()
    ks = []
    ks.append(ln_gemm(g, "k1_qkv_kernel", "qkv"))
    ks.append(attention(g, "k2_attn_kernel"))
    ks.append(gemm_res(g, "k3_wo_kernel", P_WS, WS_ATTN, 1024, 512, P_WO, P_WS, WS_XF, P_WS, WS_H, 8, True))
    ks.append(ln_gemm(g, "k4_ffn_kernel", "ffn"))
    ks.append(gemm_res(g, "k5_w2_kernel", P_WS, WS_HMID, 3584, 1792, P_W2, P_WS, WS_H, P_OUT, 0, 8, False))
    out = []
    for k in ks:
        out.append("; @launch kernel=%s grid=(%d,1,1) block=(256,1,1) lds=%d" % (k["name"], k["grid"], k["lds"]))
    out.append('.amdgcn_target "amdgcn-amd-amdhsa--gfx950"')
    out.append(".text")
    out += g.lines
    out.append("L_code_end:")
    out.append('.section .rodata,"a"')
    for k in ks:
        accoff = (k["vgpr"] + 3) // 4 * 4
        assert accoff <= 256
        tot = accoff + k["agpr"]
        assert tot <= 512
        out.append(".p2align 6")
        out.append(".amdhsa_kernel %s" % k["name"])
        out.append("  .amdhsa_next_free_vgpr %d" % tot)
        out.append("  .amdhsa_next_free_sgpr 102")
        out.append("  .amdhsa_accum_offset %d" % accoff)
        out.append("  .amdhsa_group_segment_fixed_size 0")
        out.append("  .amdhsa_kernarg_size 80")
        out.append("  .amdhsa_user_sgpr_count 2")
        out.append("  .amdhsa_user_sgpr_kernarg_segment_ptr 1")
        out.append("  .amdhsa_system_sgpr_workgroup_id_x 1")
        out.append(".end_amdhsa_kernel")
    dst = sys.argv[1] if len(sys.argv) > 1 else "sequential_preLN__sliding_block__glu_gated_swiglu__prompt.s"
    open(dst, "w").write("\n".join(out) + "\n")
    for k in ks:
        print(k)


if __name__ == "__main__":
    main()
```

```python
import sys

MB = 1 << 20
import os
CUT = int(os.environ.get('CUT', '-1'))
EXP = os.environ.get('EXP', '')
TS = int(os.environ.get('TS', '0'))
PRO_RES = int(os.environ.get('PRO_RES', '4'))
PRO_LN = int(os.environ.get('PRO_LN', '4'))
P0_RES = int(os.environ.get('P0_RES', '2'))
P0_LN = int(os.environ.get('P0_LN', '2'))
CU_RATE = int(os.environ.get('CU_RATE', '2'))
PFM = os.environ.get('PF', 'C')
CPF = int(os.environ.get('CPF', '0'))
KLATE = int(os.environ.get('KLATE', '1'))
K1PF = int(os.environ.get('K1PF', '0'))
TLB1 = int(os.environ.get('TLB1', '0'))
TLB2 = int(os.environ.get('TLB2', '0'))
WS_QKV = 0
WS_ATTN = 6 * MB
WS_H = 8 * MB
WS_HMID = 10 * MB
WS_XF = 18 * MB
LOG2E = 1.4426950408889634
QSCALE = 0.25 * LOG2E

P_X, P_WQKV, P_WO, P_BX, P_W1, P_W3, P_W2, P_OUT, P_DBG, P_WS = [64 + 2 * i for i in range(10)]


def f32hex(x):
    import struct
    return "0x%08x" % struct.unpack("<I", struct.pack("<f", x))[0]


class G:
    def __init__(self):
        self.lines = []
        self.vmq = []
        self.lgq = []
        self.nlabel = 0

    def e(self, s):
        self.lines.append("    " + s)

    def label(self, s):
        self.lines.append(s + ":")

    def newlabel(self, p):
        self.nlabel += 1
        return "L_%s_%d" % (p, self.nlabel)

    def vm(self, s, tag):
        self.e(s)
        self.vmq.append(tag)
        assert len(self.vmq) <= 63, "too many outstanding vmem"

    def lg(self, s, tag):
        self.e(s)
        self.lgq.append(tag)
        assert len(self.lgq) <= 15, "too many outstanding lgkm"

    def _wait(self, q, tag):
        if tag not in q:
            return None, q
        idx = len(q) - 1 - q[::-1].index(tag)
        return len(q) - 1 - idx, q[idx + 1:]

    def wait_vm(self, tag):
        n, self.vmq = self._wait(self.vmq, tag)
        if n is not None:
            self.e("s_waitcnt vmcnt(%d)" % n)

    def wait_lg(self, tag):
        n, self.lgq = self._wait(self.lgq, tag)
        if n is not None:
            self.e("s_waitcnt lgkmcnt(%d)" % n)

    def wait_all(self):
        self.e("s_waitcnt vmcnt(0) lgkmcnt(0)")
        self.vmq = []
        self.lgq = []

    def ts(self, k):
        if not TS or k > 8:
            return
        self.e("s_memtime s[%d:%d]" % (84 + 2 * k, 85 + 2 * k))
        self.e("s_waitcnt lgkmcnt(0)")
        self.lgq = []

    def ts_dump(self, kidx):
        if not TS:
            return
        L = self.newlabel("ts")
        self.e("s_cmp_lg_u32 s3, 0")
        self.e("s_cbranch_scc1 %s" % L)
        self.e("s_memrealtime s[60:61]")
        self.e("s_waitcnt lgkmcnt(0)")
        self.srd(56, P_WS, 24 * MB + kidx * 65536, 65536)
        self.e("s_lshl_b32 s62, s2, 6")
        self.e("v_mov_b32 v0, 0")
        for k in range(9):
            self.e("v_mov_b32 v1, s%d" % (84 + 2 * k))
            self.e("buffer_store_dword v1, v0, s[56:59], s62 offen offset:%d" % (4 * k))
        self.e("v_mov_b32 v1, s60")
        self.e("buffer_store_dword v1, v0, s[56:59], s62 offen offset:36")
        self.label(L)

    def nop(self, n):
        while n > 0:
            k = min(n, 16)
            self.e("s_nop %d" % (k - 1))
            n -= k

    def begin(self, name, nwg):
        self.lines.append(".globl %s" % name)
        self.lines.append(".p2align 8")
        self.lines.append(".type %s,@function" % name)
        self.label(name)
        self.vmq = []
        self.lgq = []
        self.e("s_cmp_ge_u32 s2, %d" % nwg)
        self.e("s_cbranch_scc1 L_end_%s" % name)
        self.e("s_load_dwordx16 s[64:79], s[0:1], 0")
        self.e("s_load_dwordx4 s[80:83], s[0:1], 64")
        self.e("v_and_b32 v1, 63, v0")
        self.e("v_lshrrev_b32 v2, 6, v0")
        self.e("s_nop 0")
        self.e("v_readfirstlane_b32 s3, v2")
        if not KLATE:
            self.kwait()

    def kwait(self):
        self.e("s_waitcnt lgkmcnt(0)")
        self.ts(0)

    def end(self, name):
        self.label("L_end_%s" % name)
        self.e("s_endpgm")

    def srd(self, d, ptr, off, size):
        if off:
            self.e("s_add_u32 s%d, s%d, 0x%x" % (d, ptr, off))
            self.e("s_addc_u32 s%d, s%d, 0" % (d + 1, ptr + 1))
        else:
            self.e("s_mov_b32 s%d, s%d" % (d, ptr))
            self.e("s_mov_b32 s%d, s%d" % (d + 1, ptr + 1))
        self.e("s_mov_b32 s%d, 0x%x" % (d + 2, size))
        self.e("s_mov_b32 s%d, 0x00020000" % (d + 3))


def vr(b, n=4):
    return "v[%d:%d]" % (b, b + n - 1)


def ar(b, n=4):
    return "a[%d:%d]" % (b, b + n - 1)


def pipeline(g, items, D, stage_of, on_stage_start, issue_reads, do_mfma):
    n = len(items)
    pend = []
    npend = 0
    r = 0
    nin = 1
    for i in range(-D, n):
        j = i + D
        ms, rs = [], []
        if i >= 0:
            g.wait_lg(("it", i))
            ms = do_mfma(i, items[i]) or []
        if j < n:
            if j == 0 or stage_of(items[j]) != stage_of(items[j - 1]):
                assert not pend
                for m in ms:
                    m()
                ms = []
                pend = list(on_stage_start(stage_of(items[j])) or [])
                npend = len(pend)
                r = 0
                nin = sum(1 for it in items if stage_of(it) == stage_of(items[j]))
            rs = issue_reads(j, items[j]) or []
        vs = []
        if j < n:
            r += 1
            want = (r * npend + nin - 1) // nin
            while npend - len(pend) < want:
                vs.append(pend.pop(0))
        rs = rs + vs
        while ms or rs:
            if ms:
                ms.pop(0)()
            if rs:
                rs.pop(0)()


def gemm_res(g, name, a_ptr, a_off, a_rowb, KD, w_ptr, res_ptr, res_off, out_ptr, out_off, nslots, out_fl):
    g.begin(name, 256)
    if CUT == 0:
        g.e("s_endpgm")
    nks = KD // 32
    nst = KD // 128
    ring = nslots < nst
    SA, SW, SR, SO = 4, 8, 12, 16
    RV = 2
    ostep = 512 if out_fl else 32
    def srds():
        g.srd(SA, a_ptr, a_off, 2048 * a_rowb)
        g.srd(SW, w_ptr, 0, KD * 1024)
        g.srd(SR, res_ptr, res_off, 2048 * 1024)
        g.srd(SO, out_ptr, out_off, 2048 * 1024)
    if not KLATE:
        srds()
    g.e("s_and_b32 s20, s2, 31")
    g.e("s_lshr_b32 s21, s2, 5")
    g.e("s_lshl_b32 s22, s20, 6")
    g.e("s_lshl_b32 s23, s3, 4")
    g.e("s_add_u32 s22, s22, s23")
    g.e("v_and_b32 v3, 15, v1")
    g.e("v_add_u32 v3, s22, v3")
    g.e("v_lshrrev_b32 v4, 4, v1")
    g.e("s_lshl_b32 s27, s20, 2")
    g.e("s_add_u32 s27, s27, s3")
    g.e("s_mul_i32 s28, s27, %d" % (16 * a_rowb))
    g.e("v_lshlrev_b32 v5, 4, v1")
    g.e("v_add_u32 v5, s28, v5")
    g.e("s_lshl_b32 s28, s27, 14")
    g.e("s_lshl_b32 s29, s21, 11")
    g.e("s_add_u32 s28, s28, s29")
    g.e("v_and_b32 v9, 15, v1")
    g.e("v_lshlrev_b32 v9, 4, v9")
    g.e("v_bfe_u32 v10, v1, 5, 1")
    g.e("v_lshl_add_u32 v9, v10, 8, v9")
    g.e("v_bfe_u32 v10, v1, 4, 1")
    g.e("v_lshl_add_u32 v9, v10, 3, v9")
    g.e("v_add_u32 v%d, s28, v9" % RV)
    g.e("s_lshl_b32 s23, s21, 7")
    if not out_fl:
        g.e("v_lshlrev_b32 v6, 10, v3")
        g.e("v_lshl_add_u32 v6, v4, 3, v6")
        g.e("v_add_u32 v6, s23, v6")
    else:
        g.e("v_mov_b32 v6, v%d" % RV)
    g.e("v_lshrrev_b32 v9, 3, v1")
    g.e("v_and_b32 v10, 7, v1")
    g.e("v_bfe_u32 v11, v1, 4, 1")
    g.e("v_lshlrev_b32 v11, 1, v11")
    g.e("v_xor_b32 v10, v10, v11")
    g.e("v_lshlrev_b32 v9, 10, v9")
    g.e("v_lshl_add_u32 v7, v10, 4, v9")
    g.e("v_xor_b32 v10, 4, v10")
    g.e("v_lshl_add_u32 v8, v10, 4, v9")
    g.e("s_lshl_b32 s24, s3, 15")
    g.e("s_add_u32 s24, s24, s23")
    g.e("s_lshl_b32 s25, s3, 12")
    g.e("v_bfe_u32 v9, v1, 2, 2")
    g.e("v_lshl_add_u32 v10, v4, 3, v9")
    g.e("v_lshlrev_b32 v10, 7, v10")
    g.e("v_bfe_u32 v11, v1, 1, 1")
    g.e("v_lshl_add_u32 v10, v11, 4, v10")
    g.e("v_and_b32 v11, 1, v1")
    g.e("v_lshl_add_u32 v10, v11, 3, v10")
    g.e("v_bfe_u32 v11, v1, 3, 1")
    g.e("v_bfe_u32 v12, v1, 4, 1")
    g.e("v_lshl_or_b32 v11, v12, 1, v11")
    g.e("v_lshlrev_b32 v11, 1, v11")
    TA = 12
    for nt in range(4):
        g.e("v_xor_b32 v20, %d, v11" % (2 * nt))
        g.e("v_lshl_add_u32 v%d, v20, 4, v10" % (TA + nt))
        g.e("v_add_u32 v%d, 0x10000, v%d" % (TA + 4 + nt, TA + nt))
    RES = 20
    ACC = 28
    WF = 44
    D = 7
    NR = D + 1

    def stage_loads(s):
        slot = s % nslots
        out = []
        for q in range(4):
            def f(q=q):
                g.e("s_add_u32 m0, s25, 0x%x" % (slot * 16384 + q * 1024))
                g.e("s_add_u32 s26, s24, 0x%x" % ((s * 128 + q * 8) * 1024))
                g.vm("buffer_load_dwordx4 v%d, s[%d:%d], s26 offen lds" % (7 + (q & 1), SW, SW + 3), ("st", s))
            out.append(f)
            def f2(k4=q):
                ks = s * 4 + k4
                g.e("s_mov_b32 s27, 0x%x" % (s * 4096))
                g.vm("buffer_load_dwordx4 %s, v5, s[%d:%d], s27 offen offset:%d" % (ar(ks * 4), SA, SA + 3, k4 * 1024), ("st", s))
            out.append(f2)
        return out

    def issue_stage(s):
        for f in stage_loads(s):
            f()

    P = min(PRO_RES, nslots - 2) if ring else PRO_RES
    npro = min(nst, P, P0_RES)
    nxt = [npro]
    if KLATE:
        g.kwait()
        srds()
    issue_stage(0)
    for nt in range(4):
        g.vm("buffer_load_dwordx2 %s, v%d, s[%d:%d], 0 offen offset:%d" % (vr(RES + 2 * nt, 2), RV, SR, SR + 3, nt * 512), "res")
    for s in range(1, npro):
        issue_stage(s)
    if CUT == 1:
        g.e("s_waitcnt vmcnt(0)")
        g.e("s_endpgm")
    g.ts(1)
    tsst = (0, 1, 2, 3) if nst == 4 else (0, 1, 5, 9, 13)

    items = [(ks, nt) for ks in range(nks) for nt in range(4)]

    def on_stage_start(s):
        g.wait_vm(("st", s))
        g.e("s_barrier")
        if s in tsst:
            g.ts(2 + tsst.index(s))
        out = []
        for _ in range(CU_RATE):
            if nxt[0] <= s + P and nxt[0] < nst:
                out += stage_loads(nxt[0])
                nxt[0] += 1
        return out

    def issue_reads(j, it):
        ks, nt = it
        s = ks // 4
        slot = s % nslots
        off = slot * 16384 + (ks % 4) * 32 * 128
        a = TA + nt
        if off >= 65536:
            off -= 65536
            a += 4
        w = WF + (j % NR) * 4
        return [lambda: g.lg("ds_read_b64_tr_b16 %s, v%d offset:%d" % (vr(w, 2), a, off), ("it", j)),
                lambda: g.lg("ds_read_b64_tr_b16 %s, v%d offset:%d" % (vr(w + 2, 2), a, off + 512), ("it", j))]

    def do_mfma(i, it):
        ks, nt = it
        w = WF + (i % NR) * 4
        acc = vr(ACC + nt * 4)
        return [lambda: g.e("v_mfma_f32_16x16x32_bf16 %s, %s, %s, %s" % (acc, vr(w), ar(ks * 4), "0" if ks == 0 else acc))]

    pipeline(g, items, D, lambda it: it[0] // 4, on_stage_start, issue_reads, do_mfma)
    g.ts(7)
    g.wait_vm("res")
    g.nop(16)
    T = WF
    for nt in range(4):
        a = ACC + nt * 4
        r = RES + 2 * nt
        g.e("v_lshlrev_b32 v%d, 16, v%d" % (T, r))
        g.e("v_and_b32 v%d, 0xffff0000, v%d" % (T + 1, r))
        g.e("v_lshlrev_b32 v%d, 16, v%d" % (T + 2, r + 1))
        g.e("v_and_b32 v%d, 0xffff0000, v%d" % (T + 3, r + 1))
        for k in range(4):
            g.e("v_add_f32 v%d, v%d, v%d" % (a + k, a + k, T + k))
        g.e("v_cvt_pk_bf16_f32 v%d, v%d, v%d" % (a, a, a + 1))
        g.e("v_cvt_pk_bf16_f32 v%d, v%d, v%d" % (a + 1, a + 2, a + 3))
        g.vm("buffer_store_dwordx2 %s, v6, s[%d:%d], 0 offen offset:%d" % (vr(a, 2), SO, SO + 3, nt * ostep), "out")
    g.ts(8)
    g.ts_dump(2 if nst == 4 else 4)
    g.end(name)
    nv = WF + NR * 4
    return dict(name=name, grid=256, lds=nslots * 16384 if ring else nst * 16384, vgpr=nv, agpr=nks * 4)


def ln_gemm(g, name, mode):
    qkv = mode == "qkv"
    g.begin(name, 256)
    NT = 6 if qkv else 14
    NPM = 6 if qkv else 7
    NW0 = NPM - 3
    CSP = (0, 3) if qkv else (0, 4)
    nks = 16
    nst = 8
    nslots = 5
    SLOTB = 28672
    CSB = 5 * SLOTB
    lds = CSB + 1024
    SA, SW, SO, SX = 4, 8, 12, 16
    ool = []
    if qkv and CPF:
        g.e("s_getpc_b64 s[32:33]")
        g.e("s_and_b32 s32, s32, 0xffffff00")
        g.e("s_and_b32 s33, s33, 0xffff")
        g.e("s_mov_b32 s34, L_code_end-%s" % name)
        g.e("s_mov_b32 s35, 0x00020000")
        g.e("s_lshr_b32 s36, s2, 3")
        g.e("s_lshl_b32 s36, s36, 2")
        g.e("s_add_u32 s36, s36, s3")
        g.e("s_lshl_b32 s36, s36, 10")
        g.e("v_lshlrev_b32 v180, 4, v1")
        g.vm("buffer_load_dwordx4 v[184:187], v180, s[32:35], s36 offen", "pf")
    def srds():
        if qkv:
            g.srd(SA, P_X, 0, 2048 * 1024)
            g.srd(SW, P_WQKV, 0, 512 * 3072)
            g.srd(SO, P_WS, WS_QKV, 6 * MB)
            g.srd(SX, P_WS, WS_XF, 2 * MB)
        else:
            g.srd(SA, P_WS, WS_H, 2048 * 1024)
            g.e("s_cmp_lt_u32 s3, 2")
            g.e("s_cselect_b32 s%d, s%d, s%d" % (SW, P_W1, P_W3))
            g.e("s_cselect_b32 s%d, s%d, s%d" % (SW + 1, P_W1 + 1, P_W3 + 1))
            g.e("s_mov_b32 s%d, 0x%x" % (SW + 2, 512 * 3584))
            g.e("s_mov_b32 s%d, 0x00020000" % (SW + 3))
            g.srd(SO, P_WS, WS_HMID, 2048 * 3584)
    if not KLATE:
        srds()
    g.e("s_lshr_b32 s22, s2, 3")
    if qkv:
        g.e("s_and_b32 s20, s2, 3")
        g.e("s_lshl_b32 s20, s20, 2")
        g.e("s_and_b32 s23, s22, 3")
        g.e("s_add_u32 s20, s20, s23")
        g.e("s_bfe_u32 s21, s2, 0x10002")
        g.e("s_lshl_b32 s21, s21, 3")
        g.e("s_lshr_b32 s23, s22, 2")
        g.e("s_add_u32 s21, s21, s23")
    else:
        g.e("s_and_b32 s20, s2, 1")
        g.e("s_lshl_b32 s20, s20, 3")
        g.e("s_and_b32 s23, s22, 7")
        g.e("s_add_u32 s20, s20, s23")
        g.e("s_bfe_u32 s21, s2, 0x20001")
        g.e("s_lshl_b32 s21, s21, 2")
        g.e("s_lshr_b32 s23, s22, 3")
        g.e("s_add_u32 s21, s21, s23")
    g.e("s_lshl_b32 s22, s20, 7")
    g.e("s_lshl_b32 s23, s3, 5")
    g.e("s_add_u32 s22, s22, s23")
    g.e("v_and_b32 v3, 15, v1")
    g.e("v_lshrrev_b32 v4, 4, v1")
    g.e("v_bfe_u32 v9, v1, 2, 2")
    ST = 40
    for p in range(NPM):
        g.e("s_add_u32 s%d, s3, %d" % (ST + p, p))
        if p >= NW0:
            g.e("s_cmp_ge_u32 s%d, %d" % (ST + p, NPM))
            g.e("s_cselect_b32 s26, %d, 0" % NPM)
            g.e("s_sub_u32 s%d, s%d, s26" % (ST + p, ST + p))
    if qkv:
        g.e("v_lshrrev_b32 v10, 3, v1")
        g.e("v_and_b32 v11, 7, v1")
        g.e("v_xor_b32 v11, v11, v10")
        g.e("v_lshlrev_b32 v10, 10, v10")
        g.e("v_lshl_add_u32 v5, v11, 4, v10")
        g.e("s_lshl_b32 s30, s22, 10")
        g.e("s_lshl_b32 s31, s3, 12")
        g.e("s_mul_i32 s24, s3, 192")
        g.e("v_add_u32 v10, s24, v1")
        DV = 16
        for q in range(3):
            g.e("v_add_u32 v11, %d, v10" % (q * 64))
            g.e("v_mul_u32_u24 v12, 5462, v11")
            g.e("v_lshrrev_b32 v12, 16, v12")
            g.e("v_mul_u32_u24 v13, 12, v12")
            g.e("v_sub_u32 v13, v11, v13")
            g.e("v_bfe_u32 v14, v12, 3, 1")
            g.e("v_lshlrev_b32 v14, 1, v14")
            g.e("v_xor_b32 v13, v13, v14")
            g.e("v_mul_u32_u24 v14, 3072, v12")
            g.e("v_lshl_add_u32 v%d, v13, 4, v14" % (DV + q))
        g.e("s_mul_i32 s24, s21, 192")
        g.e("s_mul_i32 s25, s3, 3072")
        g.e("v_add_u32 v10, s22, v3")
        g.e("v_lshlrev_b32 v7, 5, v10")
        g.e("v_lshl_add_u32 v7, v4, 3, v7")
        g.e("s_lshl_b32 s26, s22, 10")
        g.e("s_lshl_b32 s27, s21, 10")
        g.e("s_add_u32 s26, s26, s27")
        g.e("v_lshlrev_b32 v8, 4, v1")
        g.e("v_add_u32 v8, s26, v8")
        g.e("v_and_b32 v10, 7, v1")
        g.e("v_xor_b32 v10, v10, v4")
        g.e("v_lshlrev_b32 v11, 7, v3")
        g.e("v_lshl_add_u32 v11, v10, 4, v11")
        g.e("v_add_u32 v19, s31, v11")
        g.e("v_xor_b32 v20, 64, v19")
        XA = 19
        for b in range(1, 3):
            g.e("v_add_u32 v%d, 0x%x, v19" % (XA + 2 * b, b * 2 * SLOTB))
            g.e("v_add_u32 v%d, 0x%x, v20" % (XA + 2 * b + 1, b * 2 * SLOTB))
        g.e("v_lshl_add_u32 v10, v4, 3, v9")
        g.e("v_mul_u32_u24 v10, 192, v10")
        g.e("v_bfe_u32 v11, v1, 1, 1")
        g.e("v_lshl_add_u32 v10, v11, 4, v10")
        g.e("v_and_b32 v11, 1, v1")
        g.e("v_lshl_add_u32 v10, v11, 3, v10")
        g.e("v_add_u32 v10, 0x4000, v10")
        g.e("v_bfe_u32 v11, v1, 4, 1")
        g.e("v_lshlrev_b32 v11, 5, v11")
        TA = 25
        NA = 5
        ai = lambda p: (p & 1) if p < NW0 else p - 1
        for k, p in enumerate((0, 1, 3, 4, 5)):
            g.e("s_sub_u32 s26, s%d, %d" % (ST + p, p))
            g.e("s_lshl_b32 s26, s26, 5")
            g.e("v_add_u32 v12, s26, v10")
            g.e("s_and_b32 s27, s%d, 1" % (ST + p))
            g.e("s_lshl_b32 s27, s27, 1")
            g.e("s_sub_u32 s27, 1, s27")
            g.e("v_mul_lo_u32 v13, s27, v11")
            g.e("v_add_u32 v%d, v12, v13" % (TA + k))
        for b in range(1, 3):
            for k in range(NA):
                g.e("v_add_u32 v%d, 0x%x, v%d" % (TA + NA * b + k, b * 2 * SLOTB, TA + k))
        nextv = TA + 3 * NA
    else:
        g.e("s_lshl_b32 s26, s22, 10")
        g.e("v_lshlrev_b32 v5, 4, v1")
        g.e("v_add_u32 v5, s26, v5")
        g.e("v_add_u32 v6, 0x4000, v5")
        g.e("s_lshr_b32 s26, s22, 4")
        g.e("s_mul_i32 s26, s26, 57344")
        g.e("s_mul_i32 s27, s21, 3584")
        g.e("s_add_u32 s26, s26, s27")
        g.e("v_lshlrev_b32 v7, 4, v3")
        g.e("v_bfe_u32 v10, v1, 5, 1")
        g.e("v_lshl_add_u32 v7, v10, 8, v7")
        g.e("v_bfe_u32 v10, v1, 4, 1")
        g.e("v_lshl_add_u32 v7, v10, 3, v7")
        g.e("v_add_u32 v7, s26, v7")
        g.e("s_mul_i32 s23, s21, 224")
        g.e("s_and_b32 s24, s3, 1")
        g.e("s_mul_i32 s24, s24, 448")
        g.e("v_add_u32 v10, s24, v1")
        DV = 16
        for q in range(7):
            g.e("v_add_u32 v11, %d, v10" % (q * 64))
            g.e("v_mul_u32_u24 v12, 4682, v11")
            g.e("v_lshrrev_b32 v12, 16, v12")
            g.e("v_mul_u32_u24 v13, 14, v12")
            g.e("v_sub_u32 v13, v11, v13")
            g.e("v_and_b32 v14, 0x33, v12")
            g.e("v_bfe_u32 v15, v12, 2, 1")
            g.e("v_lshl_or_b32 v14, v15, 3, v14")
            g.e("v_bfe_u32 v15, v12, 3, 1")
            g.e("v_lshl_or_b32 v14, v15, 2, v14")
            g.e("v_mul_u32_u24 v14, 3584, v14")
            g.e("v_lshl_add_u32 v%d, v13, 4, v14" % (DV + q))
        g.e("s_mov_b32 s24, s23")
        g.e("s_mul_i32 s25, s3, 7168")
        g.e("v_bfe_u32 v10, v1, 5, 1")
        g.e("v_lshl_add_u32 v10, v10, 4, v9")
        g.e("v_bfe_u32 v11, v1, 4, 1")
        g.e("v_lshl_add_u32 v10, v11, 2, v10")
        g.e("v_mul_u32_u24 v10, 224, v10")
        g.e("v_and_b32 v11, 3, v1")
        g.e("v_lshl_add_u32 v10, v11, 3, v10")
        TA = 23
        NA = 4
        ai = lambda p: 0 if p < NW0 else p - 3
        for k, p in enumerate((0, 4, 5, 6)):
            g.e("s_lshl_b32 s26, s%d, 5" % (ST + p))
            g.e("v_add_u32 v%d, s26, v10" % (TA + k))
        for b in range(1, 3):
            for k in range(NA):
                g.e("v_add_u32 v%d, 0x%x, v%d" % (TA + NA * b + k, b * 2 * SLOTB, TA + k))
        nextv = TA + 3 * NA
    nextv = (nextv + 3) // 4 * 4
    ONES = nextv
    for k in range(4):
        g.e("v_mov_b32 v%d, 0x3f803f80" % (ONES + k))
    SUM = ONES + 4
    GRAM = SUM + 8
    CSA = GRAM + 8
    WF = CSA + 16
    D = 6 if qkv else 7
    NR = 8
    nextv = WF + NR * 4
    AX = 0
    ACCV = nextv
    nextv += 2 * NT * 4
    acc = lambda tt, ct: vr(ACCV + (tt * NT + ct) * 4)
    if qkv:
        XF = nextv
        nextv += 16
        XS = nextv
        nextv += 8
        xfr = lambda ks, tt: vr(XF + ((ks & 1) * 2 + tt) * 4)
    else:
        xfr = lambda ks, tt: ar(AX + (tt * 16 + ks) * 4)

    def stage_loads(s):
        wl, al = [], []
        slot = s % nslots
        if qkv:
            for q in range(3):
                def f(q=q):
                    g.e("s_add_u32 m0, s25, 0x%x" % (slot * SLOTB + 16384 + q * 1024))
                    g.e("s_add_u32 s26, s24, 0x%x" % (s * 64 * 3072))
                    g.vm("buffer_load_dwordx4 v%d, s[%d:%d], s26 offen lds" % (DV + q, SW, SW + 3), ("st", s))
                wl.append(f)
            for q in range(4):
                def f(q=q):
                    g.e("s_add_u32 m0, s31, 0x%x" % (slot * SLOTB + q * 1024))
                    g.e("s_add_u32 s26, s30, 0x%x" % (q * 8192 + s * 128))
                    g.vm("buffer_load_dwordx4 v5, s[%d:%d], s26 offen lds" % (SA, SA + 3), ("st", s))
                al.append(f)
        else:
            for q in range(7):
                def f(q=q):
                    g.e("s_add_u32 m0, s25, 0x%x" % (slot * SLOTB + q * 1024))
                    g.e("s_add_u32 s26, s24, 0x%x" % (s * 64 * 3584))
                    g.vm("buffer_load_dwordx4 v%d, s[%d:%d], s26 offen lds" % (DV + q, SW, SW + 3), ("st", s))
                wl.append(f)
            for k2 in range(2):
                for tt in range(2):
                    def f(k2=k2, tt=tt):
                        ks = s * 2 + k2
                        g.e("s_mov_b32 s27, 0x%x" % (s * 2048))
                        g.vm("buffer_load_dwordx4 %s, v%d, s[%d:%d], s27 offen offset:%d" % (
                            ar(AX + (tt * 16 + ks) * 4), 5 + tt, SA, SA + 3, k2 * 1024), ("st", s))
                    al.append(f)
        out = []
        while wl or al:
            if wl:
                out.append(wl.pop(0))
            if al and (len(al) >= len(wl) or not wl or len(out) % 2 == 0):
                out.append(al.pop(0))
        return out

    def issue_stage(s):
        for f in stage_loads(s):
            f()

    def k1pf():
        g.e("s_lshl_b32 s36, s2, 2")
        g.e("s_add_u32 s36, s36, s3")
        g.e("s_lshl_b32 s37, s36, 11")
        g.e("s_mul_i32 s36, s36, 1536")
        g.e("v_lshlrev_b32 v180, 4, v1")
        g.vm("buffer_load_dwordx4 v[184:187], v180, s[%d:%d], s37 offen" % (SA, SA + 3), "pf")
        g.vm("buffer_load_dwordx4 v[184:187], v180, s[%d:%d], s37 offen offset:1024" % (SA, SA + 3), "pf")
        g.vm("buffer_load_dwordx4 v[184:187], v180, s[%d:%d], s36 offen" % (SW, SW + 3), "pf")
        g.vm("buffer_load_dwordx4 v[184:187], v180, s[%d:%d], s36 offen offset:1024" % (SW, SW + 3), "pf")

    P = min(PRO_LN, nslots - 2)
    nxt = [min(P, P0_LN)]
    if KLATE:
        g.kwait()
        srds()
    for s in range(nxt[0]):
        issue_stage(s)
        if qkv and K1PF == 2 and s == 0:
            k1pf()
    if qkv and K1PF == 1:
        k1pf()
    if qkv and TLB1:
        g.srd(32, P_WS, 0, 20 * MB)
        g.srd(36, P_OUT, 0, 2 * MB)
        g.e("v_mul_u32_u24 v180, 0x50000, v1")
        g.vm("buffer_load_dword v184, v180, s[32:35], 0 offen", "pf")
        g.e("v_lshlrev_b32 v181, 15, v1")
        g.vm("buffer_load_dword v185, v181, s[36:39], 0 offen", "pf")
    g.ts(1)

    items = [(ks, ct) for ks in range(nks) for ct in range(NT)]

    def on_stage_start(s):
        g.wait_vm(("st", s))
        g.e("s_barrier")
        if s in (0, 1, 3, 5, 7):
            g.ts(2 + (0, 1, 3, 5, 7).index(s))
        out = []
        for _ in range(CU_RATE):
            if nxt[0] <= s + P and nxt[0] < nst:
                out += stage_loads(nxt[0])
                nxt[0] += 1
        return out

    def issue_reads(j, it):
        ks, ct = it
        w = WF + (j % NR) * 4
        s = ks // 2
        slot = s % nslots
        b, so = slot >> 1, (slot & 1) * SLOTB
        out = []
        if qkv:
            if ct == 0:
                for tt in range(2):
                    out.append(lambda tt=tt: g.lg("ds_read_b128 %s, v%d offset:%d" % (xfr(ks, tt), XA + 2 * b + (ks & 1), so + tt * 2048), ("it", j)))
            a = TA + NA * b + ai(ct)
            off = so + (ks % 2) * 32 * 192 + ct * 32
            off2 = off + 4 * 192
        else:
            mat, p = ct // 7, ct % 7
            a = TA + NA * b + ai(p)
            off = so + mat * 14336 + (ks % 2) * 32 * 224 + (p * 32 if p < NW0 else 0)
            off2 = off + 8 * 224
        out.append(lambda: g.lg("ds_read_b64_tr_b16 %s, v%d offset:%d" % (vr(w, 2), a, off), ("it", j)))
        out.append(lambda: g.lg("ds_read_b64_tr_b16 %s, v%d offset:%d" % (vr(w + 2, 2), a, off2), ("it", j)))
        return out

    def do_mfma(i, it):
        ks, ct = it
        w = WF + (i % NR) * 4
        out = []
        def mf(d, a, b):
            out.append(lambda: g.e("v_mfma_f32_16x16x32_bf16 %s, %s, %s, %s" % (d, a, b, "0" if ks == 0 else d)))
        for tt in range(2):
            mf(acc(tt, ct), vr(w), xfr(ks, tt))
        mat, p = ct // NPM, ct % NPM
        if p in CSP:
            mf(vr(CSA + (mat * 2 + CSP.index(p)) * 4), vr(w), vr(ONES))
        if ct in (1, 2):
            tt = ct - 1
            x = xfr(ks, tt)
            mf(vr(SUM + tt * 4), vr(ONES), x)
            mf(vr(GRAM + tt * 4), x, x)
        if qkv and ct == 4:
            def f():
                L = g.newlabel("xs")
                g.e("s_cmp_eq_u32 s21, %d" % ks)
                g.e("s_cbranch_scc1 %s" % L)
                g.label(L + "_r")
                ool.append((L, ks))
            out.append(f)
        return out

    pipeline(g, items, D, lambda it: it[0] // 2, on_stage_start, issue_reads, do_mfma)
    if qkv:
        g.vm("buffer_store_dwordx4 %s, v8, s[%d:%d], 0 offen" % (vr(XS), SX, SX + 3), "out")
        g.e("v_add_u32 v8, 0x4000, v8")
        g.vm("buffer_store_dwordx4 %s, v8, s[%d:%d], 0 offen" % (vr(XS + 4), SX, SX + 3), "out")
    g.nop(16)
    g.ts(7)
    T = WF
    g.e("v_lshlrev_b32 v%d, 4, v4" % T)
    g.e("v_add_u32 v%d, 0x%x, v%d" % (T + 1, CSB, T))
    for k in range(2):
        g.e("s_lshl_b32 s27, s%d, 6" % (ST + CSP[k]))
        g.e("v_add_u32 v%d, s27, v%d" % (T + 2 + k, T + 1))
    g.e("s_mov_b32 s28, 0x00010001")
    g.e("s_mov_b32 s29, 0x00010001")
    g.e("s_mov_b64 exec, s[28:29]")
    for mat in range(NT // NPM):
        for k in range(2):
            g.lg("ds_write_b128 v%d, %s offset:%d" % (T + 2 + k, vr(CSA + (mat * 2 + k) * 4), mat * NPM * 64), "csw")
    g.e("s_mov_b64 exec, -1")
    for r in range(4):
        m = 0
        for gg in range(4):
            m |= 1 << (20 * gg + r)
        g.e("s_mov_b32 s%d, 0x%x" % (30 + 2 * r, m & 0xffffffff))
        g.e("s_mov_b32 s%d, 0x%x" % (31 + 2 * r, m >> 32))
    for tt in range(2):
        d = T + 4
        g.e("v_mov_b32 v%d, 0" % d)
        for r in range(4):
            g.e("v_cndmask_b32_e64 v%d, v%d, v%d, s[%d:%d]" % (d, d, GRAM + tt * 4 + r, 30 + 2 * r, 31 + 2 * r))
        g.e("v_mov_b32 v%d, v%d" % (d + 1, d))
        g.nop(2)
        g.e("v_permlane16_swap_b32 v%d, v%d" % (d, d + 1))
        g.nop(1)
        g.e("v_add_f32 v%d, v%d, v%d" % (d, d, d + 1))
        g.e("v_mov_b32 v%d, v%d" % (d + 1, d))
        g.nop(2)
        g.e("v_permlane32_swap_b32 v%d, v%d" % (d, d + 1))
        g.nop(1)
        g.e("v_add_f32 v%d, v%d, v%d" % (d, d, d + 1))
        m = SUM + tt * 4
        g.e("v_mul_f32 v%d, %s, v%d" % (m, f32hex(1.0 / 512), m))
        g.e("v_mul_f32 v%d, %s, v%d" % (d, f32hex(1.0 / 512), d))
        g.e("v_fma_f32 v%d, -v%d, v%d, v%d" % (d, m, m, d))
        g.e("v_max_f32 v%d, 0, v%d" % (d, d))
        g.e("v_add_f32 v%d, %s, v%d" % (m + 3, f32hex(1e-5), d))
        g.e("v_rsq_f32 v%d, v%d" % (m + 1, m + 3))
        g.nop(1)
        g.e("v_mul_f32 v%d, %s, v%d" % (m + 2, f32hex(QSCALE if qkv else -LOG2E), m + 1))
    g.wait_lg("csw")
    g.e("s_barrier")
    CS = T + 8
    AD = T + 6
    def pk(op, d, a, b, c=None, sel=None, neg=False):
        ops = [a, b] + ([c] if c is not None else [])
        sel = sel or {}
        lo = [sel.get(i, (0, 1))[0] for i in range(len(ops))]
        hi = [sel.get(i, (0, 1))[1] for i in range(len(ops))]
        t = "%s %s, %s" % (op, vr(d, 2), ", ".join(vr(o, 2) for o in ops))
        t += " op_sel:[%s] op_sel_hi:[%s]" % (",".join(map(str, lo)), ",".join(map(str, hi)))
        if neg:
            z = ["1"] + ["0"] * (len(ops) - 1)
            t += " neg_lo:[%s] neg_hi:[%s]" % (",".join(z), ",".join(z))
        g.e(t)

    def cs_read(p):
        bb = CS + (p & 1) * 8
        g.e("s_lshl_b32 s27, s%d, 6" % (ST + p))
        g.e("v_add_u32 v%d, s27, v%d" % (AD + (p & 1), T + 1))
        g.lg("ds_read_b128 %s, v%d" % (vr(bb), AD + (p & 1)), ("cs", p))
        if not qkv:
            g.lg("ds_read_b128 %s, v%d offset:448" % (vr(bb + 4), AD + (p & 1)), ("cs", p))
    cs_read(0)
    if qkv:
        for p in range(NPM):
            if p + 1 < NPM:
                cs_read(p + 1)
            g.wait_lg(("cs", p))
            bb = CS + (p & 1) * 8
            g.e("s_mul_i32 s26, s21, 6")
            g.e("s_add_u32 s26, s26, s%d" % (ST + p))
            g.e("s_cmp_lt_u32 s26, 32")
            g.e("s_cselect_b32 s28, -1, 0")
            g.e("s_mov_b32 s29, s28")
            g.e("s_lshl_b32 s26, s26, 16")
            for tt in range(2):
                a = ACCV + (tt * NT + p) * 4
                m = SUM + tt * 4
                rs = T + 4
                g.e("v_cndmask_b32_e64 v%d, v%d, v%d, s[28:29]" % (rs, m + 1, m + 2))
                pk("v_pk_fma_f32", a, m, bb, a, sel={0: (0, 0)}, neg=True)
                pk("v_pk_fma_f32", a + 2, m, bb + 2, a + 2, sel={0: (0, 0)}, neg=True)
                pk("v_pk_mul_f32", a, a, rs, sel={1: (0, 0)})
                pk("v_pk_mul_f32", a + 2, a + 2, rs, sel={1: (0, 0)})
                g.e("v_cvt_pk_bf16_f32 v%d, v%d, v%d" % (a, a, a + 1))
                g.e("v_cvt_pk_bf16_f32 v%d, v%d, v%d" % (a + 1, a + 2, a + 3))
                g.vm("buffer_store_dwordx2 %s, v7, s[%d:%d], s26 offen offset:%d" % (vr(a, 2), SO, SO + 3, tt * 512), "out")
    else:
        g.e("v_add_u32 v8, 0x%x, v7" % 57344)
        E = CS + 16
        for p in range(NPM):
            if p + 1 < NPM:
                cs_read(p + 1)
            g.wait_lg(("cs", p))
            bb = CS + (p & 1) * 8
            g.e("s_lshl_b32 s26, s%d, 9" % (ST + p))
            GV = [ACCV + (tt * NT + p) * 4 for tt in range(2)]
            UV = [ACCV + (tt * NT + 7 + p) * 4 for tt in range(2)]
            M = [SUM + tt * 4 for tt in range(2)]
            EV = [E + tt * 4 for tt in range(2)]
            for tt in range(2):
                for h in (0, 2):
                    pk("v_pk_fma_f32", GV[tt] + h, M[tt], bb + h, GV[tt] + h, sel={0: (0, 0)}, neg=True)
                for h in (0, 2):
                    pk("v_pk_mul_f32", EV[tt] + h, GV[tt] + h, M[tt] + 2, sel={1: (0, 0)})
            for tt in range(2):
                for k in range(4):
                    g.e("v_exp_f32 v%d, v%d" % (EV[tt] + k, EV[tt] + k))
            for tt in range(2):
                for h in (0, 2):
                    pk("v_pk_fma_f32", UV[tt] + h, M[tt], bb + 4 + h, UV[tt] + h, sel={0: (0, 0)}, neg=True)
                for h in (0, 2):
                    pk("v_pk_mul_f32", UV[tt] + h, UV[tt] + h, GV[tt] + h)
            for tt in range(2):
                for h in (0, 2):
                    pk("v_pk_fma_f32", EV[tt] + h, EV[tt] + h, M[tt] + 2, M[tt] + 2, sel={1: (1, 1), 2: (1, 1)})
            for tt in range(2):
                for k in range(4):
                    g.e("v_rcp_f32 v%d, v%d" % (EV[tt] + k, EV[tt] + k))
            g.nop(1)
            for tt in range(2):
                for h in (0, 2):
                    pk("v_pk_mul_f32", UV[tt] + h, UV[tt] + h, EV[tt] + h)
                g.e("v_cvt_pk_bf16_f32 v%d, v%d, v%d" % (UV[tt], UV[tt], UV[tt] + 1))
                g.e("v_cvt_pk_bf16_f32 v%d, v%d, v%d" % (UV[tt] + 1, UV[tt] + 2, UV[tt] + 3))
                g.vm("buffer_store_dwordx2 %s, v%d, s[%d:%d], s26 offen" % (vr(UV[tt], 2), 7 + tt, SO, SO + 3), "out")
    g.ts(8)
    g.ts_dump(0 if qkv else 3)
    g.end(name)
    for L, ks in ool:
        g.label(L)
        for k in range(8):
            g.e("v_mov_b32 v%d, v%d" % (XS + k, XF + (ks & 1) * 8 + k))
        g.e("s_branch %s_r" % L)
    return dict(name=name, grid=256, lds=lds, vgpr=max(nextv, 188) if qkv else nextv, agpr=0 if qkv else 128)


def attention(g, name):
    g.begin(name, 512)
    SQ, SO = 4, 8
    def srds():
        g.srd(SQ, P_WS, WS_QKV, 6 * MB)
        g.srd(SO, P_WS, WS_ATTN, 2 * MB)
    if not KLATE:
        srds()
    VB = 0
    OB = 12288
    lds = OB + 1024
    g.e("s_and_b32 s20, s2, 31")
    g.e("s_lshr_b32 s21, s2, 5")
    g.e("s_lshl_b32 s22, s21, 7")
    g.e("s_lshl_b32 s23, s3, 5")
    g.e("s_add_u32 s23, s22, s23")
    g.e("s_lshr_b32 s24, s23, 5")
    g.e("s_sub_i32 s24, 8, s24")
    g.e("s_max_i32 s24, s24, 0")
    g.e("v_and_b32 v3, 31, v1")
    g.e("v_lshrrev_b32 v4, 5, v1")
    g.e("s_lshl_b32 s25, s20, 16")
    g.e("v_add_u32 v5, s23, v3")
    g.e("v_lshlrev_b32 v5, 5, v5")
    g.e("v_lshl_add_u32 v5, v4, 4, v5")
    g.e("v_add_u32 v5, s25, v5")
    QF = 8
    KF = 12
    if KLATE:
        g.kwait()
        srds()
    g.vm("buffer_load_dwordx4 %s, v5, s[%d:%d], 0 offen" % (vr(QF), SQ, SQ + 3), "q")
    g.e("v_add_u32 v6, 0x%x, v5" % (2 * MB - 8192))
    for t in range(9):
        if t == 4 or t == 8:
            g.e("v_add_u32 v6, 0x1000, v6")
        g.vm("buffer_load_dwordx4 %s, v6, s[%d:%d], 0 offen offset:%d" % (vr(KF + 4 * t), SQ, SQ + 3, (t % 4) * 1024), ("k", t))
    g.e("s_lshl_b32 s26, s22, 5")
    g.e("s_add_u32 s26, s26, s25")
    g.e("s_add_u32 s26, s26, 0x%x" % (4 * MB - 8192))
    g.e("s_mul_i32 s27, s3, 3072")
    g.e("s_add_u32 s26, s26, s27")
    g.e("v_lshlrev_b32 v7, 4, v1")
    g.e("v_add_u32 v7, s26, v7")
    for q in range(3):
        g.e("s_add_u32 m0, s27, 0x%x" % (VB + q * 1024))
        if q:
            g.e("v_add_u32 v7, 0x400, v7")
        else:
            g.e("s_nop 0")
        g.vm("buffer_load_dwordx4 v7, s[%d:%d], 0 offen lds" % (SQ, SQ + 3), "v")
    NPF = 0
    def do_pf():
        g.srd(32, P_WO, 0, 512 * 1024)
        g.srd(36, P_W1, 0, 512 * 3584)
        g.srd(40, P_W3, 0, 512 * 3584)
        g.srd(44, P_W2, 0, 1792 * 1024)
        PV = 176
        g.e("v_lshlrev_b32 v%d, 4, v1" % PV)
        g.e("s_lshl_b32 s28, s2, 2")
        g.e("s_add_u32 s28, s28, s3")
        g.e("s_lshl_b32 s28, s28, 10")
        for sr in (32, 36, 40, 44):
            g.vm("buffer_load_dwordx4 %s, v%d, s[%d:%d], s28 offen" % (vr(PV + 4), PV, sr, sr + 3), "pf")
        if TLB2:
            g.srd(32, P_WS, 8 * MB, 10 * MB)
            g.srd(36, P_OUT, 0, 2 * MB)
            g.e("v_mul_u32_u24 v%d, 0x28000, v1" % (PV + 1))
            g.vm("buffer_load_dword v%d, v%d, s[32:35], 0 offen" % (PV + 4, PV + 1), "pf")
            g.e("v_lshlrev_b32 v%d, 15, v1" % (PV + 2))
            g.vm("buffer_load_dword v%d, v%d, s[36:39], 0 offen" % (PV + 5, PV + 2), "pf")
    if PFM == 'A':
        do_pf()
        NPF = 4
    M0_ = 48
    M8_ = 64
    NM = 80
    S0 = 96
    PF = 128
    VF = 144
    OA = 160
    for k in range(4):
        g.e("v_mov_b32 v%d, 0x3f803f80" % (S0 + k))
    g.e("v_lshlrev_b32 v2, 4, v1")
    g.lg("ds_write_b128 v2, %s offset:%d" % (vr(S0), OB), "ones")
    g.e("v_lshlrev_b32 v2, 2, v4")
    g.e("v_sub_u32 v2, v3, v2")
    NEG = f32hex(-1e30)
    g.e("v_mov_b32 v%d, %s" % (S0 + 4, NEG))
    for r in range(16):
        jc = (r & 3) + 8 * (r >> 2)
        g.e("v_cmp_gt_i32 vcc, %d, v2" % jc)
        g.nop(2)
        g.e("v_cndmask_b32 v%d, v%d, 0, vcc" % (M0_ + r, S0 + 4))
        g.e("v_cndmask_b32 v%d, 0, v%d, vcc" % (M8_ + r, S0 + 4))
    g.e("v_bfe_u32 v2, v1, 2, 2")
    g.e("v_lshl_add_u32 v2, v4, 2, v2")
    g.e("v_lshlrev_b32 v2, 5, v2")
    g.e("v_and_b32 v5, 3, v1")
    g.e("v_lshl_add_u32 v2, v5, 3, v2")
    g.e("s_lshl_b32 s27, s3, 10")
    g.e("s_add_u32 s27, s27, 0x%x" % VB)
    g.e("v_add_u32 v2, s27, v2")
    g.e("v_lshlrev_b32 v5, 7, v4")
    g.e("v_sub_u32 v5, 0x%x, v5" % (OB + 128))
    g.e("v_bfe_u32 v6, v1, 4, 1")
    g.e("v_cmp_eq_u32 vcc, 1, v6")
    g.nop(2)
    g.e("v_cndmask_b32 v2, v2, v5, vcc")
    g.e("v_mov_b32 v5, 0x400")
    g.e("v_cndmask_b32 v5, v5, 0, vcc")
    g.e("v_mul_lo_u32 v6, v5, s24")
    g.e("v_add_u32 v2, v2, v6")
    VA, VI = 2, 5
    MX = 6
    g.e("v_mov_b32 v%d, %s" % (MX, NEG))
    g.wait_vm("q")
    def smfma(t, dst, c):
        g.e("v_mfma_f32_32x32x16_bf16 %s, %s, %s, %s" % (vr(dst, 16), vr(KF + 4 * t), vr(QF), c))
    for t in range(9):
        L = g.newlabel("p1")
        if t < 8:
            g.e("s_cmp_gt_u32 s24, %d" % t)
            g.e("s_cbranch_scc1 %s" % L)
        g.e("s_waitcnt vmcnt(%d)" % (NPF + 3 + 8 - t))
        c = vr(M0_, 16) if t == 0 else (vr(M8_, 16) if t == 8 else "0")
        dst = S0 + 16 * (t & 1)
        smfma(t, dst, c)
        g.nop(18)
        for r in range(0, 16, 2):
            g.e("v_max3_f32 v%d, v%d, v%d, v%d" % (MX, MX, dst + r, dst + r + 1))
        g.label(L)
    g.vmq = [x for x in g.vmq if x in ("v", "pf")]
    if PFM == 'C':
        do_pf()
    g.e("v_mov_b32 v%d, v%d" % (MX + 1, MX))
    g.nop(2)
    g.e("v_permlane32_swap_b32 v%d, v%d" % (MX, MX + 1))
    g.nop(1)
    g.e("v_max_f32 v%d, v%d, v%d" % (MX, MX, MX + 1))
    for r in range(16):
        g.e("v_sub_f32 v%d, 0, v%d" % (NM + r, MX))
    for r in range(16):
        g.e("v_sub_f32 v%d, v%d, v%d" % (M0_ + r, M0_ + r, MX))
        g.e("v_sub_f32 v%d, v%d, v%d" % (M8_ + r, M8_ + r, MX))
    for r in range(16):
        g.e("v_mov_b32 v%d, 0" % (OA + r))
    g.wait_vm("v")
    g.wait_lg("ones")
    g.e("s_barrier")
    if PFM == 'D':
        do_pf()
    for t in range(9):
        L = g.newlabel("p2")
        if t < 8:
            g.e("s_cmp_gt_u32 s24, %d" % t)
            g.e("s_cbranch_scc1 %s" % L)
        vf = VF + 8 * (t & 1)
        for k in range(4):
            g.lg("ds_read_b64_tr_b16 %s, v%d offset:%d" % (vr(vf + 2 * k, 2), VA, 256 * k), ("vf", t))
        g.e("v_add_u32 v%d, v%d, v%d" % (VA, VA, VI))
        c = vr(M0_, 16) if t == 0 else (vr(M8_, 16) if t == 8 else vr(NM, 16))
        dst = S0 + 16 * (t & 1)
        smfma(t, dst, c)
        g.nop(18)
        for r in range(16):
            g.e("v_exp_f32 v%d, v%d" % (dst + r, dst + r))
        pf = PF + 8 * (t & 1)
        g.nop(1)
        for r in range(8):
            g.e("v_cvt_pk_bf16_f32 v%d, v%d, v%d" % (pf + r, dst + 2 * r, dst + 2 * r + 1))
        g.wait_lg(("vf", t))
        g.nop(2)
        g.e("v_mfma_f32_32x32x16_bf16 %s, %s, %s, %s" % (vr(OA, 16), vr(vf), vr(pf), vr(OA, 16)))
        g.e("v_mfma_f32_32x32x16_bf16 %s, %s, %s, %s" % (vr(OA, 16), vr(vf + 4), vr(pf + 4), vr(OA, 16)))
        g.label(L)
    g.nop(20)
    g.e("v_rcp_f32 v%d, v%d" % (MX, OA + 8))
    g.nop(1)
    for r in range(8):
        g.e("v_mul_f32 v%d, v%d, v%d" % (OA + r, OA + r, MX))
    for r in range(4):
        g.e("v_cvt_pk_bf16_f32 v%d, v%d, v%d" % (PF + r, OA + 2 * r, OA + 2 * r + 1))
    g.e("v_bfe_u32 v7, v3, 4, 1")
    g.e("v_lshlrev_b32 v7, 14, v7")
    g.e("v_and_b32 v6, 15, v3")
    g.e("v_lshl_add_u32 v7, v6, 4, v7")
    g.e("v_lshl_add_u32 v7, v4, 3, v7")
    g.e("s_lshl_b32 s26, s20, 9")
    g.e("s_lshl_b32 s27, s23, 10")
    g.e("s_add_u32 s26, s26, s27")
    g.vm("buffer_store_dwordx2 %s, v7, s[%d:%d], s26 offen" % (vr(PF, 2), SO, SO + 3), "o")
    g.vm("buffer_store_dwordx2 %s, v7, s[%d:%d], s26 offen offset:256" % (vr(PF + 2, 2), SO, SO + 3), "o")
    g.end(name)
    return dict(name=name, grid=512, lds=lds, vgpr=184, agpr=0)


def main():
    g = G()
    ks = []
    ks.append(ln_gemm(g, "k1_qkv_kernel", "qkv"))
    ks.append(attention(g, "k2_attn_kernel"))
    ks.append(gemm_res(g, "k3_wo_kernel", P_WS, WS_ATTN, 1024, 512, P_WO, P_WS, WS_XF, P_WS, WS_H, 8, True))
    ks.append(ln_gemm(g, "k4_ffn_kernel", "ffn"))
    ks.append(gemm_res(g, "k5_w2_kernel", P_WS, WS_HMID, 3584, 1792, P_W2, P_WS, WS_H, P_OUT, 0, 8, False))
    out = []
    for k in ks:
        out.append("; @launch kernel=%s grid=(%d,1,1) block=(256,1,1) lds=%d" % (k["name"], k["grid"], k["lds"]))
    out.append('.amdgcn_target "amdgcn-amd-amdhsa--gfx950"')
    out.append(".text")
    out += g.lines
    out.append("L_code_end:")
    out.append('.section .rodata,"a"')
    for k in ks:
        accoff = (k["vgpr"] + 3) // 4 * 4
        assert accoff <= 256
        tot = accoff + k["agpr"]
        assert tot <= 512
        out.append(".p2align 6")
        out.append(".amdhsa_kernel %s" % k["name"])
        out.append("  .amdhsa_next_free_vgpr %d" % tot)
        out.append("  .amdhsa_next_free_sgpr 102")
        out.append("  .amdhsa_accum_offset %d" % accoff)
        out.append("  .amdhsa_group_segment_fixed_size 0")
        out.append("  .amdhsa_kernarg_size 80")
        out.append("  .amdhsa_user_sgpr_count 2")
        out.append("  .amdhsa_user_sgpr_kernarg_segment_ptr 1")
        out.append("  .amdhsa_system_sgpr_workgroup_id_x 1")
        out.append(".end_amdhsa_kernel")
    dst = sys.argv[1] if len(sys.argv) > 1 else "sequential_preLN__sliding_block__glu_gated_swiglu__prompt.s"
    open(dst, "w").write("\n".join(out) + "\n")
    for k in ks:
        print(k)


if __name__ == "__main__":
    main()
```

```python
import sys

MB = 1 << 20
import os
CUT = int(os.environ.get('CUT', '-1'))
EXP = os.environ.get('EXP', '')
TS = int(os.environ.get('TS', '0'))
PRO_RES = int(os.environ.get('PRO_RES', '4'))
PRO_LN = int(os.environ.get('PRO_LN', '4'))
P0_RES = int(os.environ.get('P0_RES', '2'))
P0_LN = int(os.environ.get('P0_LN', '2'))
CU_RATE = int(os.environ.get('CU_RATE', '2'))
PFM = os.environ.get('PF', 'C')
CPF = int(os.environ.get('CPF', '0'))
PRE = int(os.environ.get('PRE', '1'))
CS_AT = int(os.environ.get('CS_AT', '1'))
KLATE = int(os.environ.get('KLATE', '1'))
K1PF = int(os.environ.get('K1PF', '0'))
TLB1 = int(os.environ.get('TLB1', '0'))
TLB2 = int(os.environ.get('TLB2', '0'))
WS_QKV = 0
WS_ATTN = 6 * MB
WS_H = 8 * MB
WS_HMID = 10 * MB
WS_XF = 18 * MB
WS_ST = 20 * MB
WS_CS = 21 * MB
LOG2E = 1.4426950408889634
QSCALE = 0.25 * LOG2E

P_X, P_WQKV, P_WO, P_BX, P_W1, P_W3, P_W2, P_OUT, P_DBG, P_WS = [64 + 2 * i for i in range(10)]


def f32hex(x):
    import struct
    return "0x%08x" % struct.unpack("<I", struct.pack("<f", x))[0]


class G:
    def __init__(self):
        self.lines = []
        self.vmq = []
        self.lgq = []
        self.nlabel = 0

    def e(self, s):
        self.lines.append("    " + s)

    def label(self, s):
        self.lines.append(s + ":")

    def newlabel(self, p):
        self.nlabel += 1
        return "L_%s_%d" % (p, self.nlabel)

    def vm(self, s, tag):
        self.e(s)
        self.vmq.append(tag)
        assert len(self.vmq) <= 63, "too many outstanding vmem"

    def lg(self, s, tag):
        self.e(s)
        self.lgq.append(tag)
        assert len(self.lgq) <= 15, "too many outstanding lgkm"

    def _wait(self, q, tag):
        if tag not in q:
            return None, q
        idx = len(q) - 1 - q[::-1].index(tag)
        return len(q) - 1 - idx, q[idx + 1:]

    def wait_vm(self, tag):
        n, self.vmq = self._wait(self.vmq, tag)
        if n is not None:
            self.e("s_waitcnt vmcnt(%d)" % n)

    def wait_lg(self, tag):
        n, self.lgq = self._wait(self.lgq, tag)
        if n is not None:
            self.e("s_waitcnt lgkmcnt(%d)" % n)

    def wait_all(self):
        self.e("s_waitcnt vmcnt(0) lgkmcnt(0)")
        self.vmq = []
        self.lgq = []

    def ts(self, k):
        if not TS or k > 8:
            return
        self.e("s_memtime s[%d:%d]" % (84 + 2 * k, 85 + 2 * k))
        self.e("s_waitcnt lgkmcnt(0)")
        self.lgq = []

    def ts_dump(self, kidx):
        if not TS:
            return
        L = self.newlabel("ts")
        self.e("s_cmp_lg_u32 s3, 0")
        self.e("s_cbranch_scc1 %s" % L)
        self.e("s_memrealtime s[60:61]")
        self.e("s_waitcnt lgkmcnt(0)")
        self.srd(56, P_WS, 24 * MB + kidx * 65536, 65536)
        self.e("s_lshl_b32 s62, s2, 6")
        self.e("v_mov_b32 v0, 0")
        for k in range(9):
            self.e("v_mov_b32 v1, s%d" % (84 + 2 * k))
            self.e("buffer_store_dword v1, v0, s[56:59], s62 offen offset:%d" % (4 * k))
        self.e("v_mov_b32 v1, s60")
        self.e("buffer_store_dword v1, v0, s[56:59], s62 offen offset:36")
        self.label(L)

    def nop(self, n):
        while n > 0:
            k = min(n, 16)
            self.e("s_nop %d" % (k - 1))
            n -= k

    def begin(self, name, nwg):
        self.lines.append(".globl %s" % name)
        self.lines.append(".p2align 8")
        self.lines.append(".type %s,@function" % name)
        self.label(name)
        self.vmq = []
        self.lgq = []
        self.e("s_cmp_ge_u32 s2, %d" % nwg)
        self.e("s_cbranch_scc1 L_end_%s" % name)
        self.e("s_load_dwordx16 s[64:79], s[0:1], 0")
        self.e("s_load_dwordx4 s[80:83], s[0:1], 64")
        self.e("v_and_b32 v1, 63, v0")
        self.e("v_lshrrev_b32 v2, 6, v0")
        self.e("s_nop 0")
        self.e("v_readfirstlane_b32 s3, v2")
        if not KLATE:
            self.kwait()

    def kwait(self):
        self.e("s_waitcnt lgkmcnt(0)")
        self.ts(0)

    def end(self, name):
        self.label("L_end_%s" % name)
        self.e("s_endpgm")

    def srd(self, d, ptr, off, size):
        if off:
            self.e("s_add_u32 s%d, s%d, 0x%x" % (d, ptr, off))
            self.e("s_addc_u32 s%d, s%d, 0" % (d + 1, ptr + 1))
        else:
            self.e("s_mov_b32 s%d, s%d" % (d, ptr))
            self.e("s_mov_b32 s%d, s%d" % (d + 1, ptr + 1))
        self.e("s_mov_b32 s%d, 0x%x" % (d + 2, size))
        self.e("s_mov_b32 s%d, 0x00020000" % (d + 3))


def vr(b, n=4):
    return "v[%d:%d]" % (b, b + n - 1)


def ar(b, n=4):
    return "a[%d:%d]" % (b, b + n - 1)


def pipeline(g, items, D, stage_of, on_stage_start, issue_reads, do_mfma):
    n = len(items)
    pend = []
    npend = 0
    r = 0
    nin = 1
    for i in range(-D, n):
        j = i + D
        ms, rs = [], []
        if i >= 0:
            g.wait_lg(("it", i))
            ms = do_mfma(i, items[i]) or []
        if j < n:
            if j == 0 or stage_of(items[j]) != stage_of(items[j - 1]):
                assert not pend
                for m in ms:
                    m()
                ms = []
                pend = list(on_stage_start(stage_of(items[j])) or [])
                npend = len(pend)
                r = 0
                nin = sum(1 for it in items if stage_of(it) == stage_of(items[j]))
            rs = issue_reads(j, items[j]) or []
        vs = []
        if j < n:
            r += 1
            want = (r * npend + nin - 1) // nin
            while npend - len(pend) < want:
                vs.append(pend.pop(0))
        rs = rs + vs
        while ms or rs:
            if ms:
                ms.pop(0)()
            if rs:
                rs.pop(0)()


def gemm_res(g, name, a_ptr, a_off, a_rowb, KD, w_ptr, res_ptr, res_off, out_ptr, out_off, nslots, out_fl):
    g.begin(name, 256)
    if CUT == 0:
        g.e("s_endpgm")
    nks = KD // 32
    nst = KD // 128
    ring = nslots < nst
    SA, SW, SR, SO = 4, 8, 12, 16
    RV = 2
    ostep = 512 if out_fl else 32
    stats = PRE and out_fl
    def srds():
        g.srd(SA, a_ptr, a_off, 2048 * a_rowb)
        g.srd(SW, w_ptr, 0, KD * 1024)
        g.srd(SR, res_ptr, res_off, 2048 * 1024)
        g.srd(SO, out_ptr, out_off, 2048 * 1024)
        if stats:
            g.srd(32, P_WS, WS_ST, 2048 * 64)
            g.srd(44, P_WS, WS_CS, 16 * 3584)
            g.e("s_cmp_ge_u32 s48, 112")
            g.e("s_cselect_b32 s40, s%d, s%d" % (P_W3, P_W1))
            g.e("s_cselect_b32 s41, s%d, s%d" % (P_W3 + 1, P_W1 + 1))
            g.e("s_mov_b32 s42, 0x%x" % (512 * 3584))
            g.e("s_mov_b32 s43, 0x00020000")
    if not KLATE:
        srds()
    g.e("s_and_b32 s20, s2, 31")
    g.e("s_lshr_b32 s21, s2, 5")
    g.e("s_lshl_b32 s22, s20, 6")
    g.e("s_lshl_b32 s23, s3, 4")
    g.e("s_add_u32 s22, s22, s23")
    g.e("v_and_b32 v3, 15, v1")
    g.e("v_add_u32 v3, s22, v3")
    g.e("v_lshrrev_b32 v4, 4, v1")
    g.e("s_lshl_b32 s27, s20, 2")
    g.e("s_add_u32 s27, s27, s3")
    g.e("s_mul_i32 s28, s27, %d" % (16 * a_rowb))
    g.e("v_lshlrev_b32 v5, 4, v1")
    g.e("v_add_u32 v5, s28, v5")
    g.e("s_lshl_b32 s28, s27, 14")
    g.e("s_lshl_b32 s29, s21, 11")
    g.e("s_add_u32 s28, s28, s29")
    g.e("v_and_b32 v9, 15, v1")
    g.e("v_lshlrev_b32 v9, 4, v9")
    g.e("v_bfe_u32 v10, v1, 5, 1")
    g.e("v_lshl_add_u32 v9, v10, 8, v9")
    g.e("v_bfe_u32 v10, v1, 4, 1")
    g.e("v_lshl_add_u32 v9, v10, 3, v9")
    g.e("v_add_u32 v%d, s28, v9" % RV)
    g.e("s_lshl_b32 s23, s21, 7")
    if not out_fl:
        g.e("v_lshlrev_b32 v6, 10, v3")
        g.e("v_lshl_add_u32 v6, v4, 3, v6")
        g.e("v_add_u32 v6, s23, v6")
    else:
        g.e("v_mov_b32 v6, v%d" % RV)
    g.e("v_lshrrev_b32 v9, 3, v1")
    g.e("v_and_b32 v10, 7, v1")
    g.e("v_bfe_u32 v11, v1, 4, 1")
    g.e("v_lshlrev_b32 v11, 1, v11")
    g.e("v_xor_b32 v10, v10, v11")
    g.e("v_lshlrev_b32 v9, 10, v9")
    g.e("v_lshl_add_u32 v7, v10, 4, v9")
    g.e("v_xor_b32 v10, 4, v10")
    g.e("v_lshl_add_u32 v8, v10, 4, v9")
    g.e("s_lshl_b32 s24, s3, 15")
    g.e("s_add_u32 s24, s24, s23")
    g.e("s_lshl_b32 s25, s3, 12")
    g.e("v_bfe_u32 v9, v1, 2, 2")
    g.e("v_lshl_add_u32 v10, v4, 3, v9")
    g.e("v_lshlrev_b32 v10, 7, v10")
    g.e("v_bfe_u32 v11, v1, 1, 1")
    g.e("v_lshl_add_u32 v10, v11, 4, v10")
    g.e("v_and_b32 v11, 1, v1")
    g.e("v_lshl_add_u32 v10, v11, 3, v10")
    g.e("v_bfe_u32 v11, v1, 3, 1")
    g.e("v_bfe_u32 v12, v1, 4, 1")
    g.e("v_lshl_or_b32 v11, v12, 1, v11")
    g.e("v_lshlrev_b32 v11, 1, v11")
    TA = 12
    for nt in range(4):
        g.e("v_xor_b32 v20, %d, v11" % (2 * nt))
        g.e("v_lshl_add_u32 v%d, v20, 4, v10" % (TA + nt))
        g.e("v_add_u32 v%d, 0x10000, v%d" % (TA + 4 + nt, TA + nt))
    RES = 20
    ACC = 28
    WF = 44
    D = 7
    NR = D + 1
    CV = WF + NR * 4
    if stats:
        g.e("s_sub_u32 s49, s2, 32")
        g.e("s_cmp_lt_u32 s2, 224")
        g.e("s_cselect_b32 s48, s2, s49")
        g.e("s_cmp_ge_u32 s48, 112")
        g.e("s_cselect_b32 s49, 112, 0")
        g.e("s_cselect_b32 s51, 7, 0")
        g.e("s_sub_u32 s49, s48, s49")
        g.e("s_and_b32 s52, s49, 3")
        g.e("s_lshr_b32 s53, s49, 2")
        g.e("s_and_b32 s49, s49, 0xfc")
        g.e("s_add_u32 s49, s49, s3")
        g.e("s_mul_i32 s50, s49, 9363")
        g.e("s_lshr_b32 s50, s50, 16")
        g.e("s_mul_i32 s54, s50, 7")
        g.e("s_sub_u32 s49, s49, s54")
        g.e("s_add_u32 s49, s49, s51")
        g.e("s_lshl_b32 s49, s49, 6")
        g.e("s_mul_i32 s50, s50, 3584")
        g.e("s_add_u32 s50, s50, s49")
        g.e("s_mul_i32 s49, s52, 896")
        g.e("s_add_u32 s50, s50, s49")
        g.e("s_lshl_b32 s52, s52, 2")
        g.e("s_add_u32 s52, s52, s3")
        g.e("s_mul_i32 s52, s52, %d" % (32 * 3584))
        g.e("s_lshl_b32 s53, s53, 7")
        g.e("s_add_u32 s52, s52, s53")
        g.e("v_lshrrev_b32 v9, 3, v1")
        g.e("v_mul_u32_u24 v9, 2560, v9")
        g.e("v_add_u32 v%d, v9, v7" % (CV + 1))
        g.e("v_add_u32 v%d, v9, v8" % (CV + 2))
        g.e("s_lshl_b32 s53, s3, 1")
        g.e("v_xor_b32 v20, s53, v11")
        g.e("v_lshl_add_u32 v%d, v20, 4, v10" % CV)
        g.e("v_add_u32 v%d, 0x10000, v%d" % (CV, CV))
        for k in range(4):
            g.e("v_mov_b32 v%d, 0x3f803f80" % (CV + 8 + k))

    def cs_loads():
        out = []
        for q in range(4):
            def f(q=q):
                g.e("s_add_u32 m0, s25, 0x%x" % (65536 + q * 1024))
                g.e("s_add_u32 s26, s52, 0x%x" % (q * 8 * 3584))
                g.vm("buffer_load_dwordx4 v%d, s[40:43], s26 offen lds" % (CV + 1 + (q & 1)), "cs")
            out.append(f)
        return out

    def stage_loads(s):
        slot = s % nslots
        out = []
        for q in range(4):
            def f(q=q):
                g.e("s_add_u32 m0, s25, 0x%x" % (slot * 16384 + q * 1024))
                g.e("s_add_u32 s26, s24, 0x%x" % ((s * 128 + q * 8) * 1024))
                g.vm("buffer_load_dwordx4 v%d, s[%d:%d], s26 offen lds" % (7 + (q & 1), SW, SW + 3), ("st", s))
            out.append(f)
            def f2(k4=q):
                ks = s * 4 + k4
                g.e("s_mov_b32 s27, 0x%x" % (s * 4096))
                g.vm("buffer_load_dwordx4 %s, v5, s[%d:%d], s27 offen offset:%d" % (ar(ks * 4), SA, SA + 3, k4 * 1024), ("st", s))
            out.append(f2)
        return out

    def issue_stage(s):
        for f in stage_loads(s):
            f()

    P = min(PRO_RES, nslots - 2) if ring else PRO_RES
    npro = min(nst, P, P0_RES)
    nxt = [npro]
    if KLATE:
        g.kwait()
        srds()
    issue_stage(0)
    for nt in range(4):
        g.vm("buffer_load_dwordx2 %s, v%d, s[%d:%d], 0 offen offset:%d" % (vr(RES + 2 * nt, 2), RV, SR, SR + 3, nt * 512), "res")
    for s in range(1, npro):
        issue_stage(s)
    if CUT == 1:
        g.e("s_waitcnt vmcnt(0)")
        g.e("s_endpgm")
    g.ts(1)
    tsst = (0, 1, 2, 3) if nst == 4 else (0, 1, 5, 9, 13)

    items = [(ks, nt) for ks in range(nks) for nt in range(4)]

    def on_stage_start(s):
        g.wait_vm(("st", s))
        g.e("s_barrier")
        if s in tsst:
            g.ts(2 + tsst.index(s))
        out = []
        for _ in range(CU_RATE):
            if nxt[0] <= s + P and nxt[0] < nst:
                out += stage_loads(nxt[0])
                nxt[0] += 1
        if stats and s == CS_AT:
            out += cs_loads()
        return out

    def issue_reads(j, it):
        ks, nt = it
        s = ks // 4
        slot = s % nslots
        off = slot * 16384 + (ks % 4) * 32 * 128
        a = TA + nt
        if off >= 65536:
            off -= 65536
            a += 4
        w = WF + (j % NR) * 4
        return [lambda: g.lg("ds_read_b64_tr_b16 %s, v%d offset:%d" % (vr(w, 2), a, off), ("it", j)),
                lambda: g.lg("ds_read_b64_tr_b16 %s, v%d offset:%d" % (vr(w + 2, 2), a, off + 512), ("it", j))]

    def do_mfma(i, it):
        ks, nt = it
        w = WF + (i % NR) * 4
        acc = vr(ACC + nt * 4)
        return [lambda: g.e("v_mfma_f32_16x16x32_bf16 %s, %s, %s, %s" % (acc, vr(w), ar(ks * 4), "0" if ks == 0 else acc))]

    pipeline(g, items, D, lambda it: it[0] // 4, on_stage_start, issue_reads, do_mfma)
    g.ts(7)
    g.wait_vm("res")
    g.nop(16)
    T = WF
    for nt in range(4):
        a = ACC + nt * 4
        r = RES + 2 * nt
        g.e("v_lshlrev_b32 v%d, 16, v%d" % (T, r))
        g.e("v_and_b32 v%d, 0xffff0000, v%d" % (T + 1, r))
        g.e("v_lshlrev_b32 v%d, 16, v%d" % (T + 2, r + 1))
        g.e("v_and_b32 v%d, 0xffff0000, v%d" % (T + 3, r + 1))
        for k in range(4):
            g.e("v_add_f32 v%d, v%d, v%d" % (a + k, a + k, T + k))
        g.e("v_cvt_pk_bf16_f32 v%d, v%d, v%d" % (a, a, a + 1))
        g.e("v_cvt_pk_bf16_f32 v%d, v%d, v%d" % (a + 1, a + 2, a + 3))
        g.vm("buffer_store_dwordx2 %s, v6, s[%d:%d], 0 offen offset:%d" % (vr(a, 2), SO, SO + 3, nt * ostep), "out")
        if stats:
            if nt == 0:
                g.e("s_mov_b32 s36, 0x3f803f80")
            for k in range(2):
                first = nt == 0 and k == 0
                g.e("v_dot2_f32_bf16 v%d, v%d, s36, %s" % (T + 4, a + k, "0" if first else "v%d" % (T + 4)))
                g.e("v_dot2_f32_bf16 v%d, v%d, v%d, %s" % (T + 5, a + k, a + k, "0" if first else "v%d" % (T + 5)))
    if stats:
        S_, Q_ = T + 4, T + 5
        g.e("v_lshlrev_b32 v%d, 6, v3" % (T + 6))
        g.e("v_and_b32 v%d, 1, v4" % (T + 7))
        g.e("v_lshl_add_u32 v%d, v%d, 2, v%d" % (T + 6, T + 7, T + 6))
        g.e("s_lshl_b32 s36, s21, 3")
        g.nop(2)
        g.e("v_permlane16_swap_b32 v%d, v%d" % (S_, Q_))
        g.nop(1)
        g.e("v_add_f32 v%d, v%d, v%d" % (S_, S_, Q_))
        g.e("v_mov_b32 v%d, v%d" % (Q_, S_))
        g.nop(2)
        g.e("v_permlane32_swap_b32 v%d, v%d" % (S_, Q_))
        g.nop(1)
        g.e("v_add_f32 v%d, v%d, v%d" % (S_, S_, Q_))
        g.vm("buffer_store_dword v%d, v%d, s[32:35], s36 offen" % (S_, T + 6), "out")
        g.wait_vm("cs")
        g.e("s_barrier")
        for k4 in range(4):
            w = T + 8 + k4 * 4
            g.lg("ds_read_b64_tr_b16 %s, v%d offset:%d" % (vr(w, 2), CV, k4 * 4096), ("c", k4))
            g.lg("ds_read_b64_tr_b16 %s, v%d offset:%d" % (vr(w + 2, 2), CV, k4 * 4096 + 512), ("c", k4))
        g.e("v_lshlrev_b32 v%d, 4, v4" % (CV + 1))
        g.e("s_mov_b32 s28, 0x00010001")
        g.e("s_mov_b32 s29, 0x00010001")
        for k4 in range(4):
            g.wait_lg(("c", k4))
            g.e("v_mfma_f32_16x16x32_bf16 %s, %s, %s, %s" % (vr(CV + 4), vr(T + 8 + k4 * 4), vr(CV + 8), "0" if k4 == 0 else vr(CV + 4)))
        g.e("s_mov_b64 exec, s[28:29]")
        g.nop(16)
        g.vm("buffer_store_dwordx4 %s, v%d, s[44:47], s50 offen" % (vr(CV + 4), CV + 1), "out")
        g.e("s_mov_b64 exec, -1")
    g.ts(8)
    g.ts_dump(2 if nst == 4 else 4)
    g.end(name)
    nv = WF + NR * 4 + (12 if stats else 0)
    return dict(name=name, grid=256, lds=(nslots * 16384 if ring else nst * 16384) + (16384 if stats else 0), vgpr=nv, agpr=nks * 4)


def ln_gemm(g, name, mode):
    qkv = mode == "qkv"
    pre = PRE and not qkv
    g.begin(name, 256)
    NT = 6 if qkv else 14
    NPM = 6 if qkv else 7
    NW0 = NPM - 3
    CSP = (0, 3) if qkv else (0, 4)
    nks = 16
    nst = 8
    nslots = 5
    SLOTB = 28672
    CSB = 5 * SLOTB
    lds = CSB + 1024
    SA, SW, SO, SX = 4, 8, 12, 16
    ool = []
    if qkv and CPF:
        g.e("s_getpc_b64 s[32:33]")
        g.e("s_and_b32 s32, s32, 0xffffff00")
        g.e("s_and_b32 s33, s33, 0xffff")
        g.e("s_mov_b32 s34, L_code_end-%s" % name)
        g.e("s_mov_b32 s35, 0x00020000")
        g.e("s_lshr_b32 s36, s2, 3")
        g.e("s_lshl_b32 s36, s36, 2")
        g.e("s_add_u32 s36, s36, s3")
        g.e("s_lshl_b32 s36, s36, 10")
        g.e("v_lshlrev_b32 v180, 4, v1")
        g.vm("buffer_load_dwordx4 v[184:187], v180, s[32:35], s36 offen", "pf")
    def srds():
        if qkv:
            g.srd(SA, P_X, 0, 2048 * 1024)
            g.srd(SW, P_WQKV, 0, 512 * 3072)
            g.srd(SO, P_WS, WS_QKV, 6 * MB)
            g.srd(SX, P_WS, WS_XF, 2 * MB)
        else:
            g.srd(SA, P_WS, WS_H, 2048 * 1024)
            g.e("s_cmp_lt_u32 s3, 2")
            g.e("s_cselect_b32 s%d, s%d, s%d" % (SW, P_W1, P_W3))
            g.e("s_cselect_b32 s%d, s%d, s%d" % (SW + 1, P_W1 + 1, P_W3 + 1))
            g.e("s_mov_b32 s%d, 0x%x" % (SW + 2, 512 * 3584))
            g.e("s_mov_b32 s%d, 0x00020000" % (SW + 3))
            g.srd(SO, P_WS, WS_HMID, 2048 * 3584)
            if pre:
                g.srd(SX, P_WS, WS_ST, 2048 * 64)
                g.srd(32, P_WS, WS_CS, 16 * 3584)
    if not KLATE:
        srds()
    g.e("s_lshr_b32 s22, s2, 3")
    if qkv:
        g.e("s_and_b32 s20, s2, 3")
        g.e("s_lshl_b32 s20, s20, 2")
        g.e("s_and_b32 s23, s22, 3")
        g.e("s_add_u32 s20, s20, s23")
        g.e("s_bfe_u32 s21, s2, 0x10002")
        g.e("s_lshl_b32 s21, s21, 3")
        g.e("s_lshr_b32 s23, s22, 2")
        g.e("s_add_u32 s21, s21, s23")
    else:
        g.e("s_and_b32 s20, s2, 1")
        g.e("s_lshl_b32 s20, s20, 3")
        g.e("s_and_b32 s23, s22, 7")
        g.e("s_add_u32 s20, s20, s23")
        g.e("s_bfe_u32 s21, s2, 0x20001")
        g.e("s_lshl_b32 s21, s21, 2")
        g.e("s_lshr_b32 s23, s22, 3")
        g.e("s_add_u32 s21, s21, s23")
    g.e("s_lshl_b32 s22, s20, 7")
    g.e("s_lshl_b32 s23, s3, 5")
    g.e("s_add_u32 s22, s22, s23")
    g.e("v_and_b32 v3, 15, v1")
    g.e("v_lshrrev_b32 v4, 4, v1")
    g.e("v_bfe_u32 v9, v1, 2, 2")
    ST = 40
    for p in range(NPM):
        g.e("s_add_u32 s%d, s3, %d" % (ST + p, p))
        if p >= NW0:
            g.e("s_cmp_ge_u32 s%d, %d" % (ST + p, NPM))
            g.e("s_cselect_b32 s26, %d, 0" % NPM)
            g.e("s_sub_u32 s%d, s%d, s26" % (ST + p, ST + p))
    if qkv:
        g.e("v_lshrrev_b32 v10, 3, v1")
        g.e("v_and_b32 v11, 7, v1")
        g.e("v_xor_b32 v11, v11, v10")
        g.e("v_lshlrev_b32 v10, 10, v10")
        g.e("v_lshl_add_u32 v5, v11, 4, v10")
        g.e("s_lshl_b32 s30, s22, 10")
        g.e("s_lshl_b32 s31, s3, 12")
        g.e("s_mul_i32 s24, s3, 192")
        g.e("v_add_u32 v10, s24, v1")
        DV = 16
        for q in range(3):
            g.e("v_add_u32 v11, %d, v10" % (q * 64))
            g.e("v_mul_u32_u24 v12, 5462, v11")
            g.e("v_lshrrev_b32 v12, 16, v12")
            g.e("v_mul_u32_u24 v13, 12, v12")
            g.e("v_sub_u32 v13, v11, v13")
            g.e("v_bfe_u32 v14, v12, 3, 1")
            g.e("v_lshlrev_b32 v14, 1, v14")
            g.e("v_xor_b32 v13, v13, v14")
            g.e("v_mul_u32_u24 v14, 3072, v12")
            g.e("v_lshl_add_u32 v%d, v13, 4, v14" % (DV + q))
        g.e("s_mul_i32 s24, s21, 192")
        g.e("s_mul_i32 s25, s3, 3072")
        g.e("v_add_u32 v10, s22, v3")
        g.e("v_lshlrev_b32 v7, 5, v10")
        g.e("v_lshl_add_u32 v7, v4, 3, v7")
        g.e("s_lshl_b32 s26, s22, 10")
        g.e("s_lshl_b32 s27, s21, 10")
        g.e("s_add_u32 s26, s26, s27")
        g.e("v_lshlrev_b32 v8, 4, v1")
        g.e("v_add_u32 v8, s26, v8")
        g.e("v_and_b32 v10, 7, v1")
        g.e("v_xor_b32 v10, v10, v4")
        g.e("v_lshlrev_b32 v11, 7, v3")
        g.e("v_lshl_add_u32 v11, v10, 4, v11")
        g.e("v_add_u32 v19, s31, v11")
        g.e("v_xor_b32 v20, 64, v19")
        XA = 19
        for b in range(1, 3):
            g.e("v_add_u32 v%d, 0x%x, v19" % (XA + 2 * b, b * 2 * SLOTB))
            g.e("v_add_u32 v%d, 0x%x, v20" % (XA + 2 * b + 1, b * 2 * SLOTB))
        g.e("v_lshl_add_u32 v10, v4, 3, v9")
        g.e("v_mul_u32_u24 v10, 192, v10")
        g.e("v_bfe_u32 v11, v1, 1, 1")
        g.e("v_lshl_add_u32 v10, v11, 4, v10")
        g.e("v_and_b32 v11, 1, v1")
        g.e("v_lshl_add_u32 v10, v11, 3, v10")
        g.e("v_add_u32 v10, 0x4000, v10")
        g.e("v_bfe_u32 v11, v1, 4, 1")
        g.e("v_lshlrev_b32 v11, 5, v11")
        TA = 25
        NA = 5
        ai = lambda p: (p & 1) if p < NW0 else p - 1
        for k, p in enumerate((0, 1, 3, 4, 5)):
            g.e("s_sub_u32 s26, s%d, %d" % (ST + p, p))
            g.e("s_lshl_b32 s26, s26, 5")
            g.e("v_add_u32 v12, s26, v10")
            g.e("s_and_b32 s27, s%d, 1" % (ST + p))
            g.e("s_lshl_b32 s27, s27, 1")
            g.e("s_sub_u32 s27, 1, s27")
            g.e("v_mul_lo_u32 v13, s27, v11")
            g.e("v_add_u32 v%d, v12, v13" % (TA + k))
        for b in range(1, 3):
            for k in range(NA):
                g.e("v_add_u32 v%d, 0x%x, v%d" % (TA + NA * b + k, b * 2 * SLOTB, TA + k))
        nextv = TA + 3 * NA
    else:
        g.e("s_lshl_b32 s26, s22, 10")
        g.e("v_lshlrev_b32 v5, 4, v1")
        g.e("v_add_u32 v5, s26, v5")
        g.e("v_add_u32 v6, 0x4000, v5")
        g.e("s_lshr_b32 s26, s22, 4")
        g.e("s_mul_i32 s26, s26, 57344")
        g.e("s_mul_i32 s27, s21, 3584")
        g.e("s_add_u32 s26, s26, s27")
        g.e("v_lshlrev_b32 v7, 4, v3")
        g.e("v_bfe_u32 v10, v1, 5, 1")
        g.e("v_lshl_add_u32 v7, v10, 8, v7")
        g.e("v_bfe_u32 v10, v1, 4, 1")
        g.e("v_lshl_add_u32 v7, v10, 3, v7")
        g.e("v_add_u32 v7, s26, v7")
        g.e("s_mul_i32 s23, s21, 224")
        g.e("s_and_b32 s24, s3, 1")
        g.e("s_mul_i32 s24, s24, 448")
        g.e("v_add_u32 v10, s24, v1")
        DV = 16
        for q in range(7):
            g.e("v_add_u32 v11, %d, v10" % (q * 64))
            g.e("v_mul_u32_u24 v12, 4682, v11")
            g.e("v_lshrrev_b32 v12, 16, v12")
            g.e("v_mul_u32_u24 v13, 14, v12")
            g.e("v_sub_u32 v13, v11, v13")
            g.e("v_and_b32 v14, 0x33, v12")
            g.e("v_bfe_u32 v15, v12, 2, 1")
            g.e("v_lshl_or_b32 v14, v15, 3, v14")
            g.e("v_bfe_u32 v15, v12, 3, 1")
            g.e("v_lshl_or_b32 v14, v15, 2, v14")
            g.e("v_mul_u32_u24 v14, 3584, v14")
            g.e("v_lshl_add_u32 v%d, v13, 4, v14" % (DV + q))
        g.e("s_mov_b32 s24, s23")
        g.e("s_mul_i32 s25, s3, 7168")
        g.e("v_bfe_u32 v10, v1, 5, 1")
        g.e("v_lshl_add_u32 v10, v10, 4, v9")
        g.e("v_bfe_u32 v11, v1, 4, 1")
        g.e("v_lshl_add_u32 v10, v11, 2, v10")
        g.e("v_mul_u32_u24 v10, 224, v10")
        g.e("v_and_b32 v11, 3, v1")
        g.e("v_lshl_add_u32 v10, v11, 3, v10")
        TA = 23
        NA = 4
        ai = lambda p: 0 if p < NW0 else p - 3
        for k, p in enumerate((0, 4, 5, 6)):
            g.e("s_lshl_b32 s26, s%d, 5" % (ST + p))
            g.e("v_add_u32 v%d, s26, v10" % (TA + k))
        for b in range(1, 3):
            for k in range(NA):
                g.e("v_add_u32 v%d, 0x%x, v%d" % (TA + NA * b + k, b * 2 * SLOTB, TA + k))
        nextv = TA + 3 * NA
    nextv = (nextv + 3) // 4 * 4
    ONES = nextv
    for k in range(4):
        g.e("v_mov_b32 v%d, 0x3f803f80" % (ONES + k))
    SUM = ONES + 4
    GRAM = SUM + 8
    CSA = GRAM + 8
    WF = CSA + 16
    D = 6 if qkv else 7
    NR = 8
    nextv = WF + NR * 4
    AX = 0
    ACCV = nextv
    nextv += 2 * NT * 4
    acc = lambda tt, ct: vr(ACCV + (tt * NT + ct) * 4)
    if qkv:
        XF = nextv
        nextv += 16
        XS = nextv
        nextv += 8
        xfr = lambda ks, tt: vr(XF + ((ks & 1) * 2 + tt) * 4)
    else:
        xfr = lambda ks, tt: ar(AX + (tt * 16 + ks) * 4)

    def stage_loads(s):
        wl, al = [], []
        slot = s % nslots
        if qkv:
            for q in range(3):
                def f(q=q):
                    g.e("s_add_u32 m0, s25, 0x%x" % (slot * SLOTB + 16384 + q * 1024))
                    g.e("s_add_u32 s26, s24, 0x%x" % (s * 64 * 3072))
                    g.vm("buffer_load_dwordx4 v%d, s[%d:%d], s26 offen lds" % (DV + q, SW, SW + 3), ("st", s))
                wl.append(f)
            for q in range(4):
                def f(q=q):
                    g.e("s_add_u32 m0, s31, 0x%x" % (slot * SLOTB + q * 1024))
                    g.e("s_add_u32 s26, s30, 0x%x" % (q * 8192 + s * 128))
                    g.vm("buffer_load_dwordx4 v5, s[%d:%d], s26 offen lds" % (SA, SA + 3), ("st", s))
                al.append(f)
        else:
            for q in range(7):
                def f(q=q):
                    g.e("s_add_u32 m0, s25, 0x%x" % (slot * SLOTB + q * 1024))
                    g.e("s_add_u32 s26, s24, 0x%x" % (s * 64 * 3584))
                    g.vm("buffer_load_dwordx4 v%d, s[%d:%d], s26 offen lds" % (DV + q, SW, SW + 3), ("st", s))
                wl.append(f)
            for k2 in range(2):
                for tt in range(2):
                    def f(k2=k2, tt=tt):
                        ks = s * 2 + k2
                        g.e("s_mov_b32 s27, 0x%x" % (s * 2048))
                        g.vm("buffer_load_dwordx4 %s, v%d, s[%d:%d], s27 offen offset:%d" % (
                            ar(AX + (tt * 16 + ks) * 4), 5 + tt, SA, SA + 3, k2 * 1024), ("st", s))
                    al.append(f)
        out = []
        while wl or al:
            if wl:
                out.append(wl.pop(0))
            if al and (len(al) >= len(wl) or not wl or len(out) % 2 == 0):
                out.append(al.pop(0))
        return out

    def issue_stage(s):
        for f in stage_loads(s):
            f()

    def k1pf():
        g.e("s_lshl_b32 s36, s2, 2")
        g.e("s_add_u32 s36, s36, s3")
        g.e("s_lshl_b32 s37, s36, 11")
        g.e("s_mul_i32 s36, s36, 1536")
        g.e("v_lshlrev_b32 v180, 4, v1")
        g.vm("buffer_load_dwordx4 v[184:187], v180, s[%d:%d], s37 offen" % (SA, SA + 3), "pf")
        g.vm("buffer_load_dwordx4 v[184:187], v180, s[%d:%d], s37 offen offset:1024" % (SA, SA + 3), "pf")
        g.vm("buffer_load_dwordx4 v[184:187], v180, s[%d:%d], s36 offen" % (SW, SW + 3), "pf")
        g.vm("buffer_load_dwordx4 v[184:187], v180, s[%d:%d], s36 offen offset:1024" % (SW, SW + 3), "pf")

    P = min(PRO_LN, nslots - 2)
    nxt = [min(P, P0_LN)]
    if KLATE:
        g.kwait()
        srds()
    for s in range(nxt[0]):
        issue_stage(s)
        if pre and s == 0:
            g.e("v_add_u32 v10, s22, v3")
            g.e("v_lshlrev_b32 v10, 6, v10")
            g.e("v_lshl_add_u32 v10, v4, 4, v10")
            for tt in range(2):
                g.vm("buffer_load_dwordx4 %s, v10, s[%d:%d], 0 offen offset:%d" % (vr(GRAM + tt * 4), SX, SX + 3, tt * 1024), "stat")
            g.e("s_mul_i32 s36, s21, 3584")
            g.e("v_lshlrev_b32 v%d, 4, v1" % ONES)
        if qkv and K1PF == 2 and s == 0:
            k1pf()
    if qkv and K1PF == 1:
        k1pf()
    if qkv and TLB1:
        g.srd(32, P_WS, 0, 20 * MB)
        g.srd(36, P_OUT, 0, 2 * MB)
        g.e("v_mul_u32_u24 v180, 0x50000, v1")
        g.vm("buffer_load_dword v184, v180, s[32:35], 0 offen", "pf")
        g.e("v_lshlrev_b32 v181, 15, v1")
        g.vm("buffer_load_dword v185, v181, s[36:39], 0 offen", "pf")
    g.ts(1)

    items = [(ks, ct) for ks in range(nks) for ct in range(NT)]

    def on_stage_start(s):
        g.wait_vm(("st", s))
        g.e("s_barrier")
        if s in (0, 1, 3, 5, 7):
            g.ts(2 + (0, 1, 3, 5, 7).index(s))
        out = []
        for _ in range(CU_RATE):
            if nxt[0] <= s + P and nxt[0] < nst:
                out += stage_loads(nxt[0])
                nxt[0] += 1
        if pre and s == 4:
            for q in range(4):
                out.append(lambda q=q: g.vm("buffer_load_dwordx4 %s, v%d, s[32:35], s36 offen offset:%d" % (vr(CSA + q * 4), ONES, q * 896), "csp"))
        if pre and s == 6:
            out += stat_ops()
        return out

    def stat_ops():
        ops = []
        def A(*ls):
            def f():
                for l in ls:
                    if isinstance(l, int):
                        g.nop(l)
                    else:
                        g.e(l)
            ops.append(f)
        ops.append(lambda: g.wait_vm("stat"))
        for tt in range(2):
            r = GRAM + tt * 4
            m = SUM + tt * 4
            A("v_add_f32 v%d, v%d, v%d" % (r, r, r + 2))
            A("v_add_f32 v%d, v%d, v%d" % (r + 1, r + 1, r + 3))
            A(2, "v_permlane16_swap_b32 v%d, v%d" % (r, r + 1), 1)
            A("v_add_f32 v%d, v%d, v%d" % (r, r, r + 1))
            A("v_mov_b32 v%d, v%d" % (r + 1, r))
            A(2, "v_permlane32_swap_b32 v%d, v%d" % (r, r + 1), 1)
            A("v_add_f32 v%d, v%d, v%d" % (r, r, r + 1))
            A("v_mov_b32 v%d, v%d" % (r + 1, r))
            A(2, "v_permlane16_swap_b32 v%d, v%d" % (r, r + 1), 1)
            A("v_mul_f32 v%d, %s, v%d" % (m, f32hex(1.0 / 512), r))
            A("v_mul_f32 v%d, %s, v%d" % (r + 1, f32hex(1.0 / 512), r + 1))
            A("v_fma_f32 v%d, -v%d, v%d, v%d" % (r + 1, m, m, r + 1))
            A("v_max_f32 v%d, 0, v%d" % (r + 1, r + 1))
            A("v_add_f32 v%d, %s, v%d" % (m + 3, f32hex(1e-5), r + 1))
            A("v_rsq_f32 v%d, v%d" % (m + 1, m + 3), 1)
            A("v_mul_f32 v%d, %s, v%d" % (m + 2, f32hex(-LOG2E), m + 1))
        ops.append(lambda: g.wait_vm("csp"))
        for h in (0, 2):
            A("v_pk_add_f32 %s, %s, %s" % (vr(CSA + h, 2), vr(CSA + h, 2), vr(CSA + 4 + h, 2)))
            A("v_pk_add_f32 %s, %s, %s" % (vr(CSA + 8 + h, 2), vr(CSA + 8 + h, 2), vr(CSA + 12 + h, 2)))
            A("v_pk_add_f32 %s, %s, %s" % (vr(CSA + h, 2), vr(CSA + h, 2), vr(CSA + 8 + h, 2)))
        A("v_add_u32 v%d, 0x%x, v%d" % (ONES, CSB, ONES))
        ops.append(lambda: g.lg("ds_write_b128 v%d, %s" % (ONES, vr(CSA)), "csw"))
        return ops

    def issue_reads(j, it):
        ks, ct = it
        w = WF + (j % NR) * 4
        s = ks // 2
        slot = s % nslots
        b, so = slot >> 1, (slot & 1) * SLOTB
        out = []
        if qkv:
            if ct == 0:
                for tt in range(2):
                    out.append(lambda tt=tt: g.lg("ds_read_b128 %s, v%d offset:%d" % (xfr(ks, tt), XA + 2 * b + (ks & 1), so + tt * 2048), ("it", j)))
            a = TA + NA * b + ai(ct)
            off = so + (ks % 2) * 32 * 192 + ct * 32
            off2 = off + 4 * 192
        else:
            mat, p = ct // 7, ct % 7
            a = TA + NA * b + ai(p)
            off = so + mat * 14336 + (ks % 2) * 32 * 224 + (p * 32 if p < NW0 else 0)
            off2 = off + 8 * 224
        out.append(lambda: g.lg("ds_read_b64_tr_b16 %s, v%d offset:%d" % (vr(w, 2), a, off), ("it", j)))
        out.append(lambda: g.lg("ds_read_b64_tr_b16 %s, v%d offset:%d" % (vr(w + 2, 2), a, off2), ("it", j)))
        return out

    def do_mfma(i, it):
        ks, ct = it
        w = WF + (i % NR) * 4
        out = []
        def mf(d, a, b):
            out.append(lambda: g.e("v_mfma_f32_16x16x32_bf16 %s, %s, %s, %s" % (d, a, b, "0" if ks == 0 else d)))
        for tt in range(2):
            mf(acc(tt, ct), vr(w), xfr(ks, tt))
        mat, p = ct // NPM, ct % NPM
        if p in CSP and not pre:
            mf(vr(CSA + (mat * 2 + CSP.index(p)) * 4), vr(w), vr(ONES))
        if ct in (1, 2) and not pre:
            tt = ct - 1
            x = xfr(ks, tt)
            mf(vr(SUM + tt * 4), vr(ONES), x)
            mf(vr(GRAM + tt * 4), x, x)
        if qkv and ct == 4:
            def f():
                L = g.newlabel("xs")
                g.e("s_cmp_eq_u32 s21, %d" % ks)
                g.e("s_cbranch_scc1 %s" % L)
                g.label(L + "_r")
                ool.append((L, ks))
            out.append(f)
        return out

    pipeline(g, items, D, lambda it: it[0] // 2, on_stage_start, issue_reads, do_mfma)
    if qkv:
        g.vm("buffer_store_dwordx4 %s, v8, s[%d:%d], 0 offen" % (vr(XS), SX, SX + 3), "out")
        g.e("v_add_u32 v8, 0x4000, v8")
        g.vm("buffer_store_dwordx4 %s, v8, s[%d:%d], 0 offen" % (vr(XS + 4), SX, SX + 3), "out")
    g.nop(16)
    g.ts(7)
    T = WF
    g.e("v_lshlrev_b32 v%d, 4, v4" % T)
    g.e("v_add_u32 v%d, 0x%x, v%d" % (T + 1, CSB, T))
    if not pre:
        for k in range(2):
            g.e("s_lshl_b32 s27, s%d, 6" % (ST + CSP[k]))
            g.e("v_add_u32 v%d, s27, v%d" % (T + 2 + k, T + 1))
        g.e("s_mov_b32 s28, 0x00010001")
        g.e("s_mov_b32 s29, 0x00010001")
        g.e("s_mov_b64 exec, s[28:29]")
        for mat in range(NT // NPM):
            for k in range(2):
                g.lg("ds_write_b128 v%d, %s offset:%d" % (T + 2 + k, vr(CSA + (mat * 2 + k) * 4), mat * NPM * 64), "csw")
        g.e("s_mov_b64 exec, -1")
        for r in range(4):
            m = 0
            for gg in range(4):
                m |= 1 << (20 * gg + r)
            g.e("s_mov_b32 s%d, 0x%x" % (30 + 2 * r, m & 0xffffffff))
            g.e("s_mov_b32 s%d, 0x%x" % (31 + 2 * r, m >> 32))
        for tt in range(2):
            d = T + 4
            g.e("v_mov_b32 v%d, 0" % d)
            for r in range(4):
                g.e("v_cndmask_b32_e64 v%d, v%d, v%d, s[%d:%d]" % (d, d, GRAM + tt * 4 + r, 30 + 2 * r, 31 + 2 * r))
            g.e("v_mov_b32 v%d, v%d" % (d + 1, d))
            g.nop(2)
            g.e("v_permlane16_swap_b32 v%d, v%d" % (d, d + 1))
            g.nop(1)
            g.e("v_add_f32 v%d, v%d, v%d" % (d, d, d + 1))
            g.e("v_mov_b32 v%d, v%d" % (d + 1, d))
            g.nop(2)
            g.e("v_permlane32_swap_b32 v%d, v%d" % (d, d + 1))
            g.nop(1)
            g.e("v_add_f32 v%d, v%d, v%d" % (d, d, d + 1))
            m = SUM + tt * 4
            g.e("v_mul_f32 v%d, %s, v%d" % (m, f32hex(1.0 / 512), m))
            g.e("v_mul_f32 v%d, %s, v%d" % (d, f32hex(1.0 / 512), d))
            g.e("v_fma_f32 v%d, -v%d, v%d, v%d" % (d, m, m, d))
            g.e("v_max_f32 v%d, 0, v%d" % (d, d))
            g.e("v_add_f32 v%d, %s, v%d" % (m + 3, f32hex(1e-5), d))
            g.e("v_rsq_f32 v%d, v%d" % (m + 1, m + 3))
            g.nop(1)
            g.e("v_mul_f32 v%d, %s, v%d" % (m + 2, f32hex(QSCALE if qkv else -LOG2E), m + 1))
        g.wait_lg("csw")
        g.e("s_barrier")
    CS = T + 8
    AD = T + 6
    def pk(op, d, a, b, c=None, sel=None, neg=False):
        ops = [a, b] + ([c] if c is not None else [])
        sel = sel or {}
        lo = [sel.get(i, (0, 1))[0] for i in range(len(ops))]
        hi = [sel.get(i, (0, 1))[1] for i in range(len(ops))]
        t = "%s %s, %s" % (op, vr(d, 2), ", ".join(vr(o, 2) for o in ops))
        t += " op_sel:[%s] op_sel_hi:[%s]" % (",".join(map(str, lo)), ",".join(map(str, hi)))
        if neg:
            z = ["1"] + ["0"] * (len(ops) - 1)
            t += " neg_lo:[%s] neg_hi:[%s]" % (",".join(z), ",".join(z))
        g.e(t)

    def cs_read(p):
        bb = CS + (p & 1) * 8
        g.e("s_lshl_b32 s27, s%d, 6" % (ST + p))
        g.e("v_add_u32 v%d, s27, v%d" % (AD + (p & 1), T + 1))
        g.lg("ds_read_b128 %s, v%d" % (vr(bb), AD + (p & 1)), ("cs", p))
        if not qkv:
            g.lg("ds_read_b128 %s, v%d offset:448" % (vr(bb + 4), AD + (p & 1)), ("cs", p))
    cs_read(0)
    if qkv:
        for p in range(NPM):
            if p + 1 < NPM:
                cs_read(p + 1)
            g.wait_lg(("cs", p))
            bb = CS + (p & 1) * 8
            g.e("s_mul_i32 s26, s21, 6")
            g.e("s_add_u32 s26, s26, s%d" % (ST + p))
            g.e("s_cmp_lt_u32 s26, 32")
            g.e("s_cselect_b32 s28, -1, 0")
            g.e("s_mov_b32 s29, s28")
            g.e("s_lshl_b32 s26, s26, 16")
            for tt in range(2):
                a = ACCV + (tt * NT + p) * 4
                m = SUM + tt * 4
                rs = T + 4
                g.e("v_cndmask_b32_e64 v%d, v%d, v%d, s[28:29]" % (rs, m + 1, m + 2))
                pk("v_pk_fma_f32", a, m, bb, a, sel={0: (0, 0)}, neg=True)
                pk("v_pk_fma_f32", a + 2, m, bb + 2, a + 2, sel={0: (0, 0)}, neg=True)
                pk("v_pk_mul_f32", a, a, rs, sel={1: (0, 0)})
                pk("v_pk_mul_f32", a + 2, a + 2, rs, sel={1: (0, 0)})
                g.e("v_cvt_pk_bf16_f32 v%d, v%d, v%d" % (a, a, a + 1))
                g.e("v_cvt_pk_bf16_f32 v%d, v%d, v%d" % (a + 1, a + 2, a + 3))
                g.vm("buffer_store_dwordx2 %s, v7, s[%d:%d], s26 offen offset:%d" % (vr(a, 2), SO, SO + 3, tt * 512), "out")
    else:
        g.e("v_add_u32 v8, 0x%x, v7" % 57344)
        E = CS + 16
        for p in range(NPM):
            if p + 1 < NPM:
                cs_read(p + 1)
            g.wait_lg(("cs", p))
            bb = CS + (p & 1) * 8
            g.e("s_lshl_b32 s26, s%d, 9" % (ST + p))
            GV = [ACCV + (tt * NT + p) * 4 for tt in range(2)]
            UV = [ACCV + (tt * NT + 7 + p) * 4 for tt in range(2)]
            M = [SUM + tt * 4 for tt in range(2)]
            EV = [E + tt * 4 for tt in range(2)]
            for tt in range(2):
                for h in (0, 2):
                    pk("v_pk_fma_f32", GV[tt] + h, M[tt], bb + h, GV[tt] + h, sel={0: (0, 0)}, neg=True)
                for h in (0, 2):
                    pk("v_pk_mul_f32", EV[tt] + h, GV[tt] + h, M[tt] + 2, sel={1: (0, 0)})
            for tt in range(2):
                for k in range(4):
                    g.e("v_exp_f32 v%d, v%d" % (EV[tt] + k, EV[tt] + k))
            for tt in range(2):
                for h in (0, 2):
                    pk("v_pk_fma_f32", UV[tt] + h, M[tt], bb + 4 + h, UV[tt] + h, sel={0: (0, 0)}, neg=True)
                for h in (0, 2):
                    pk("v_pk_mul_f32", UV[tt] + h, UV[tt] + h, GV[tt] + h)
            for tt in range(2):
                for h in (0, 2):
                    pk("v_pk_fma_f32", EV[tt] + h, EV[tt] + h, M[tt] + 2, M[tt] + 2, sel={1: (1, 1), 2: (1, 1)})
            for tt in range(2):
                for k in range(4):
                    g.e("v_rcp_f32 v%d, v%d" % (EV[tt] + k, EV[tt] + k))
            g.nop(1)
            for tt in range(2):
                for h in (0, 2):
                    pk("v_pk_mul_f32", UV[tt] + h, UV[tt] + h, EV[tt] + h)
                g.e("v_cvt_pk_bf16_f32 v%d, v%d, v%d" % (UV[tt], UV[tt], UV[tt] + 1))
                g.e("v_cvt_pk_bf16_f32 v%d, v%d, v%d" % (UV[tt] + 1, UV[tt] + 2, UV[tt] + 3))
                g.vm("buffer_store_dwordx2 %s, v%d, s[%d:%d], s26 offen" % (vr(UV[tt], 2), 7 + tt, SO, SO + 3), "out")
    g.ts(8)
    g.ts_dump(0 if qkv else 3)
    g.end(name)
    for L, ks in ool:
        g.label(L)
        for k in range(8):
            g.e("v_mov_b32 v%d, v%d" % (XS + k, XF + (ks & 1) * 8 + k))
        g.e("s_branch %s_r" % L)
    return dict(name=name, grid=256, lds=lds, vgpr=max(nextv, 188) if qkv else nextv, agpr=0 if qkv else 128)


def attention(g, name):
    g.begin(name, 512)
    SQ, SO = 4, 8
    def srds():
        g.srd(SQ, P_WS, WS_QKV, 6 * MB)
        g.srd(SO, P_WS, WS_ATTN, 2 * MB)
    if not KLATE:
        srds()
    VB = 0
    OB = 12288
    lds = OB + 1024
    g.e("s_and_b32 s20, s2, 31")
    g.e("s_lshr_b32 s21, s2, 5")
    g.e("s_lshl_b32 s22, s21, 7")
    g.e("s_lshl_b32 s23, s3, 5")
    g.e("s_add_u32 s23, s22, s23")
    g.e("s_lshr_b32 s24, s23, 5")
    g.e("s_sub_i32 s24, 8, s24")
    g.e("s_max_i32 s24, s24, 0")
    g.e("v_and_b32 v3, 31, v1")
    g.e("v_lshrrev_b32 v4, 5, v1")
    g.e("s_lshl_b32 s25, s20, 16")
    g.e("v_add_u32 v5, s23, v3")
    g.e("v_lshlrev_b32 v5, 5, v5")
    g.e("v_lshl_add_u32 v5, v4, 4, v5")
    g.e("v_add_u32 v5, s25, v5")
    QF = 8
    KF = 12
    if KLATE:
        g.kwait()
        srds()
    g.vm("buffer_load_dwordx4 %s, v5, s[%d:%d], 0 offen" % (vr(QF), SQ, SQ + 3), "q")
    g.e("v_add_u32 v6, 0x%x, v5" % (2 * MB - 8192))
    for t in range(9):
        if t == 4 or t == 8:
            g.e("v_add_u32 v6, 0x1000, v6")
        g.vm("buffer_load_dwordx4 %s, v6, s[%d:%d], 0 offen offset:%d" % (vr(KF + 4 * t), SQ, SQ + 3, (t % 4) * 1024), ("k", t))
    g.e("s_lshl_b32 s26, s22, 5")
    g.e("s_add_u32 s26, s26, s25")
    g.e("s_add_u32 s26, s26, 0x%x" % (4 * MB - 8192))
    g.e("s_mul_i32 s27, s3, 3072")
    g.e("s_add_u32 s26, s26, s27")
    g.e("v_lshlrev_b32 v7, 4, v1")
    g.e("v_add_u32 v7, s26, v7")
    for q in range(3):
        g.e("s_add_u32 m0, s27, 0x%x" % (VB + q * 1024))
        if q:
            g.e("v_add_u32 v7, 0x400, v7")
        else:
            g.e("s_nop 0")
        g.vm("buffer_load_dwordx4 v7, s[%d:%d], 0 offen lds" % (SQ, SQ + 3), "v")
    NPF = 0
    def do_pf():
        g.srd(32, P_WO, 0, 512 * 1024)
        g.srd(36, P_W1, 0, 512 * 3584)
        g.srd(40, P_W3, 0, 512 * 3584)
        g.srd(44, P_W2, 0, 1792 * 1024)
        PV = 176
        g.e("v_lshlrev_b32 v%d, 4, v1" % PV)
        g.e("s_lshl_b32 s28, s2, 2")
        g.e("s_add_u32 s28, s28, s3")
        g.e("s_lshl_b32 s28, s28, 10")
        for sr in (32, 36, 40, 44):
            g.vm("buffer_load_dwordx4 %s, v%d, s[%d:%d], s28 offen" % (vr(PV + 4), PV, sr, sr + 3), "pf")
        if TLB2:
            g.srd(32, P_WS, 8 * MB, 10 * MB)
            g.srd(36, P_OUT, 0, 2 * MB)
            g.e("v_mul_u32_u24 v%d, 0x28000, v1" % (PV + 1))
            g.vm("buffer_load_dword v%d, v%d, s[32:35], 0 offen" % (PV + 4, PV + 1), "pf")
            g.e("v_lshlrev_b32 v%d, 15, v1" % (PV + 2))
            g.vm("buffer_load_dword v%d, v%d, s[36:39], 0 offen" % (PV + 5, PV + 2), "pf")
    if PFM == 'A':
        do_pf()
        NPF = 4
    M0_ = 48
    M8_ = 64
    NM = 80
    S0 = 96
    PF = 128
    VF = 144
    OA = 160
    for k in range(4):
        g.e("v_mov_b32 v%d, 0x3f803f80" % (S0 + k))
    g.e("v_lshlrev_b32 v2, 4, v1")
    g.lg("ds_write_b128 v2, %s offset:%d" % (vr(S0), OB), "ones")
    g.e("v_lshlrev_b32 v2, 2, v4")
    g.e("v_sub_u32 v2, v3, v2")
    NEG = f32hex(-1e30)
    g.e("v_mov_b32 v%d, %s" % (S0 + 4, NEG))
    for r in range(16):
        jc = (r & 3) + 8 * (r >> 2)
        g.e("v_cmp_gt_i32 vcc, %d, v2" % jc)
        g.nop(2)
        g.e("v_cndmask_b32 v%d, v%d, 0, vcc" % (M0_ + r, S0 + 4))
        g.e("v_cndmask_b32 v%d, 0, v%d, vcc" % (M8_ + r, S0 + 4))
    g.e("v_bfe_u32 v2, v1, 2, 2")
    g.e("v_lshl_add_u32 v2, v4, 2, v2")
    g.e("v_lshlrev_b32 v2, 5, v2")
    g.e("v_and_b32 v5, 3, v1")
    g.e("v_lshl_add_u32 v2, v5, 3, v2")
    g.e("s_lshl_b32 s27, s3, 10")
    g.e("s_add_u32 s27, s27, 0x%x" % VB)
    g.e("v_add_u32 v2, s27, v2")
    g.e("v_lshlrev_b32 v5, 7, v4")
    g.e("v_sub_u32 v5, 0x%x, v5" % (OB + 128))
    g.e("v_bfe_u32 v6, v1, 4, 1")
    g.e("v_cmp_eq_u32 vcc, 1, v6")
    g.nop(2)
    g.e("v_cndmask_b32 v2, v2, v5, vcc")
    g.e("v_mov_b32 v5, 0x400")
    g.e("v_cndmask_b32 v5, v5, 0, vcc")
    g.e("v_mul_lo_u32 v6, v5, s24")
    g.e("v_add_u32 v2, v2, v6")
    VA, VI = 2, 5
    MX = 6
    g.e("v_mov_b32 v%d, %s" % (MX, NEG))
    g.wait_vm("q")
    def smfma(t, dst, c):
        g.e("v_mfma_f32_32x32x16_bf16 %s, %s, %s, %s" % (vr(dst, 16), vr(KF + 4 * t), vr(QF), c))
    for t in range(9):
        L = g.newlabel("p1")
        if t < 8:
            g.e("s_cmp_gt_u32 s24, %d" % t)
            g.e("s_cbranch_scc1 %s" % L)
        g.e("s_waitcnt vmcnt(%d)" % (NPF + 3 + 8 - t))
        c = vr(M0_, 16) if t == 0 else (vr(M8_, 16) if t == 8 else "0")
        dst = S0 + 16 * (t & 1)
        smfma(t, dst, c)
        g.nop(18)
        for r in range(0, 16, 2):
            g.e("v_max3_f32 v%d, v%d, v%d, v%d" % (MX, MX, dst + r, dst + r + 1))
        g.label(L)
    g.vmq = [x for x in g.vmq if x in ("v", "pf")]
    if PFM == 'C':
        do_pf()
    g.e("v_mov_b32 v%d, v%d" % (MX + 1, MX))
    g.nop(2)
    g.e("v_permlane32_swap_b32 v%d, v%d" % (MX, MX + 1))
    g.nop(1)
    g.e("v_max_f32 v%d, v%d, v%d" % (MX, MX, MX + 1))
    for r in range(16):
        g.e("v_sub_f32 v%d, 0, v%d" % (NM + r, MX))
    for r in range(16):
        g.e("v_sub_f32 v%d, v%d, v%d" % (M0_ + r, M0_ + r, MX))
        g.e("v_sub_f32 v%d, v%d, v%d" % (M8_ + r, M8_ + r, MX))
    for r in range(16):
        g.e("v_mov_b32 v%d, 0" % (OA + r))
    g.wait_vm("v")
    g.wait_lg("ones")
    g.e("s_barrier")
    if PFM == 'D':
        do_pf()
    for t in range(9):
        L = g.newlabel("p2")
        if t < 8:
            g.e("s_cmp_gt_u32 s24, %d" % t)
            g.e("s_cbranch_scc1 %s" % L)
        vf = VF + 8 * (t & 1)
        for k in range(4):
            g.lg("ds_read_b64_tr_b16 %s, v%d offset:%d" % (vr(vf + 2 * k, 2), VA, 256 * k), ("vf", t))
        g.e("v_add_u32 v%d, v%d, v%d" % (VA, VA, VI))
        c = vr(M0_, 16) if t == 0 else (vr(M8_, 16) if t == 8 else vr(NM, 16))
        dst = S0 + 16 * (t & 1)
        smfma(t, dst, c)
        g.nop(18)
        for r in range(16):
            g.e("v_exp_f32 v%d, v%d" % (dst + r, dst + r))
        pf = PF + 8 * (t & 1)
        g.nop(1)
        for r in range(8):
            g.e("v_cvt_pk_bf16_f32 v%d, v%d, v%d" % (pf + r, dst + 2 * r, dst + 2 * r + 1))
        g.wait_lg(("vf", t))
        g.nop(2)
        g.e("v_mfma_f32_32x32x16_bf16 %s, %s, %s, %s" % (vr(OA, 16), vr(vf), vr(pf), vr(OA, 16)))
        g.e("v_mfma_f32_32x32x16_bf16 %s, %s, %s, %s" % (vr(OA, 16), vr(vf + 4), vr(pf + 4), vr(OA, 16)))
        g.label(L)
    g.nop(20)
    g.e("v_rcp_f32 v%d, v%d" % (MX, OA + 8))
    g.nop(1)
    for r in range(8):
        g.e("v_mul_f32 v%d, v%d, v%d" % (OA + r, OA + r, MX))
    for r in range(4):
        g.e("v_cvt_pk_bf16_f32 v%d, v%d, v%d" % (PF + r, OA + 2 * r, OA + 2 * r + 1))
    g.e("v_bfe_u32 v7, v3, 4, 1")
    g.e("v_lshlrev_b32 v7, 14, v7")
    g.e("v_and_b32 v6, 15, v3")
    g.e("v_lshl_add_u32 v7, v6, 4, v7")
    g.e("v_lshl_add_u32 v7, v4, 3, v7")
    g.e("s_lshl_b32 s26, s20, 9")
    g.e("s_lshl_b32 s27, s23, 10")
    g.e("s_add_u32 s26, s26, s27")
    g.vm("buffer_store_dwordx2 %s, v7, s[%d:%d], s26 offen" % (vr(PF, 2), SO, SO + 3), "o")
    g.vm("buffer_store_dwordx2 %s, v7, s[%d:%d], s26 offen offset:256" % (vr(PF + 2, 2), SO, SO + 3), "o")
    g.end(name)
    return dict(name=name, grid=512, lds=lds, vgpr=184, agpr=0)


def main():
    g = G()
    ks = []
    ks.append(ln_gemm(g, "k1_qkv_kernel", "qkv"))
    ks.append(attention(g, "k2_attn_kernel"))
    ks.append(gemm_res(g, "k3_wo_kernel", P_WS, WS_ATTN, 1024, 512, P_WO, P_WS, WS_XF, P_WS, WS_H, 8, True))
    ks.append(ln_gemm(g, "k4_ffn_kernel", "ffn"))
    ks.append(gemm_res(g, "k5_w2_kernel", P_WS, WS_HMID, 3584, 1792, P_W2, P_WS, WS_H, P_OUT, 0, 8, False))
    out = []
    for k in ks:
        out.append("; @launch kernel=%s grid=(%d,1,1) block=(256,1,1) lds=%d" % (k["name"], k["grid"], k["lds"]))
    out.append('.amdgcn_target "amdgcn-amd-amdhsa--gfx950"')
    out.append(".text")
    out += g.lines
    out.append("L_code_end:")
    out.append('.section .rodata,"a"')
    for k in ks:
        accoff = (k["vgpr"] + 3) // 4 * 4
        assert accoff <= 256
        tot = accoff + k["agpr"]
        assert tot <= 512
        out.append(".p2align 6")
        out.append(".amdhsa_kernel %s" % k["name"])
        out.append("  .amdhsa_next_free_vgpr %d" % tot)
        out.append("  .amdhsa_next_free_sgpr 102")
        out.append("  .amdhsa_accum_offset %d" % accoff)
        out.append("  .amdhsa_group_segment_fixed_size 0")
        out.append("  .amdhsa_kernarg_size 80")
        out.append("  .amdhsa_user_sgpr_count 2")
        out.append("  .amdhsa_user_sgpr_kernarg_segment_ptr 1")
        out.append("  .amdhsa_system_sgpr_workgroup_id_x 1")
        out.append(".end_amdhsa_kernel")
    dst = sys.argv[1] if len(sys.argv) > 1 else "sequential_preLN__sliding_block__glu_gated_swiglu__prompt.s"
    open(dst, "w").write("\n".join(out) + "\n")
    for k in ks:
        print(k)


if __name__ == "__main__":
    main()
```

```python
import sys

MB = 1 << 20
import os
CUT = int(os.environ.get('CUT', '-1'))
EXP = os.environ.get('EXP', '')
TS = int(os.environ.get('TS', '0'))
PRO_RES = int(os.environ.get('PRO_RES', '4'))
PRO_LN = int(os.environ.get('PRO_LN', '4'))
P0_RES = int(os.environ.get('P0_RES', '2'))
P0_LN = int(os.environ.get('P0_LN', '2'))
CU_RATE = int(os.environ.get('CU_RATE', '2'))
PFM = os.environ.get('PF', 'C')
CPF = int(os.environ.get('CPF', '0'))
PRE = int(os.environ.get('PRE', '1'))
CS_AT = int(os.environ.get('CS_AT', '1'))
KLATE = int(os.environ.get('KLATE', '1'))
K1PF = int(os.environ.get('K1PF', '0'))
TLB1 = int(os.environ.get('TLB1', '0'))
TLB2 = int(os.environ.get('TLB2', '0'))
PACK = int(os.environ.get('PACK', '1'))
PK2 = int(os.environ.get('PK2', '1'))
X4 = os.environ.get('X4', '12345')
SC = os.environ.get('SC', '12345')
PF1_AT = int(os.environ.get('PF1_AT', '4'))
PK_AT = int(os.environ.get('PK_AT', '7'))
PK_MOD = os.environ.get('PK_MOD', ' sc1')
WS_P13 = 25 * MB
WS_P2 = 29 * MB
WS_PO = 31 * MB
WS_QKV = 0
WS_ATTN = 6 * MB
WS_H = 8 * MB
WS_HMID = 10 * MB
WS_XF = 18 * MB
WS_ST = 20 * MB
WS_CS = 21 * MB
LOG2E = 1.4426950408889634
QSCALE = 0.25 * LOG2E

P_X, P_WQKV, P_WO, P_BX, P_W1, P_W3, P_W2, P_OUT, P_DBG, P_WS = [64 + 2 * i for i in range(10)]


def f32hex(x):
    import struct
    return "0x%08x" % struct.unpack("<I", struct.pack("<f", x))[0]


class G:
    def __init__(self):
        self.lines = []
        self.vmq = []
        self.lgq = []
        self.nlabel = 0

    def e(self, s):
        self.lines.append("    " + s)

    def label(self, s):
        self.lines.append(s + ":")

    def newlabel(self, p):
        self.nlabel += 1
        return "L_%s_%d" % (p, self.nlabel)

    def vm(self, s, tag):
        self.e(s)
        self.vmq.append(tag)
        assert len(self.vmq) <= 63, "too many outstanding vmem"

    def lg(self, s, tag):
        self.e(s)
        self.lgq.append(tag)
        assert len(self.lgq) <= 15, "too many outstanding lgkm"

    def _wait(self, q, tag):
        if tag not in q:
            return None, q
        idx = len(q) - 1 - q[::-1].index(tag)
        return len(q) - 1 - idx, q[idx + 1:]

    def wait_vm(self, tag):
        n, self.vmq = self._wait(self.vmq, tag)
        if n is not None:
            self.e("s_waitcnt vmcnt(%d)" % n)

    def wait_lg(self, tag):
        n, self.lgq = self._wait(self.lgq, tag)
        if n is not None:
            self.e("s_waitcnt lgkmcnt(%d)" % n)

    def wait_all(self):
        self.e("s_waitcnt vmcnt(0) lgkmcnt(0)")
        self.vmq = []
        self.lgq = []

    def ts(self, k):
        if not TS or k > 8:
            return
        self.e("s_memtime s[%d:%d]" % (84 + 2 * k, 85 + 2 * k))
        self.e("s_waitcnt lgkmcnt(0)")
        self.lgq = []

    def ts_dump(self, kidx):
        if not TS:
            return
        L = self.newlabel("ts")
        self.e("s_cmp_lg_u32 s3, 0")
        self.e("s_cbranch_scc1 %s" % L)
        self.e("s_memrealtime s[60:61]")
        self.e("s_waitcnt lgkmcnt(0)")
        self.srd(56, P_WS, 24 * MB + kidx * 65536, 65536)
        self.e("s_lshl_b32 s55, s2, 6")
        self.e("v_mov_b32 v0, 0")
        for k in range(9):
            self.e("v_mov_b32 v1, s%d" % (84 + 2 * k))
            self.e("buffer_store_dword v1, v0, s[56:59], s55 offen offset:%d" % (4 * k))
        self.e("v_mov_b32 v1, s60")
        self.e("buffer_store_dword v1, v0, s[56:59], s55 offen offset:36")
        self.e("v_mov_b32 v1, s62")
        self.e("buffer_store_dword v1, v0, s[56:59], s55 offen offset:40")
        self.label(L)

    def nop(self, n):
        while n > 0:
            k = min(n, 16)
            self.e("s_nop %d" % (k - 1))
            n -= k

    def begin(self, name, nwg):
        self.lines.append(".globl %s" % name)
        self.lines.append(".p2align 8")
        self.lines.append(".type %s,@function" % name)
        self.label(name)
        self.vmq = []
        self.lgq = []
        self.e("s_cmp_ge_u32 s2, %d" % nwg)
        self.e("s_cbranch_scc1 L_end_%s" % name)
        if TS:
            self.e("s_memrealtime s[62:63]")
        self.e("s_load_dwordx16 s[64:79], s[0:1], 0")
        self.e("s_load_dwordx4 s[80:83], s[0:1], 64")
        self.e("v_and_b32 v1, 63, v0")
        self.e("v_lshrrev_b32 v2, 6, v0")
        self.e("s_nop 0")
        self.e("v_readfirstlane_b32 s3, v2")
        if not KLATE:
            self.kwait()

    def kwait(self):
        self.e("s_waitcnt lgkmcnt(0)")
        self.ts(0)

    def end(self, name):
        self.label("L_end_%s" % name)
        self.e("s_endpgm")

    def srd(self, d, ptr, off, size):
        if off:
            self.e("s_add_u32 s%d, s%d, 0x%x" % (d, ptr, off))
            self.e("s_addc_u32 s%d, s%d, 0" % (d + 1, ptr + 1))
        else:
            self.e("s_mov_b32 s%d, s%d" % (d, ptr))
            self.e("s_mov_b32 s%d, s%d" % (d + 1, ptr + 1))
        self.e("s_mov_b32 s%d, 0x%x" % (d + 2, size))
        self.e("s_mov_b32 s%d, 0x00020000" % (d + 3))


def vr(b, n=4):
    return "v[%d:%d]" % (b, b + n - 1)


def ar(b, n=4):
    return "a[%d:%d]" % (b, b + n - 1)


def pipeline(g, items, D, stage_of, on_stage_start, issue_reads, do_mfma):
    n = len(items)
    pend = []
    npend = 0
    r = 0
    nin = 1
    for i in range(-D, n):
        j = i + D
        ms, rs = [], []
        if i >= 0:
            g.wait_lg(("it", i))
            ms = do_mfma(i, items[i]) or []
            if 'M' in EXP:
                ms = []
        if j < n:
            if j == 0 or stage_of(items[j]) != stage_of(items[j - 1]):
                assert not pend
                for m in ms:
                    m()
                ms = []
                pend = list(on_stage_start(stage_of(items[j])) or [])
                npend = len(pend)
                r = 0
                nin = sum(1 for it in items if stage_of(it) == stage_of(items[j]))
            rs = issue_reads(j, items[j]) or []
            if 'R' in EXP:
                rs = []
        vs = []
        if j < n:
            r += 1
            want = (r * npend + nin - 1) // nin
            while npend - len(pend) < want:
                vs.append(pend.pop(0))
        rs = rs + vs
        while ms or rs:
            if ms:
                ms.pop(0)()
            if rs:
                rs.pop(0)()


def gemm_res(g, name, a_ptr, a_off, a_rowb, KD, w_ptr, res_ptr, res_off, out_ptr, out_off, nslots, out_fl):
    g.begin(name, 256)
    if CUT == 0:
        g.e("s_endpgm")
    nks = KD // 32
    nst = KD // 128
    ring = nslots < nst
    SA, SW, SR, SO = 4, 8, 12, 16
    RV = 2
    ostep = 512 if out_fl else 32
    stats = PRE and out_fl
    kid = '3' if out_fl else '5'
    x4 = kid in X4
    scm = ' sc1' if kid in SC else ''
    def srds():
        g.srd(SA, a_ptr, a_off, 2048 * a_rowb)
        if PACK:
            g.srd(SW, P_WS, WS_PO if KD == 512 else WS_P2, KD * 1024)
        else:
            g.srd(SW, w_ptr, 0, KD * 1024)
        g.srd(SR, res_ptr, res_off, 2048 * 1024)
        g.srd(SO, out_ptr, out_off, 2048 * 1024)
        if stats:
            g.srd(32, P_WS, WS_ST, 2048 * 64)
            g.srd(44, P_WS, WS_CS, 16 * 3584)
            g.e("s_cmp_ge_u32 s48, 112")
            g.e("s_cselect_b32 s40, s%d, s%d" % (P_W3, P_W1))
            g.e("s_cselect_b32 s41, s%d, s%d" % (P_W3 + 1, P_W1 + 1))
            g.e("s_mov_b32 s42, 0x%x" % (512 * 3584))
            g.e("s_mov_b32 s43, 0x00020000")
    if not KLATE:
        srds()
    g.e("s_and_b32 s20, s2, 31")
    g.e("s_lshr_b32 s21, s2, 5")
    g.e("s_lshl_b32 s22, s20, 6")
    g.e("s_lshl_b32 s23, s3, 4")
    g.e("s_add_u32 s22, s22, s23")
    g.e("v_and_b32 v3, 15, v1")
    g.e("v_add_u32 v3, s22, v3")
    g.e("v_lshrrev_b32 v4, 4, v1")
    g.e("s_lshl_b32 s27, s20, 2")
    g.e("s_add_u32 s27, s27, s3")
    g.e("s_mul_i32 s28, s27, %d" % (16 * a_rowb))
    g.e("v_lshlrev_b32 v5, 4, v1")
    g.e("v_add_u32 v5, s28, v5")
    g.e("s_lshl_b32 s28, s27, 14")
    g.e("s_lshl_b32 s29, s21, 11")
    g.e("s_add_u32 s28, s28, s29")
    g.e("v_and_b32 v9, 15, v1")
    g.e("v_lshlrev_b32 v9, 4, v9")
    g.e("v_bfe_u32 v10, v1, 5, 1")
    g.e("v_lshl_add_u32 v9, v10, 8, v9")
    g.e("v_bfe_u32 v10, v1, 4, 1")
    g.e("v_lshl_add_u32 v9, v10, 3, v9")
    g.e("v_add_u32 v%d, s28, v9" % RV)
    g.e("s_lshl_b32 s23, s21, 7")
    if not out_fl:
        g.e("v_lshlrev_b32 v6, 10, v3")
        if x4:
            g.e("v_lshl_add_u32 v6, v10, 5, v6")
            g.e("v_bfe_u32 v10, v1, 5, 1")
            g.e("v_lshl_add_u32 v6, v10, 4, v6")
        else:
            g.e("v_lshl_add_u32 v6, v4, 3, v6")
        g.e("v_add_u32 v6, s23, v6")
    elif x4:
        g.e("v_mul_u32_u24 v10, 504, v10")
        g.e("v_add_u32 v6, v%d, v10" % RV)
    else:
        g.e("v_mov_b32 v6, v%d" % RV)
    g.e("v_lshrrev_b32 v9, 3, v1")
    g.e("v_and_b32 v10, 7, v1")
    g.e("v_bfe_u32 v11, v1, 4, 1")
    g.e("v_lshlrev_b32 v11, 1, v11")
    g.e("v_xor_b32 v10, v10, v11")
    g.e("v_lshlrev_b32 v9, 10, v9")
    g.e("v_lshl_add_u32 v7, v10, 4, v9")
    g.e("v_xor_b32 v10, 4, v10")
    g.e("v_lshl_add_u32 v8, v10, 4, v9")
    g.e("s_lshl_b32 s25, s3, 12")
    if PACK:
        g.e("s_mul_i32 s24, s21, %d" % (KD * 128))
        g.e("s_add_u32 s24, s24, s25")
    else:
        g.e("s_lshl_b32 s24, s3, 15")
        g.e("s_add_u32 s24, s24, s23")
    g.e("v_bfe_u32 v9, v1, 2, 2")
    g.e("v_lshl_add_u32 v10, v4, 3, v9")
    g.e("v_lshlrev_b32 v10, 7, v10")
    g.e("v_bfe_u32 v11, v1, 1, 1")
    g.e("v_lshl_add_u32 v10, v11, 4, v10")
    g.e("v_and_b32 v11, 1, v1")
    g.e("v_lshl_add_u32 v10, v11, 3, v10")
    g.e("v_bfe_u32 v11, v1, 3, 1")
    g.e("v_bfe_u32 v12, v1, 4, 1")
    g.e("v_lshl_or_b32 v11, v12, 1, v11")
    g.e("v_lshlrev_b32 v11, 1, v11")
    TA = 12
    for nt in range(4):
        g.e("v_xor_b32 v20, %d, v11" % (2 * nt))
        g.e("v_lshl_add_u32 v%d, v20, 4, v10" % (TA + nt))
        g.e("v_add_u32 v%d, 0x10000, v%d" % (TA + 4 + nt, TA + nt))
    RES = 20
    ACC = 28
    WF = 44
    D = 7
    NR = D + 1
    CV = WF + NR * 4
    if stats:
        g.e("s_sub_u32 s49, s2, 32")
        g.e("s_cmp_lt_u32 s2, 224")
        g.e("s_cselect_b32 s48, s2, s49")
        g.e("s_cmp_ge_u32 s48, 112")
        g.e("s_cselect_b32 s49, 112, 0")
        g.e("s_cselect_b32 s51, 7, 0")
        g.e("s_sub_u32 s49, s48, s49")
        g.e("s_and_b32 s52, s49, 3")
        g.e("s_lshr_b32 s53, s49, 2")
        g.e("s_and_b32 s49, s49, 0xfc")
        g.e("s_add_u32 s49, s49, s3")
        g.e("s_mul_i32 s50, s49, 9363")
        g.e("s_lshr_b32 s50, s50, 16")
        g.e("s_mul_i32 s54, s50, 7")
        g.e("s_sub_u32 s49, s49, s54")
        g.e("s_add_u32 s49, s49, s51")
        g.e("s_lshl_b32 s49, s49, 6")
        g.e("s_mul_i32 s50, s50, 3584")
        g.e("s_add_u32 s50, s50, s49")
        g.e("s_mul_i32 s49, s52, 896")
        g.e("s_add_u32 s50, s50, s49")
        g.e("s_lshl_b32 s52, s52, 2")
        g.e("s_add_u32 s52, s52, s3")
        g.e("s_mul_i32 s52, s52, %d" % (32 * 3584))
        g.e("s_lshl_b32 s53, s53, 7")
        g.e("s_add_u32 s52, s52, s53")
        g.e("v_lshrrev_b32 v9, 3, v1")
        g.e("v_mul_u32_u24 v9, 2560, v9")
        g.e("v_add_u32 v%d, v9, v7" % (CV + 1))
        g.e("v_add_u32 v%d, v9, v8" % (CV + 2))
        g.e("s_lshl_b32 s53, s3, 1")
        g.e("v_xor_b32 v20, s53, v11")
        g.e("v_lshl_add_u32 v%d, v20, 4, v10" % CV)
        g.e("v_add_u32 v%d, 0x10000, v%d" % (CV, CV))
        for k in range(4):
            g.e("v_mov_b32 v%d, 0x3f803f80" % (CV + 8 + k))

    if PACK:
        g.e("v_lshlrev_b32 v9, 4, v1")

    def cs_loads():
        out = []
        for q in range(4):
            def f(q=q):
                g.e("s_add_u32 m0, s25, 0x%x" % (65536 + q * 1024))
                g.e("s_add_u32 s26, s52, 0x%x" % (q * 8 * 3584))
                g.vm("buffer_load_dwordx4 v%d, s[40:43], s26 offen lds" % (CV + 1 + (q & 1)), "cs")
            out.append(f)
        return out

    def stage_loads(s):
        slot = s % nslots
        out = []
        for q in range(4):
            def f(q=q):
                g.e("s_add_u32 m0, s25, 0x%x" % (slot * 16384 + q * 1024))
                if PACK:
                    g.e("s_add_u32 s26, s24, 0x%x" % (s * 16384 + q * 1024))
                    g.vm("buffer_load_dwordx4 v9, s[%d:%d], s26 offen lds" % (SW, SW + 3), ("st", s))
                else:
                    g.e("s_add_u32 s26, s24, 0x%x" % ((s * 128 + q * 8) * 1024))
                    g.vm("buffer_load_dwordx4 v%d, s[%d:%d], s26 offen lds" % (7 + (q & 1), SW, SW + 3), ("st", s))
            out.append(f)
            def f2(k4=q):
                ks = s * 4 + k4
                g.e("s_mov_b32 s27, 0x%x" % (s * 4096))
                g.vm("buffer_load_dwordx4 %s, v5, s[%d:%d], s27 offen offset:%d" % (ar(ks * 4), SA, SA + 3, k4 * 1024), ("st", s))
            out.append(f2)
        return out

    def issue_stage(s):
        for f in stage_loads(s):
            f()

    P = min(PRO_RES, nslots - 2) if ring else PRO_RES
    npro = min(nst, P, P0_RES)
    nxt = [npro]
    if KLATE:
        g.kwait()
        srds()
    issue_stage(0)
    for nt in range(4):
        g.vm("buffer_load_dwordx2 %s, v%d, s[%d:%d], 0 offen offset:%d" % (vr(RES + 2 * nt, 2), RV, SR, SR + 3, nt * 512), "res")
    for s in range(1, npro):
        issue_stage(s)
    if CUT == 1:
        g.e("s_waitcnt vmcnt(0)")
        g.e("s_endpgm")
    g.ts(1)
    tsst = (0, 1, 2, 3) if nst == 4 else (0, 1, 5, 9, 13)

    items = [(ks, nt) for ks in range(nks) for nt in range(4)]

    def on_stage_start(s):
        g.wait_vm(("st", s))
        g.e("s_barrier")
        if s in tsst:
            g.ts(2 + tsst.index(s))
        out = []
        for _ in range(CU_RATE):
            if nxt[0] <= s + P and nxt[0] < nst:
                out += stage_loads(nxt[0])
                nxt[0] += 1
        if stats and s == CS_AT:
            out += cs_loads()
        return out

    def issue_reads(j, it):
        ks, nt = it
        s = ks // 4
        slot = s % nslots
        off = slot * 16384 + (ks % 4) * 32 * 128
        a = TA + nt
        if off >= 65536:
            off -= 65536
            a += 4
        w = WF + (j % NR) * 4
        return [lambda: g.lg("ds_read_b64_tr_b16 %s, v%d offset:%d" % (vr(w, 2), a, off), ("it", j)),
                lambda: g.lg("ds_read_b64_tr_b16 %s, v%d offset:%d" % (vr(w + 2, 2), a, off + 512), ("it", j))]

    def do_mfma(i, it):
        ks, nt = it
        w = WF + (i % NR) * 4
        acc = vr(ACC + nt * 4)
        return [lambda: g.e("v_mfma_f32_16x16x32_bf16 %s, %s, %s, %s" % (acc, vr(w), ar(ks * 4), "0" if ks == 0 else acc))]

    pipeline(g, items, D, lambda it: it[0] // 4, on_stage_start, issue_reads, do_mfma)
    g.ts(7)
    g.wait_vm("res")
    g.nop(16)
    T = WF
    for nt in range(4):
        a = ACC + nt * 4
        r = RES + 2 * nt
        g.e("v_lshlrev_b32 v%d, 16, v%d" % (T, r))
        g.e("v_and_b32 v%d, 0xffff0000, v%d" % (T + 1, r))
        g.e("v_lshlrev_b32 v%d, 16, v%d" % (T + 2, r + 1))
        g.e("v_and_b32 v%d, 0xffff0000, v%d" % (T + 3, r + 1))
        for k in range(4):
            g.e("v_add_f32 v%d, v%d, v%d" % (a + k, a + k, T + k))
        d = (ACC + (nt & 2) * 4 + (nt & 1) * 2) if x4 else a
        g.e("v_cvt_pk_bf16_f32 v%d, v%d, v%d" % (d, a, a + 1))
        g.e("v_cvt_pk_bf16_f32 v%d, v%d, v%d" % (d + 1, a + 2, a + 3))
        if not x4:
            g.vm("buffer_store_dwordx2 %s, v6, s[%d:%d], 0 offen offset:%d%s" % (vr(a, 2), SO, SO + 3, nt * ostep, scm), "out")
        if stats:
            if nt == 0:
                g.e("s_mov_b32 s36, 0x3f803f80")
            for k in range(2):
                first = nt == 0 and k == 0
                g.e("v_dot2_f32_bf16 v%d, v%d, s36, %s" % (T + 4, d + k, "0" if first else "v%d" % (T + 4)))
                g.e("v_dot2_f32_bf16 v%d, v%d, v%d, %s" % (T + 5, d + k, d + k, "0" if first else "v%d" % (T + 5)))
        if x4 and (nt & 1):
            d -= 2
            g.nop(2)
            g.e("v_permlane16_swap_b32 v%d, v%d" % (d, d + 2))
            g.e("v_permlane16_swap_b32 v%d, v%d" % (d + 1, d + 3))
            g.nop(1)
            g.vm("buffer_store_dwordx4 %s, v6, s[%d:%d], 0 offen offset:%d%s" % (vr(d), SO, SO + 3, (nt - 1) * ostep, scm), "out")
    if stats:
        S_, Q_ = T + 4, T + 5
        g.e("v_lshlrev_b32 v%d, 6, v3" % (T + 6))
        g.e("v_and_b32 v%d, 1, v4" % (T + 7))
        g.e("v_lshl_add_u32 v%d, v%d, 2, v%d" % (T + 6, T + 7, T + 6))
        g.e("s_lshl_b32 s36, s21, 3")
        g.nop(2)
        g.e("v_permlane16_swap_b32 v%d, v%d" % (S_, Q_))
        g.nop(1)
        g.e("v_add_f32 v%d, v%d, v%d" % (S_, S_, Q_))
        g.e("v_mov_b32 v%d, v%d" % (Q_, S_))
        g.nop(2)
        g.e("v_permlane32_swap_b32 v%d, v%d" % (S_, Q_))
        g.nop(1)
        g.e("v_add_f32 v%d, v%d, v%d" % (S_, S_, Q_))
        g.vm("buffer_store_dword v%d, v%d, s[32:35], s36 offen" % (S_, T + 6), "out")
        g.wait_vm("cs")
        g.e("s_barrier")
        for k4 in range(4):
            w = T + 8 + k4 * 4
            g.lg("ds_read_b64_tr_b16 %s, v%d offset:%d" % (vr(w, 2), CV, k4 * 4096), ("c", k4))
            g.lg("ds_read_b64_tr_b16 %s, v%d offset:%d" % (vr(w + 2, 2), CV, k4 * 4096 + 512), ("c", k4))
        g.e("v_lshlrev_b32 v%d, 4, v4" % (CV + 1))
        g.e("s_mov_b32 s28, 0x00010001")
        g.e("s_mov_b32 s29, 0x00010001")
        for k4 in range(4):
            g.wait_lg(("c", k4))
            g.e("v_mfma_f32_16x16x32_bf16 %s, %s, %s, %s" % (vr(CV + 4), vr(T + 8 + k4 * 4), vr(CV + 8), "0" if k4 == 0 else vr(CV + 4)))
        g.e("s_mov_b64 exec, s[28:29]")
        g.nop(16)
        g.vm("buffer_store_dwordx4 %s, v%d, s[44:47], s50 offen" % (vr(CV + 4), CV + 1), "out")
        g.e("s_mov_b64 exec, -1")
    g.ts(8)
    g.ts_dump(2 if nst == 4 else 4)
    g.end(name)
    nv = WF + NR * 4 + (12 if stats else 0)
    return dict(name=name, grid=256, lds=(nslots * 16384 if ring else nst * 16384) + (16384 if stats else 0), vgpr=nv, agpr=nks * 4)


def ln_gemm(g, name, mode):
    qkv = mode == "qkv"
    pre = PRE and not qkv
    kid = '1' if qkv else '4'
    x4 = kid in X4
    scm = ' sc1' if kid in SC else ''
    g.begin(name, 256)
    NT = 6 if qkv else 14
    NPM = 6 if qkv else 7
    NW0 = NPM - 3
    CSP = (0, 3) if qkv else (0, 4)
    nks = 16
    nst = 8
    nslots = 5
    SLOTB = 28672
    CSB = 5 * SLOTB
    lds = CSB + 1024
    SA, SW, SO, SX = 4, 8, 12, 16
    ool = []
    if qkv and CPF:
        g.e("s_getpc_b64 s[32:33]")
        g.e("s_and_b32 s32, s32, 0xffffff00")
        g.e("s_and_b32 s33, s33, 0xffff")
        g.e("s_mov_b32 s34, L_code_end-%s" % name)
        g.e("s_mov_b32 s35, 0x00020000")
        g.e("s_lshr_b32 s36, s2, 3")
        g.e("s_lshl_b32 s36, s36, 2")
        g.e("s_add_u32 s36, s36, s3")
        g.e("s_lshl_b32 s36, s36, 10")
        g.e("v_lshlrev_b32 v180, 4, v1")
        g.vm("buffer_load_dwordx4 v[184:187], v180, s[32:35], s36 offen", "pf")
    def srds():
        if qkv:
            g.srd(SA, P_X, 0, 2048 * 1024)
            g.srd(SW, P_WQKV, 0, 512 * 3072)
            g.srd(SO, P_WS, WS_QKV, 6 * MB)
            g.srd(SX, P_WS, WS_XF, 2 * MB)
        else:
            g.srd(SA, P_WS, WS_H, 2048 * 1024)
            if PACK:
                g.srd(SW, P_WS, WS_P13, 2 * 512 * 3584)
            else:
                g.e("s_cmp_lt_u32 s3, 2")
                g.e("s_cselect_b32 s%d, s%d, s%d" % (SW, P_W1, P_W3))
                g.e("s_cselect_b32 s%d, s%d, s%d" % (SW + 1, P_W1 + 1, P_W3 + 1))
                g.e("s_mov_b32 s%d, 0x%x" % (SW + 2, 512 * 3584))
                g.e("s_mov_b32 s%d, 0x00020000" % (SW + 3))
            g.srd(SO, P_WS, WS_HMID, 2048 * 3584)
            if pre:
                g.srd(SX, P_WS, WS_ST, 2048 * 64)
                g.srd(32, P_WS, WS_CS, 16 * 3584)
    if not KLATE:
        srds()
    g.e("s_lshr_b32 s22, s2, 3")
    if qkv:
        g.e("s_and_b32 s20, s2, 3")
        g.e("s_lshl_b32 s20, s20, 2")
        g.e("s_and_b32 s23, s22, 3")
        g.e("s_add_u32 s20, s20, s23")
        g.e("s_bfe_u32 s21, s2, 0x10002")
        g.e("s_lshl_b32 s21, s21, 3")
        g.e("s_lshr_b32 s23, s22, 2")
        g.e("s_add_u32 s21, s21, s23")
    else:
        g.e("s_and_b32 s20, s2, 1")
        g.e("s_lshl_b32 s20, s20, 3")
        g.e("s_and_b32 s23, s22, 7")
        g.e("s_add_u32 s20, s20, s23")
        g.e("s_bfe_u32 s21, s2, 0x20001")
        g.e("s_lshl_b32 s21, s21, 2")
        g.e("s_lshr_b32 s23, s22, 3")
        g.e("s_add_u32 s21, s21, s23")
    g.e("s_lshl_b32 s22, s20, 7")
    g.e("s_lshl_b32 s23, s3, 5")
    g.e("s_add_u32 s22, s22, s23")
    g.e("v_and_b32 v3, 15, v1")
    g.e("v_lshrrev_b32 v4, 4, v1")
    g.e("v_bfe_u32 v9, v1, 2, 2")
    ST = 40
    for p in range(NPM):
        g.e("s_add_u32 s%d, s3, %d" % (ST + p, p))
        if p >= NW0:
            g.e("s_cmp_ge_u32 s%d, %d" % (ST + p, NPM))
            g.e("s_cselect_b32 s26, %d, 0" % NPM)
            g.e("s_sub_u32 s%d, s%d, s26" % (ST + p, ST + p))
    if qkv:
        g.e("v_lshrrev_b32 v10, 3, v1")
        g.e("v_and_b32 v11, 7, v1")
        g.e("v_xor_b32 v11, v11, v10")
        g.e("v_lshlrev_b32 v10, 10, v10")
        g.e("v_lshl_add_u32 v5, v11, 4, v10")
        g.e("s_lshl_b32 s30, s22, 10")
        g.e("s_lshl_b32 s31, s3, 12")
        g.e("s_mul_i32 s24, s3, 192")
        g.e("v_add_u32 v10, s24, v1")
        DV = 16
        for q in range(3):
            g.e("v_add_u32 v11, %d, v10" % (q * 64))
            g.e("v_mul_u32_u24 v12, 5462, v11")
            g.e("v_lshrrev_b32 v12, 16, v12")
            g.e("v_mul_u32_u24 v13, 12, v12")
            g.e("v_sub_u32 v13, v11, v13")
            g.e("v_bfe_u32 v14, v12, 3, 1")
            g.e("v_lshlrev_b32 v14, 1, v14")
            g.e("v_xor_b32 v13, v13, v14")
            g.e("v_mul_u32_u24 v14, 3072, v12")
            g.e("v_lshl_add_u32 v%d, v13, 4, v14" % (DV + q))
        g.e("s_mul_i32 s24, s21, 192")
        g.e("s_mul_i32 s25, s3, 3072")
        g.e("v_add_u32 v10, s22, v3")
        g.e("v_lshlrev_b32 v7, 5, v10")
        if x4:
            g.e("v_bfe_u32 v10, v1, 4, 1")
            g.e("v_lshl_add_u32 v7, v10, 9, v7")
            g.e("v_bfe_u32 v10, v1, 5, 1")
            g.e("v_lshl_add_u32 v7, v10, 4, v7")
        else:
            g.e("v_lshl_add_u32 v7, v4, 3, v7")
        g.e("s_lshl_b32 s26, s22, 10")
        g.e("s_lshl_b32 s27, s21, 10")
        g.e("s_add_u32 s26, s26, s27")
        g.e("v_lshlrev_b32 v8, 4, v1")
        g.e("v_add_u32 v8, s26, v8")
        g.e("v_and_b32 v10, 7, v1")
        g.e("v_xor_b32 v10, v10, v4")
        g.e("v_lshlrev_b32 v11, 7, v3")
        g.e("v_lshl_add_u32 v11, v10, 4, v11")
        g.e("v_add_u32 v19, s31, v11")
        g.e("v_xor_b32 v20, 64, v19")
        XA = 19
        for b in range(1, 3):
            g.e("v_add_u32 v%d, 0x%x, v19" % (XA + 2 * b, b * 2 * SLOTB))
            g.e("v_add_u32 v%d, 0x%x, v20" % (XA + 2 * b + 1, b * 2 * SLOTB))
        g.e("v_lshl_add_u32 v10, v4, 3, v9")
        g.e("v_mul_u32_u24 v10, 192, v10")
        g.e("v_bfe_u32 v11, v1, 1, 1")
        g.e("v_lshl_add_u32 v10, v11, 4, v10")
        g.e("v_and_b32 v11, 1, v1")
        g.e("v_lshl_add_u32 v10, v11, 3, v10")
        g.e("v_add_u32 v10, 0x4000, v10")
        g.e("v_bfe_u32 v11, v1, 4, 1")
        g.e("v_lshlrev_b32 v11, 5, v11")
        TA = 25
        NA = 5
        ai = lambda p: (p & 1) if p < NW0 else p - 1
        for k, p in enumerate((0, 1, 3, 4, 5)):
            g.e("s_sub_u32 s26, s%d, %d" % (ST + p, p))
            g.e("s_lshl_b32 s26, s26, 5")
            g.e("v_add_u32 v12, s26, v10")
            g.e("s_and_b32 s27, s%d, 1" % (ST + p))
            g.e("s_lshl_b32 s27, s27, 1")
            g.e("s_sub_u32 s27, 1, s27")
            g.e("v_mul_lo_u32 v13, s27, v11")
            g.e("v_add_u32 v%d, v12, v13" % (TA + k))
        for b in range(1, 3):
            for k in range(NA):
                g.e("v_add_u32 v%d, 0x%x, v%d" % (TA + NA * b + k, b * 2 * SLOTB, TA + k))
        nextv = TA + 3 * NA
    else:
        g.e("s_lshl_b32 s26, s22, 10")
        g.e("v_lshlrev_b32 v5, 4, v1")
        g.e("v_add_u32 v5, s26, v5")
        g.e("v_add_u32 v6, 0x4000, v5")
        g.e("s_lshr_b32 s26, s22, 4")
        g.e("s_mul_i32 s26, s26, 57344")
        g.e("s_mul_i32 s27, s21, 3584")
        g.e("s_add_u32 s26, s26, s27")
        g.e("v_lshlrev_b32 v7, 4, v3")
        g.e("v_bfe_u32 v10, v1, 5, 1")
        g.e("v_lshl_add_u32 v7, v10, 8, v7")
        g.e("v_bfe_u32 v10, v1, 4, 1")
        if x4:
            g.e("v_mul_u32_u24 v10, 0x%x, v10" % 57344)
            g.e("v_add_u32 v7, v10, v7")
        else:
            g.e("v_lshl_add_u32 v7, v10, 3, v7")
        g.e("v_add_u32 v7, s26, v7")
        g.e("s_mul_i32 s23, s21, 224")
        g.e("s_and_b32 s24, s3, 1")
        g.e("s_mul_i32 s24, s24, 448")
        g.e("v_add_u32 v10, s24, v1")
        DV = 16
        if PACK:
            g.e("v_lshlrev_b32 v%d, 4, v1" % DV)
        for q in range(0 if PACK else 7):
            g.e("v_add_u32 v11, %d, v10" % (q * 64))
            g.e("v_mul_u32_u24 v12, 4682, v11")
            g.e("v_lshrrev_b32 v12, 16, v12")
            g.e("v_mul_u32_u24 v13, 14, v12")
            g.e("v_sub_u32 v13, v11, v13")
            g.e("v_and_b32 v14, 0x33, v12")
            g.e("v_bfe_u32 v15, v12, 2, 1")
            g.e("v_lshl_or_b32 v14, v15, 3, v14")
            g.e("v_bfe_u32 v15, v12, 3, 1")
            g.e("v_lshl_or_b32 v14, v15, 2, v14")
            g.e("v_mul_u32_u24 v14, 3584, v14")
            g.e("v_lshl_add_u32 v%d, v13, 4, v14" % (DV + q))
        g.e("s_mul_i32 s25, s3, 7168")
        if PACK:
            g.e("s_mul_i32 s24, s21, %d" % (8 * 28672))
            g.e("s_add_u32 s24, s24, s25")
        else:
            g.e("s_mov_b32 s24, s23")
        g.e("v_bfe_u32 v10, v1, 5, 1")
        g.e("v_lshl_add_u32 v10, v10, 4, v9")
        g.e("v_bfe_u32 v11, v1, 4, 1")
        g.e("v_lshl_add_u32 v10, v11, 2, v10")
        g.e("v_mul_u32_u24 v10, 224, v10")
        g.e("v_and_b32 v11, 3, v1")
        g.e("v_lshl_add_u32 v10, v11, 3, v10")
        TA = 23
        NA = 4
        ai = lambda p: 0 if p < NW0 else p - 3
        for k, p in enumerate((0, 4, 5, 6)):
            g.e("s_lshl_b32 s26, s%d, 5" % (ST + p))
            g.e("v_add_u32 v%d, s26, v10" % (TA + k))
        for b in range(1, 3):
            for k in range(NA):
                g.e("v_add_u32 v%d, 0x%x, v%d" % (TA + NA * b + k, b * 2 * SLOTB, TA + k))
        nextv = TA + 3 * NA
    nextv = (nextv + 3) // 4 * 4
    ONES = nextv
    for k in range(4):
        g.e("v_mov_b32 v%d, 0x3f803f80" % (ONES + k))
    SUM = ONES + 4
    GRAM = SUM + 8
    CSA = GRAM + 8
    WF = CSA + 16
    D = 6 if qkv else 7
    NR = 8
    nextv = WF + NR * 4
    AX = 0
    ACCV = nextv
    nextv += 2 * NT * 4
    acc = lambda tt, ct: vr(ACCV + (tt * NT + ct) * 4)
    if qkv:
        XF = nextv
        nextv += 16
        XS = nextv
        nextv += 8
        xfr = lambda ks, tt: vr(XF + ((ks & 1) * 2 + tt) * 4)
    else:
        xfr = lambda ks, tt: ar(AX + (tt * 16 + ks) * 4)

    def stage_loads(s):
        wl, al = [], []
        slot = s % nslots
        if qkv:
            for q in range(3):
                def f(q=q):
                    g.e("s_add_u32 m0, s25, 0x%x" % (slot * SLOTB + 16384 + q * 1024))
                    g.e("s_add_u32 s26, s24, 0x%x" % (s * 64 * 3072))
                    g.vm("buffer_load_dwordx4 v%d, s[%d:%d], s26 offen lds" % (DV + q, SW, SW + 3), ("st", s))
                wl.append(f)
            for q in range(4):
                def f(q=q):
                    g.e("s_add_u32 m0, s31, 0x%x" % (slot * SLOTB + q * 1024))
                    g.e("s_add_u32 s26, s30, 0x%x" % (q * 8192 + s * 128))
                    g.vm("buffer_load_dwordx4 v5, s[%d:%d], s26 offen lds" % (SA, SA + 3), ("st", s))
                al.append(f)
        else:
            for q in range(7):
                def f(q=q):
                    g.e("s_add_u32 m0, s25, 0x%x" % (slot * SLOTB + q * 1024))
                    if PACK:
                        g.e("s_add_u32 s26, s24, 0x%x" % (s * 28672 + q * 1024))
                        g.vm("buffer_load_dwordx4 v%d, s[%d:%d], s26 offen lds" % (DV, SW, SW + 3), ("st", s))
                    else:
                        g.e("s_add_u32 s26, s24, 0x%x" % (s * 64 * 3584))
                        g.vm("buffer_load_dwordx4 v%d, s[%d:%d], s26 offen lds" % (DV + q, SW, SW + 3), ("st", s))
                wl.append(f)
            for k2 in range(2):
                for tt in range(2):
                    def f(k2=k2, tt=tt):
                        ks = s * 2 + k2
                        g.e("s_mov_b32 s27, 0x%x" % (s * 2048))
                        g.vm("buffer_load_dwordx4 %s, v%d, s[%d:%d], s27 offen offset:%d" % (
                            ar(AX + (tt * 16 + ks) * 4), 5 + tt, SA, SA + 3, k2 * 1024), ("st", s))
                    al.append(f)
        out = []
        while wl or al:
            if wl:
                out.append(wl.pop(0))
            if al and (len(al) >= len(wl) or not wl or len(out) % 2 == 0):
                out.append(al.pop(0))
        return out

    def issue_stage(s):
        for f in stage_loads(s):
            f()

    def k1pf():
        g.e("s_lshl_b32 s36, s2, 2")
        g.e("s_add_u32 s36, s36, s3")
        g.e("s_lshl_b32 s37, s36, 11")
        g.e("s_mul_i32 s36, s36, 1536")
        g.e("v_lshlrev_b32 v180, 4, v1")
        g.vm("buffer_load_dwordx4 v[184:187], v180, s[%d:%d], s37 offen" % (SA, SA + 3), "pf")
        g.vm("buffer_load_dwordx4 v[184:187], v180, s[%d:%d], s37 offen offset:1024" % (SA, SA + 3), "pf")
        g.vm("buffer_load_dwordx4 v[184:187], v180, s[%d:%d], s36 offen" % (SW, SW + 3), "pf")
        g.vm("buffer_load_dwordx4 v[184:187], v180, s[%d:%d], s36 offen offset:1024" % (SW, SW + 3), "pf")

    P = min(PRO_LN, nslots - 2)
    nxt = [min(P, P0_LN)]
    if KLATE:
        g.kwait()
        srds()
    for s in range(nxt[0]):
        issue_stage(s)
        if pre and s == 0:
            g.e("v_add_u32 v10, s22, v3")
            g.e("v_lshlrev_b32 v10, 6, v10")
            g.e("v_lshl_add_u32 v10, v4, 4, v10")
            for tt in range(2):
                g.vm("buffer_load_dwordx4 %s, v10, s[%d:%d], 0 offen offset:%d" % (vr(GRAM + tt * 4), SX, SX + 3, tt * 1024), "stat")
            g.e("s_mul_i32 s36, s21, 3584")
            g.e("v_lshlrev_b32 v%d, 4, v1" % ONES)
        if qkv and K1PF == 2 and s == 0:
            k1pf()
    if qkv and K1PF == 1:
        k1pf()
    if qkv and TLB1:
        g.srd(32, P_WS, 0, 20 * MB)
        g.srd(36, P_OUT, 0, 2 * MB)
        g.e("v_mul_u32_u24 v180, 0x50000, v1")
        g.vm("buffer_load_dword v184, v180, s[32:35], 0 offen", "pf")
        g.e("v_lshlrev_b32 v181, 15, v1")
        g.vm("buffer_load_dword v185, v181, s[36:39], 0 offen", "pf")
    g.ts(1)

    items = [(ks, ct) for ks in range(nks) for ct in range(NT)]

    def on_stage_start(s):
        g.wait_vm(("st", s))
        g.e("s_barrier")
        if s in (0, 1, 3, 5, 7):
            g.ts(2 + (0, 1, 3, 5, 7).index(s))
        out = []
        for _ in range(CU_RATE):
            if nxt[0] <= s + P and nxt[0] < nst:
                out += stage_loads(nxt[0])
                nxt[0] += 1
        if pre and s == 4:
            for q in range(4):
                out.append(lambda q=q: g.vm("buffer_load_dwordx4 %s, v%d, s[32:35], s36 offen offset:%d" % (vr(CSA + q * 4), ONES, q * 896), "csp"))
        if pre and s == 6:
            out += stat_ops()
        if qkv and s == PF1_AT:
            def f0():
                g.e("s_lshl_b32 s46, s2, 2")
                g.e("s_add_u32 s46, s46, s3")
                g.e("s_mul_i32 s47, s46, %d" % (14 * 128))
                g.e("s_lshl_b32 s46, s46, 9")
                g.e("v_min_u32 v180, 13, v1")
                g.e("v_lshlrev_b32 v180, 7, v180")
                g.e("v_min_u32 v181, 3, v1")
                g.e("v_lshlrev_b32 v181, 7, v181")
            out.append(f0)
            for ptr, sz in ((P_W1, 512 * 3584), (P_W3, 512 * 3584), (P_WO, 512 * 1024), (P_W2, 1792 * 1024)):
                def f(ptr=ptr, sz=sz):
                    g.srd(48, ptr, 0, sz)
                    if ptr == P_WO:
                        g.vm("buffer_load_dword v184, v181, s[48:51], s46 offen", "pf")
                    else:
                        g.vm("buffer_load_dword v184, v180, s[48:51], s47 offen", "pf")
                out.append(f)
        return out

    def stat_ops():
        ops = []
        def A(*ls):
            def f():
                for l in ls:
                    if isinstance(l, int):
                        g.nop(l)
                    else:
                        g.e(l)
            ops.append(f)
        ops.append(lambda: g.wait_vm("stat"))
        for tt in range(2):
            r = GRAM + tt * 4
            m = SUM + tt * 4
            A("v_add_f32 v%d, v%d, v%d" % (r, r, r + 2))
            A("v_add_f32 v%d, v%d, v%d" % (r + 1, r + 1, r + 3))
            A(2, "v_permlane16_swap_b32 v%d, v%d" % (r, r + 1), 1)
            A("v_add_f32 v%d, v%d, v%d" % (r, r, r + 1))
            A("v_mov_b32 v%d, v%d" % (r + 1, r))
            A(2, "v_permlane32_swap_b32 v%d, v%d" % (r, r + 1), 1)
            A("v_add_f32 v%d, v%d, v%d" % (r, r, r + 1))
            A("v_mov_b32 v%d, v%d" % (r + 1, r))
            A(2, "v_permlane16_swap_b32 v%d, v%d" % (r, r + 1), 1)
            A("v_mul_f32 v%d, %s, v%d" % (m, f32hex(1.0 / 512), r))
            A("v_mul_f32 v%d, %s, v%d" % (r + 1, f32hex(1.0 / 512), r + 1))
            A("v_fma_f32 v%d, -v%d, v%d, v%d" % (r + 1, m, m, r + 1))
            A("v_max_f32 v%d, 0, v%d" % (r + 1, r + 1))
            A("v_add_f32 v%d, %s, v%d" % (m + 3, f32hex(1e-5), r + 1))
            A("v_rsq_f32 v%d, v%d" % (m + 1, m + 3), 1)
            A("v_mul_f32 v%d, %s, v%d" % (m + 2, f32hex(-LOG2E), m + 1))
        ops.append(lambda: g.wait_vm("csp"))
        for h in (0, 2):
            A("v_pk_add_f32 %s, %s, %s" % (vr(CSA + h, 2), vr(CSA + h, 2), vr(CSA + 4 + h, 2)))
            A("v_pk_add_f32 %s, %s, %s" % (vr(CSA + 8 + h, 2), vr(CSA + 8 + h, 2), vr(CSA + 12 + h, 2)))
            A("v_pk_add_f32 %s, %s, %s" % (vr(CSA + h, 2), vr(CSA + h, 2), vr(CSA + 8 + h, 2)))
        A("v_add_u32 v%d, 0x%x, v%d" % (ONES, CSB, ONES))
        ops.append(lambda: g.lg("ds_write_b128 v%d, %s" % (ONES, vr(CSA)), "csw"))
        return ops

    def issue_reads(j, it):
        ks, ct = it
        w = WF + (j % NR) * 4
        s = ks // 2
        slot = s % nslots
        b, so = slot >> 1, (slot & 1) * SLOTB
        out = []
        if qkv:
            if ct == 0:
                for tt in range(2):
                    out.append(lambda tt=tt: g.lg("ds_read_b128 %s, v%d offset:%d" % (xfr(ks, tt), XA + 2 * b + (ks & 1), so + tt * 2048), ("it", j)))
            a = TA + NA * b + ai(ct)
            off = so + (ks % 2) * 32 * 192 + ct * 32
            off2 = off + 4 * 192
        else:
            mat, p = ct // 7, ct % 7
            a = TA + NA * b + ai(p)
            off = so + mat * 14336 + (ks % 2) * 32 * 224 + (p * 32 if p < NW0 else 0)
            off2 = off + 8 * 224
        out.append(lambda: g.lg("ds_read_b64_tr_b16 %s, v%d offset:%d" % (vr(w, 2), a, off), ("it", j)))
        out.append(lambda: g.lg("ds_read_b64_tr_b16 %s, v%d offset:%d" % (vr(w + 2, 2), a, off2), ("it", j)))
        return out

    def do_mfma(i, it):
        ks, ct = it
        w = WF + (i % NR) * 4
        out = []
        def mf(d, a, b):
            out.append(lambda: g.e("v_mfma_f32_16x16x32_bf16 %s, %s, %s, %s" % (d, a, b, "0" if ks == 0 else d)))
        for tt in range(2):
            mf(acc(tt, ct), vr(w), xfr(ks, tt))
        mat, p = ct // NPM, ct % NPM
        if p in CSP and not pre:
            mf(vr(CSA + (mat * 2 + CSP.index(p)) * 4), vr(w), vr(ONES))
        if ct in (1, 2) and not pre:
            tt = ct - 1
            x = xfr(ks, tt)
            mf(vr(SUM + tt * 4), vr(ONES), x)
            mf(vr(GRAM + tt * 4), x, x)
        if qkv and ct == 4:
            def f():
                L = g.newlabel("xs")
                g.e("s_cmp_eq_u32 s21, %d" % ks)
                g.e("s_cbranch_scc1 %s" % L)
                g.label(L + "_r")
                ool.append((L, ks))
            out.append(f)
        return out

    pipeline(g, items, D, lambda it: it[0] // 2, on_stage_start, issue_reads, do_mfma)
    if qkv:
        g.vm("buffer_store_dwordx4 %s, v8, s[%d:%d], 0 offen%s" % (vr(XS), SX, SX + 3, scm), "out")
        g.e("v_add_u32 v8, 0x4000, v8")
        g.vm("buffer_store_dwordx4 %s, v8, s[%d:%d], 0 offen%s" % (vr(XS + 4), SX, SX + 3, scm), "out")
    g.nop(16)
    g.ts(7)
    T = WF
    g.e("v_lshlrev_b32 v%d, 4, v4" % T)
    g.e("v_add_u32 v%d, 0x%x, v%d" % (T + 1, CSB, T))
    if not pre:
        for k in range(2):
            g.e("s_lshl_b32 s27, s%d, 6" % (ST + CSP[k]))
            g.e("v_add_u32 v%d, s27, v%d" % (T + 2 + k, T + 1))
        g.e("s_mov_b32 s28, 0x00010001")
        g.e("s_mov_b32 s29, 0x00010001")
        g.e("s_mov_b64 exec, s[28:29]")
        for mat in range(NT // NPM):
            for k in range(2):
                g.lg("ds_write_b128 v%d, %s offset:%d" % (T + 2 + k, vr(CSA + (mat * 2 + k) * 4), mat * NPM * 64), "csw")
        g.e("s_mov_b64 exec, -1")
        for r in range(4):
            m = 0
            for gg in range(4):
                m |= 1 << (20 * gg + r)
            g.e("s_mov_b32 s%d, 0x%x" % (30 + 2 * r, m & 0xffffffff))
            g.e("s_mov_b32 s%d, 0x%x" % (31 + 2 * r, m >> 32))
        for tt in range(2):
            d = T + 4
            g.e("v_mov_b32 v%d, 0" % d)
            for r in range(4):
                g.e("v_cndmask_b32_e64 v%d, v%d, v%d, s[%d:%d]" % (d, d, GRAM + tt * 4 + r, 30 + 2 * r, 31 + 2 * r))
            g.e("v_mov_b32 v%d, v%d" % (d + 1, d))
            g.nop(2)
            g.e("v_permlane16_swap_b32 v%d, v%d" % (d, d + 1))
            g.nop(1)
            g.e("v_add_f32 v%d, v%d, v%d" % (d, d, d + 1))
            g.e("v_mov_b32 v%d, v%d" % (d + 1, d))
            g.nop(2)
            g.e("v_permlane32_swap_b32 v%d, v%d" % (d, d + 1))
            g.nop(1)
            g.e("v_add_f32 v%d, v%d, v%d" % (d, d, d + 1))
            m = SUM + tt * 4
            g.e("v_mul_f32 v%d, %s, v%d" % (m, f32hex(1.0 / 512), m))
            g.e("v_mul_f32 v%d, %s, v%d" % (d, f32hex(1.0 / 512), d))
            g.e("v_fma_f32 v%d, -v%d, v%d, v%d" % (d, m, m, d))
            g.e("v_max_f32 v%d, 0, v%d" % (d, d))
            g.e("v_add_f32 v%d, %s, v%d" % (m + 3, f32hex(1e-5), d))
            g.e("v_rsq_f32 v%d, v%d" % (m + 1, m + 3))
            g.nop(1)
            g.e("v_mul_f32 v%d, %s, v%d" % (m + 2, f32hex(QSCALE if qkv else -LOG2E), m + 1))
        g.wait_lg("csw")
        g.e("s_barrier")
    CS = T + 8
    AD = T + 6
    def pk(op, d, a, b, c=None, sel=None, neg=False):
        ops = [a, b] + ([c] if c is not None else [])
        sel = sel or {}
        lo = [sel.get(i, (0, 1))[0] for i in range(len(ops))]
        hi = [sel.get(i, (0, 1))[1] for i in range(len(ops))]
        t = "%s %s, %s" % (op, vr(d, 2), ", ".join(vr(o, 2) for o in ops))
        t += " op_sel:[%s] op_sel_hi:[%s]" % (",".join(map(str, lo)), ",".join(map(str, hi)))
        if neg:
            z = ["1"] + ["0"] * (len(ops) - 1)
            t += " neg_lo:[%s] neg_hi:[%s]" % (",".join(z), ",".join(z))
        g.e(t)

    def cs_read(p):
        bb = CS + (p & 1) * 8
        g.e("s_lshl_b32 s27, s%d, 6" % (ST + p))
        g.e("v_add_u32 v%d, s27, v%d" % (AD + (p & 1), T + 1))
        g.lg("ds_read_b128 %s, v%d" % (vr(bb), AD + (p & 1)), ("cs", p))
        if not qkv:
            g.lg("ds_read_b128 %s, v%d offset:448" % (vr(bb + 4), AD + (p & 1)), ("cs", p))
    cs_read(0)
    if qkv:
        for p in range(NPM):
            if p + 1 < NPM:
                cs_read(p + 1)
            g.wait_lg(("cs", p))
            bb = CS + (p & 1) * 8
            g.e("s_mul_i32 s26, s21, 6")
            g.e("s_add_u32 s26, s26, s%d" % (ST + p))
            g.e("s_cmp_lt_u32 s26, 32")
            g.e("s_cselect_b32 s28, -1, 0")
            g.e("s_mov_b32 s29, s28")
            g.e("s_lshl_b32 s26, s26, 16")
            for tt in range(2):
                a = ACCV + (tt * NT + p) * 4
                m = SUM + tt * 4
                rs = T + 4
                g.e("v_cndmask_b32_e64 v%d, v%d, v%d, s[28:29]" % (rs, m + 1, m + 2))
                pk("v_pk_fma_f32", a, m, bb, a, sel={0: (0, 0)}, neg=True)
                pk("v_pk_fma_f32", a + 2, m, bb + 2, a + 2, sel={0: (0, 0)}, neg=True)
                pk("v_pk_mul_f32", a, a, rs, sel={1: (0, 0)})
                pk("v_pk_mul_f32", a + 2, a + 2, rs, sel={1: (0, 0)})
                d = (ACCV + p * 4 + tt * 2) if x4 else a
                g.e("v_cvt_pk_bf16_f32 v%d, v%d, v%d" % (d, a, a + 1))
                g.e("v_cvt_pk_bf16_f32 v%d, v%d, v%d" % (d + 1, a + 2, a + 3))
                if not x4:
                    g.vm("buffer_store_dwordx2 %s, v7, s[%d:%d], s26 offen offset:%d%s" % (vr(a, 2), SO, SO + 3, tt * 512, scm), "out")
            if x4:
                d = ACCV + p * 4
                g.nop(2)
                g.e("v_permlane16_swap_b32 v%d, v%d" % (d, d + 2))
                g.e("v_permlane16_swap_b32 v%d, v%d" % (d + 1, d + 3))
                g.nop(1)
                g.vm("buffer_store_dwordx4 %s, v7, s[%d:%d], s26 offen%s" % (vr(d), SO, SO + 3, scm), "out")
    else:
        g.e("v_add_u32 v8, 0x%x, v7" % 57344)
        E = CS + 16
        for p in range(NPM):
            if p + 1 < NPM:
                cs_read(p + 1)
            g.wait_lg(("cs", p))
            bb = CS + (p & 1) * 8
            g.e("s_lshl_b32 s26, s%d, 9" % (ST + p))
            GV = [ACCV + (tt * NT + p) * 4 for tt in range(2)]
            UV = [ACCV + (tt * NT + 7 + p) * 4 for tt in range(2)]
            M = [SUM + tt * 4 for tt in range(2)]
            EV = [E + tt * 4 for tt in range(2)]
            for tt in range(2):
                for h in (0, 2):
                    pk("v_pk_fma_f32", GV[tt] + h, M[tt], bb + h, GV[tt] + h, sel={0: (0, 0)}, neg=True)
                for h in (0, 2):
                    pk("v_pk_mul_f32", EV[tt] + h, GV[tt] + h, M[tt] + 2, sel={1: (0, 0)})
            for tt in range(2):
                for k in range(4):
                    g.e("v_exp_f32 v%d, v%d" % (EV[tt] + k, EV[tt] + k))
            for tt in range(2):
                for h in (0, 2):
                    pk("v_pk_fma_f32", UV[tt] + h, M[tt], bb + 4 + h, UV[tt] + h, sel={0: (0, 0)}, neg=True)
                for h in (0, 2):
                    pk("v_pk_mul_f32", UV[tt] + h, UV[tt] + h, GV[tt] + h)
            for tt in range(2):
                for h in (0, 2):
                    pk("v_pk_fma_f32", EV[tt] + h, EV[tt] + h, M[tt] + 2, M[tt] + 2, sel={1: (1, 1), 2: (1, 1)})
            for tt in range(2):
                for k in range(4):
                    g.e("v_rcp_f32 v%d, v%d" % (EV[tt] + k, EV[tt] + k))
            g.nop(1)
            for tt in range(2):
                for h in (0, 2):
                    pk("v_pk_mul_f32", UV[tt] + h, UV[tt] + h, EV[tt] + h)
                d = (UV[0] + 2 * tt) if x4 else UV[tt]
                g.e("v_cvt_pk_bf16_f32 v%d, v%d, v%d" % (d, UV[tt], UV[tt] + 1))
                g.e("v_cvt_pk_bf16_f32 v%d, v%d, v%d" % (d + 1, UV[tt] + 2, UV[tt] + 3))
                if not x4:
                    g.vm("buffer_store_dwordx2 %s, v%d, s[%d:%d], s26 offen%s" % (vr(UV[tt], 2), 7 + tt, SO, SO + 3, scm), "out")
            if x4:
                d = UV[0]
                g.nop(2)
                g.e("v_permlane16_swap_b32 v%d, v%d" % (d, d + 2))
                g.e("v_permlane16_swap_b32 v%d, v%d" % (d + 1, d + 3))
                g.nop(1)
                g.vm("buffer_store_dwordx4 %s, v7, s[%d:%d], s26 offen%s" % (vr(d), SO, SO + 3, scm), "out")
    g.ts(8)
    g.ts_dump(0 if qkv else 3)
    g.end(name)
    for L, ks in ool:
        g.label(L)
        for k in range(8):
            g.e("v_mov_b32 v%d, v%d" % (XS + k, XF + (ks & 1) * 8 + k))
        g.e("s_branch %s_r" % L)
    return dict(name=name, grid=256, lds=lds, vgpr=max(nextv, 188) if qkv else nextv, agpr=0 if qkv else 128)


def attention(g, name):
    g.begin(name, 512)
    SQ, SO = 4, 8
    def srds():
        g.srd(SQ, P_WS, WS_QKV, 6 * MB)
        g.srd(SO, P_WS, WS_ATTN, 2 * MB)
    if not KLATE:
        srds()
    VB = 0
    OB = 12288
    lds = OB + 1024
    g.e("s_and_b32 s20, s2, 31")
    g.e("s_lshr_b32 s21, s2, 5")
    g.e("s_lshl_b32 s22, s21, 7")
    g.e("s_lshl_b32 s23, s3, 5")
    g.e("s_add_u32 s23, s22, s23")
    g.e("s_lshr_b32 s24, s23, 5")
    g.e("s_sub_i32 s24, 8, s24")
    g.e("s_max_i32 s24, s24, 0")
    g.e("v_and_b32 v3, 31, v1")
    g.e("v_lshrrev_b32 v4, 5, v1")
    g.e("s_lshl_b32 s25, s20, 16")
    g.e("v_add_u32 v5, s23, v3")
    g.e("v_lshlrev_b32 v5, 5, v5")
    g.e("v_lshl_add_u32 v5, v4, 4, v5")
    g.e("v_add_u32 v5, s25, v5")
    QF = 8
    KF = 12
    if KLATE:
        g.kwait()
        srds()
    g.vm("buffer_load_dwordx4 %s, v5, s[%d:%d], 0 offen" % (vr(QF), SQ, SQ + 3), "q")
    g.e("v_add_u32 v6, 0x%x, v5" % (2 * MB - 8192))
    for t in range(9):
        if t == 4 or t == 8:
            g.e("v_add_u32 v6, 0x1000, v6")
        g.vm("buffer_load_dwordx4 %s, v6, s[%d:%d], 0 offen offset:%d" % (vr(KF + 4 * t), SQ, SQ + 3, (t % 4) * 1024), ("k", t))
    g.e("s_lshl_b32 s26, s22, 5")
    g.e("s_add_u32 s26, s26, s25")
    g.e("s_add_u32 s26, s26, 0x%x" % (4 * MB - 8192))
    g.e("s_mul_i32 s27, s3, 3072")
    g.e("s_add_u32 s26, s26, s27")
    g.e("v_lshlrev_b32 v7, 4, v1")
    g.e("v_add_u32 v7, s26, v7")
    for q in range(3):
        g.e("s_add_u32 m0, s27, 0x%x" % (VB + q * 1024))
        if q:
            g.e("v_add_u32 v7, 0x400, v7")
        else:
            g.e("s_nop 0")
        g.vm("buffer_load_dwordx4 v7, s[%d:%d], 0 offen lds" % (SQ, SQ + 3), "v")
    NPF = 0
    PV = 176
    PV_T = PV + 4
    PD = PV + 8
    NTASK = 2 if PK2 else 1
    PS = (28, 12)
    def pack_stores():
        L = g.newlabel("pk")
        g.e("s_waitcnt vmcnt(0)")
        g.vmq = []
        if PK2:
            g.e("s_cmp_ge_u32 s2, 256")
            g.e("s_cbranch_scc1 %s" % L)
        g.e("s_cmp_ge_u32 s28, 512")
        g.e("s_cbranch_scc1 %s_a" % L)
        g.e("buffer_store_dwordx4 %s, v%d, s[48:51], s52 offen%s" % (vr(PD + 24), PV + 2, PK_MOD))
        g.label(L + "_a")
        for j in range(NTASK):
            ps = PS[j]
            if j == NTASK - 1:
                g.e("s_cmp_ge_u32 s%d, 1792" % ps)
                g.e("s_cbranch_scc1 %s" % L)
            g.e("buffer_store_dwordx4 %s, v%d, s[48:51], s%d offen%s" % (vr(PD + 12 * j), PV + 3, ps + 3, PK_MOD))
            g.e("buffer_store_dwordx4 %s, v%d, s[48:51], s%d offen%s" % (vr(PD + 12 * j + 4), PV, ps + 1, PK_MOD))
            g.e("buffer_store_dwordx4 %s, v%d, s[48:51], s%d offen%s" % (vr(PD + 12 * j + 8), PV, ps + 2, PK_MOD))
        g.label(L)
    def do_pf():
        if PACK:
            g.wait_vm("v")
            LS = g.newlabel("pks")
            if PK2:
                g.e("s_cmp_ge_u32 s2, 256")
                g.e("s_cbranch_scc1 %s" % LS)
        g.srd(32, P_WO, 0, 512 * 1024)
        g.srd(36, P_W1, 0, 512 * 3584)
        g.srd(40, P_W3, 0, 512 * 3584)
        g.srd(44, P_W2, 0, 1792 * 1024)
        g.e("v_lshlrev_b32 v%d, 4, v1" % PV)
        g.e("s_lshl_b32 s28, s2, 2")
        g.e("s_add_u32 s28, s28, s3")
        if PACK:
            t1, t2, t3 = PV + 1, PV + 2, PV + 3
            g.e("s_lshl_b32 s54, s28, 10")
            g.e("buffer_load_dwordx4 %s, v%d, s[32:35], s54 offen" % (vr(PD + 24), PV))
            for j in range(NTASK):
                ps = PS[j]
                if j:
                    g.e("s_add_u32 s%d, s28, 1024" % ps)
                g.e("s_lshl_b32 s54, s%d, 10" % ps)
                g.e("buffer_load_dwordx4 %s, v%d, s[44:47], s54 offen" % (vr(PD + 12 * j), PV))
                g.e("s_mul_i32 s16, s%d, 9363" % ps)
                g.e("s_lshr_b32 s16, s16, 20")
                g.e("s_mul_i32 s17, s16, 112")
                g.e("s_sub_u32 s17, s%d, s17" % ps)
                g.e("s_mul_i32 s18, s17, 4682")
                g.e("s_lshr_b32 s18, s18, 16")
                g.e("s_mul_i32 s19, s18, 14")
                g.e("s_sub_u32 s19, s17, s19")
                g.e("s_lshl_b32 s17, s19, 6")
                g.e("v_add_u32 v%d, s17, v1" % t1)
                g.e("v_mul_u32_u24 v%d, 4682, v%d" % (t2, t1))
                g.e("v_lshrrev_b32 v%d, 16, v%d" % (t2, t2))
                g.e("v_mul_u32_u24 v%d, 14, v%d" % (t3, t2))
                g.e("v_sub_u32 v%d, v%d, v%d" % (t1, t1, t3))
                g.e("v_lshlrev_b32 v%d, 4, v%d" % (t1, t1))
                g.e("v_and_b32 v%d, 0x33, v%d" % (t3, t2))
                g.e("v_bfe_u32 v%d, v%d, 2, 1" % (PV_T, t2))
                g.e("v_lshl_or_b32 v%d, v%d, 3, v%d" % (t3, PV_T, t3))
                g.e("v_bfe_u32 v%d, v%d, 3, 1" % (PV_T, t2))
                g.e("v_lshl_or_b32 v%d, v%d, 2, v%d" % (t3, PV_T, t3))
                g.e("v_mul_u32_u24 v%d, 3584, v%d" % (t3, t3))
                g.e("v_add_u32 v%d, v%d, v%d" % (PV_T + 1 + j, t1, t3))
                g.e("s_mul_i32 s17, s18, %d" % (64 * 3584))
                g.e("s_mul_i32 s54, s16, 224")
                g.e("s_add_u32 s17, s17, s54")
                g.e("buffer_load_dwordx4 %s, v%d, s[36:39], s17 offen" % (vr(PD + 12 * j + 4), PV_T + 1 + j))
                g.e("buffer_load_dwordx4 %s, v%d, s[40:43], s17 offen" % (vr(PD + 12 * j + 8), PV_T + 1 + j))
                g.e("s_lshl_b32 s16, s16, 3")
                g.e("s_add_u32 s16, s16, s18")
                g.e("s_mul_i32 s16, s16, 28672")
                g.e("s_lshl_b32 s19, s19, 10")
                g.e("s_add_u32 s%d, s16, s19" % (ps + 1))
                g.e("s_add_u32 s%d, s%d, 14336" % (ps + 2, ps + 1))
                g.e("s_lshl_b32 s16, s%d, 7" % ps)
                g.e("s_add_u32 s%d, s16, 0x%x" % (ps + 3, WS_P2 - WS_P13))
                if j == 0:
                    g.e("s_add_u32 s52, s16, 0x%x" % (WS_PO - WS_P13))
            g.srd(48, P_WS, WS_P13, 7 * MB)
            g.e("s_lshr_b32 s16, s28, 1")
            g.e("s_and_b32 s16, s16, 4")
            g.e("s_and_b32 s54, s28, 2")
            g.e("s_or_b32 s16, s16, s54")
            g.e("v_and_b32 v%d, 7, v1" % t2)
            g.e("v_xor_b32 v%d, s16, v%d" % (t2, t2))
            g.e("v_lshlrev_b32 v%d, 4, v%d" % (t2, t2))
            g.e("v_lshrrev_b32 v%d, 3, v1" % PV_T)
            g.e("v_mul_u32_u24 v%d, 0x%x, v%d" % (t3, 1792 * 128, PV_T))
            g.e("v_add_u32 v%d, v%d, v%d" % (t3, t3, t2))
            g.e("v_lshl_add_u32 v%d, v%d, 16, v%d" % (t2, PV_T, t2))
            g.label(LS)
            return
        g.e("s_lshl_b32 s28, s28, 10")
        for sr in (32, 36, 40, 44):
            g.vm("buffer_load_dwordx4 %s, v%d, s[%d:%d], s28 offen" % (vr(PV + 4), PV, sr, sr + 3), "pf")
        if TLB2:
            g.srd(32, P_WS, 8 * MB, 10 * MB)
            g.srd(36, P_OUT, 0, 2 * MB)
            g.e("v_mul_u32_u24 v%d, 0x28000, v1" % (PV + 1))
            g.vm("buffer_load_dword v%d, v%d, s[32:35], 0 offen" % (PV + 4, PV + 1), "pf")
            g.e("v_lshlrev_b32 v%d, 15, v1" % (PV + 2))
            g.vm("buffer_load_dword v%d, v%d, s[36:39], 0 offen" % (PV + 5, PV + 2), "pf")
    if PFM == 'A':
        do_pf()
        NPF = 4
    M0_ = 48
    M8_ = 64
    NM = 80
    S0 = 96
    PF = 128
    VF = 144
    OA = 160
    for k in range(4):
        g.e("v_mov_b32 v%d, 0x3f803f80" % (S0 + k))
    g.e("v_lshlrev_b32 v2, 4, v1")
    g.lg("ds_write_b128 v2, %s offset:%d" % (vr(S0), OB), "ones")
    g.e("v_lshlrev_b32 v2, 2, v4")
    g.e("v_sub_u32 v2, v3, v2")
    NEG = f32hex(-1e30)
    g.e("v_mov_b32 v%d, %s" % (S0 + 4, NEG))
    for r in range(16):
        jc = (r & 3) + 8 * (r >> 2)
        g.e("v_cmp_gt_i32 vcc, %d, v2" % jc)
        g.nop(2)
        g.e("v_cndmask_b32 v%d, v%d, 0, vcc" % (M0_ + r, S0 + 4))
        g.e("v_cndmask_b32 v%d, 0, v%d, vcc" % (M8_ + r, S0 + 4))
    g.e("v_bfe_u32 v2, v1, 2, 2")
    g.e("v_lshl_add_u32 v2, v4, 2, v2")
    g.e("v_lshlrev_b32 v2, 5, v2")
    g.e("v_and_b32 v5, 3, v1")
    g.e("v_lshl_add_u32 v2, v5, 3, v2")
    g.e("s_lshl_b32 s27, s3, 10")
    g.e("s_add_u32 s27, s27, 0x%x" % VB)
    g.e("v_add_u32 v2, s27, v2")
    g.e("v_lshlrev_b32 v5, 7, v4")
    g.e("v_sub_u32 v5, 0x%x, v5" % (OB + 128))
    g.e("v_bfe_u32 v6, v1, 4, 1")
    g.e("v_cmp_eq_u32 vcc, 1, v6")
    g.nop(2)
    g.e("v_cndmask_b32 v2, v2, v5, vcc")
    g.e("v_mov_b32 v5, 0x400")
    g.e("v_cndmask_b32 v5, v5, 0, vcc")
    g.e("v_mul_lo_u32 v6, v5, s24")
    g.e("v_add_u32 v2, v2, v6")
    VA, VI = 2, 5
    MX = 6
    g.e("v_mov_b32 v%d, %s" % (MX, NEG))
    g.ts(1)
    g.wait_vm("q")
    g.ts(2)
    def smfma(t, dst, c):
        g.e("v_mfma_f32_32x32x16_bf16 %s, %s, %s, %s" % (vr(dst, 16), vr(KF + 4 * t), vr(QF), c))
    for t in range(9):
        L = g.newlabel("p1")
        if t < 8:
            g.e("s_cmp_gt_u32 s24, %d" % t)
            g.e("s_cbranch_scc1 %s" % L)
        g.e("s_waitcnt vmcnt(%d)" % (NPF + 3 + 8 - t))
        c = vr(M0_, 16) if t == 0 else (vr(M8_, 16) if t == 8 else "0")
        dst = S0 + 16 * (t & 1)
        smfma(t, dst, c)
        g.nop(18)
        for r in range(0, 16, 2):
            g.e("v_max3_f32 v%d, v%d, v%d, v%d" % (MX, MX, dst + r, dst + r + 1))
        g.label(L)
    g.vmq = [x for x in g.vmq if x in ("v", "pf")]
    g.ts(3)
    if PFM == 'C':
        do_pf()
    g.e("v_mov_b32 v%d, v%d" % (MX + 1, MX))
    g.nop(2)
    g.e("v_permlane32_swap_b32 v%d, v%d" % (MX, MX + 1))
    g.nop(1)
    g.e("v_max_f32 v%d, v%d, v%d" % (MX, MX, MX + 1))
    for r in range(16):
        g.e("v_sub_f32 v%d, 0, v%d" % (NM + r, MX))
    for r in range(16):
        g.e("v_sub_f32 v%d, v%d, v%d" % (M0_ + r, M0_ + r, MX))
        g.e("v_sub_f32 v%d, v%d, v%d" % (M8_ + r, M8_ + r, MX))
    for r in range(16):
        g.e("v_mov_b32 v%d, 0" % (OA + r))
    g.wait_vm("v")
    g.wait_lg("ones")
    g.e("s_barrier")
    g.ts(4)
    if PFM == 'D':
        do_pf()
    for t in range(9):
        if PACK and t == PK_AT:
            pack_stores()
        L = g.newlabel("p2")
        if t < 8:
            g.e("s_cmp_gt_u32 s24, %d" % t)
            g.e("s_cbranch_scc1 %s" % L)
        vf = VF + 8 * (t & 1)
        for k in range(4):
            g.lg("ds_read_b64_tr_b16 %s, v%d offset:%d" % (vr(vf + 2 * k, 2), VA, 256 * k), ("vf", t))
        g.e("v_add_u32 v%d, v%d, v%d" % (VA, VA, VI))
        c = vr(M0_, 16) if t == 0 else (vr(M8_, 16) if t == 8 else vr(NM, 16))
        dst = S0 + 16 * (t & 1)
        smfma(t, dst, c)
        g.nop(18)
        for r in range(16):
            g.e("v_exp_f32 v%d, v%d" % (dst + r, dst + r))
        pf = PF + 8 * (t & 1)
        g.nop(1)
        for r in range(8):
            g.e("v_cvt_pk_bf16_f32 v%d, v%d, v%d" % (pf + r, dst + 2 * r, dst + 2 * r + 1))
        g.wait_lg(("vf", t))
        g.nop(2)
        g.e("v_mfma_f32_32x32x16_bf16 %s, %s, %s, %s" % (vr(OA, 16), vr(vf), vr(pf), vr(OA, 16)))
        g.e("v_mfma_f32_32x32x16_bf16 %s, %s, %s, %s" % (vr(OA, 16), vr(vf + 4), vr(pf + 4), vr(OA, 16)))
        g.label(L)
    g.nop(20)
    if PACK and PK_AT == 9:
        pack_stores()
    g.ts(5)
    g.e("v_rcp_f32 v%d, v%d" % (MX, OA + 8))
    g.nop(1)
    for r in range(8):
        g.e("v_mul_f32 v%d, v%d, v%d" % (OA + r, OA + r, MX))
    for r in range(4):
        g.e("v_cvt_pk_bf16_f32 v%d, v%d, v%d" % (PF + r, OA + 2 * r, OA + 2 * r + 1))
    g.e("v_bfe_u32 v7, v3, 4, 1")
    g.e("v_lshlrev_b32 v7, 14, v7")
    g.e("v_and_b32 v6, 15, v3")
    g.e("v_lshl_add_u32 v7, v6, 4, v7")
    scm = ' sc1' if '2' in SC else ''
    g.e("v_lshl_add_u32 v7, v4, %d, v7" % (8 if '2' in X4 else 3))
    g.e("s_lshl_b32 s26, s20, 9")
    g.e("s_lshl_b32 s27, s23, 10")
    g.e("s_add_u32 s26, s26, s27")
    if '2' in X4:
        g.e("v_permlane32_swap_b32 v%d, v%d" % (PF, PF + 2))
        g.e("v_permlane32_swap_b32 v%d, v%d" % (PF + 1, PF + 3))
        g.nop(1)
        g.vm("buffer_store_dwordx4 %s, v7, s[%d:%d], s26 offen%s" % (vr(PF), SO, SO + 3, scm), "o")
    else:
        g.vm("buffer_store_dwordx2 %s, v7, s[%d:%d], s26 offen%s" % (vr(PF, 2), SO, SO + 3, scm), "o")
        g.vm("buffer_store_dwordx2 %s, v7, s[%d:%d], s26 offen offset:256%s" % (vr(PF + 2, 2), SO, SO + 3, scm), "o")
    g.ts(6)
    g.ts(7)
    g.ts(8)
    g.ts_dump(1)
    g.end(name)
    return dict(name=name, grid=512, lds=lds, vgpr=212, agpr=0)


def main():
    g = G()
    ks = []
    ks.append(ln_gemm(g, "k1_qkv_kernel", "qkv"))
    ks.append(attention(g, "k2_attn_kernel"))
    ks.append(gemm_res(g, "k3_wo_kernel", P_WS, WS_ATTN, 1024, 512, P_WO, P_WS, WS_XF, P_WS, WS_H, 8, True))
    ks.append(ln_gemm(g, "k4_ffn_kernel", "ffn"))
    ks.append(gemm_res(g, "k5_w2_kernel", P_WS, WS_HMID, 3584, 1792, P_W2, P_WS, WS_H, P_OUT, 0, 8, False))
    out = []
    for k in ks:
        out.append("; @launch kernel=%s grid=(%d,1,1) block=(256,1,1) lds=%d" % (k["name"], k["grid"], k["lds"]))
    out.append('.amdgcn_target "amdgcn-amd-amdhsa--gfx950"')
    out.append(".text")
    out += g.lines
    out.append("L_code_end:")
    out.append('.section .rodata,"a"')
    for k in ks:
        accoff = (k["vgpr"] + 3) // 4 * 4
        assert accoff <= 256
        tot = accoff + k["agpr"]
        assert tot <= 512
        out.append(".p2align 6")
        out.append(".amdhsa_kernel %s" % k["name"])
        out.append("  .amdhsa_next_free_vgpr %d" % tot)
        out.append("  .amdhsa_next_free_sgpr 102")
        out.append("  .amdhsa_accum_offset %d" % accoff)
        out.append("  .amdhsa_group_segment_fixed_size 0")
        out.append("  .amdhsa_kernarg_size 80")
        out.append("  .amdhsa_user_sgpr_count 2")
        out.append("  .amdhsa_user_sgpr_kernarg_segment_ptr 1")
        out.append("  .amdhsa_system_sgpr_workgroup_id_x 1")
        out.append(".end_amdhsa_kernel")
    dst = sys.argv[1] if len(sys.argv) > 1 else "sequential_preLN__sliding_block__glu_gated_swiglu__prompt.s"
    open(dst, "w").write("\n".join(out) + "\n")
    for k in ks:
        print(k)


if __name__ == "__main__":
    main()
```

```python
import re
RX = re.compile(r'\b([va])(\d+)\b|\b([va])\[(\d+):(\d+)\]')
SX = re.compile(r'\bs(\d+)\b|\bs\[(\d+):(\d+)\]|\b(vcc)\b|\b(m0)\b')
TRANS = ("v_exp_f32", "v_rcp_f32", "v_rsq_f32", "v_log_f32", "v_sqrt_f32")

def regs(op):
    out = set()
    for m in RX.finditer(op):
        if m.group(1):
            out.add((m.group(1), int(m.group(2))))
        else:
            for i in range(int(m.group(4)), int(m.group(5)) + 1):
                out.add((m.group(3), i))
    return out

def sregs(op):
    out = set()
    for m in SX.finditer(op):
        if m.group(1):
            out.add(int(m.group(1)))
        elif m.group(2):
            out.update(range(int(m.group(2)), int(m.group(3)) + 1))
        elif m.group(4):
            out.add("vcc")
        else:
            out.add("m0")
    return out

def split_ops(rest):
    ops, cur, depth = [], "", 0
    for ch in rest:
        if ch == "[":
            depth += 1
        if ch == "]":
            depth -= 1
        if ch == "," and depth == 0:
            ops.append(cur.strip()); cur = ""
        else:
            cur += ch
    ops.append(cur.strip())
    return ops

def fix(lines):
    out = []
    t = 0
    mD = {}
    mC = {}
    vW = {}
    tW = {}
    pW = {}
    sW = {}
    stD = {}
    dW = {}
    m0t = -100
    nins = 0
    def pend_all():
        need = 0
        for r, (tt, p, _, _) in mD.items():
            need = max(need, tt + (8 if p == 4 else 12) + 1 - t)
        for r, (tt, p) in mC.items():
            need = max(need, tt + p - t)
        for d in (vW, sW):
            for r, tt in d.items():
                need = max(need, tt + (4 if d is vW else 6) - t)
        need = max(need, m0t + 2 - t)
        return need
    def nop(n):
        nonlocal t, nins
        while n > 0:
            k = min(n, 16)
            out.append("    s_nop %d" % (k - 1))
            t += k; n -= k; nins += 1
    for ln in lines:
        s = ln.strip()
        if not s or s.startswith(";") or s.startswith("."):
            out.append(ln); continue
        if s.endswith(":"):
            nop(pend_all())
            out.append(ln); continue
        parts = s.split(None, 1)
        op = parts[0]
        rest = parts[1] if len(parts) > 1 else ""
        if op == "s_nop":
            t += int(rest) + 1
            out.append(ln); continue
        ops = split_ops(rest)
        need = 0
        def req(tt, n):
            nonlocal need
            need = max(need, tt + n + 1 - t)
        if op.startswith("s_cbranch") or op in ("s_branch", "s_setpc_b64", "s_endpgm"):
            need = pend_all() if op != "s_endpgm" else 0
        elif op.startswith("v_mfma"):
            p = 4 if "16x16x32" in op else 8
            D, A, B, C = regs(ops[0]), regs(ops[1]), regs(ops[2]), regs(ops[3])
            for r in A | B:
                if r in mD: req(mD[r][0], 8 if mD[r][1] == 4 else 12)
            for r in C:
                if r in mD and not (mD[r][2] == frozenset(C) and mD[r][3] == op):
                    req(mD[r][0], 8 if mD[r][1] == 4 else 12)
            for r in D:
                if r in mD and mD[r][1] != p: req(mD[r][0], 12)
            for r in A | B | C:
                if r in vW: req(vW[r], 2)
                if r in dW: req(dW[r], 3)
        elif op.startswith("v_") or op.startswith("ds_") or op.startswith("buffer_"):
            R = regs(rest)
            for r in R:
                if r in mD: req(mD[r][0], 8 if mD[r][1] == 4 else 12)
            if op.startswith("v_dot2"):
                for r in regs(ops[1]) | regs(ops[2]):
                    if r in dW: req(dW[r], 3)
            else:
                for r in R:
                    if r in dW: req(dW[r], 3)
            if op.startswith("v_"):
                W = regs(ops[0]) | (regs(ops[1]) if "permlane" in op else set())
                for r in R:
                    if r in tW: req(tW[r], 1)
                    if r in pW: req(pW[r], 1)
                    if "permlane" in op and r in vW: req(vW[r], 2)
                for r in W:
                    if r in mC: req(mC[r][0], mC[r][1] - 1)
                    if r in stD: req(stD[r], 2)
                srcs = ops[1:] if not op.startswith("v_cndmask_b32") or len(ops) > 3 else ops[1:] + ["vcc"]
                for r in sregs(",".join(srcs)):
                    if r in sW: req(sW[r], 2 if not op.startswith("v_readlane") else 4)
            else:
                for r in R:
                    if r in tW: req(tW[r], 1)
                    if r in pW: req(pW[r], 1)
                for r in sregs(rest):
                    if r in sW: req(sW[r], 5)
                if " lds" in rest: req(m0t, 1)
                if "load" in op or "read" in op:
                    for r in regs(ops[0]):
                        if r in mC: req(mC[r][0], mC[r][1] - 1)
        elif op.startswith("s_"):
            for r in sregs(",".join(ops[1:]) if len(ops) > 1 else rest):
                if r in sW: req(sW[r], 1)
        nop(need)
        out.append(ln)
        if op.startswith("v_mfma"):
            for r in D:
                mD[r] = (t, p, frozenset(D), op)
                vW.pop(r, None)
            for r in C:
                mC[r] = (t, p)
        elif op.startswith("v_"):
            W = regs(ops[0]) | (regs(ops[1]) if "permlane" in op else set())
            for r in W:
                vW[r] = t
                mD.pop(r, None)
                if op in TRANS or op[:-4] in TRANS: tW[r] = t
                if "permlane" in op: pW[r] = t
                if op.startswith("v_dot2"): dW[r] = t
            if op.startswith("v_cmp") or op.startswith("v_readfirstlane") or op.startswith("v_readlane"):
                for r in sregs(ops[0]):
                    sW[r] = t
        elif op.startswith("buffer_store") or op.startswith("ds_write"):
            for r in regs(ops[0] if op.startswith("buffer") else ",".join(ops[1:])):
                stD[r] = t
        elif op.startswith("s_") and ops and ops[0] == "m0":
            m0t = t
        t += 1
    return out, nins
```

```python
import os, struct
MB = 1 << 20
KB = 1024
TS = int(os.environ.get('TS', '0'))
WS_QKV = 0
WS_ATT = 6 * MB
WS_H = 8 * MB
WS_ST = 10 * MB
WS_HM = 11 * MB
WS_HMD = 18 * MB
WS_PW13 = 25 * MB
WS_PWO = 28 * MB + 512 * KB
WS_PW2 = 29 * MB
WS_FL = 31 * MB
WS_TS = 31 * MB + 512 * KB
WS_SIZE = 32 * MB
LOG2E = 1.4426950408889634
QSCALE = 0.25 * LOG2E
P_X, P_WQKV, P_WO, P_BX, P_W1, P_W3, P_W2, P_OUT, P_DBG, P_WS = [64 + 2 * i for i in range(10)]
NTS = 16


def f32hex(x):
    return "0x%08x" % struct.unpack("<I", struct.pack("<f", x))[0]


class G:
    def __init__(self):
        self.lines = []
        self.vmq = []
        self.lgq = []
        self.nlabel = 0
        self.seen = set()

    def e(self, s):
        self.lines.append("    " + s)

    def label(self, s):
        self.lines.append(s + ":")

    def newlabel(self, p):
        self.nlabel += 1
        return "L_%s_%d" % (p, self.nlabel)

    def vm(self, s, tag):
        if len(self.vmq) >= 63:
            self.e("s_waitcnt vmcnt(62)")
            self.vmq = self.vmq[-62:]
        self.e(s)
        self.vmq.append(tag)

    def lg(self, s, tag):
        if len(self.lgq) >= 15:
            self.e("s_waitcnt lgkmcnt(14)")
            self.lgq = self.lgq[-14:]
        self.e(s)
        self.lgq.append(tag)
        self.seen.add(tag)

    def _wait(self, q, tag):
        if tag not in q:
            return None, q
        idx = len(q) - 1 - q[::-1].index(tag)
        return len(q) - 1 - idx, q[idx + 1:]

    def wait_vm(self, tag):
        n, self.vmq = self._wait(self.vmq, tag)
        if n is not None:
            self.e("s_waitcnt vmcnt(%d)" % n)

    def wait_lg(self, tag):
        n, self.lgq = self._wait(self.lgq, tag)
        if n is not None:
            self.e("s_waitcnt lgkmcnt(%d)" % n)

    def wait_all(self):
        self.e("s_waitcnt vmcnt(0) lgkmcnt(0)")
        self.vmq = []
        self.lgq = []

    def ts(self, k, grp=1):
        if not TS or (grp != TS and k not in (0, 15)):
            return
        assert k < NTS
        self.e("s_memtime s[100:101]")
        self.e("s_waitcnt lgkmcnt(0)")
        self.e("s_mov_b32 s%d, s100" % (84 + k))
        self.lgq = []

    def ts_dump(self, kidx, srd):
        if not TS:
            return
        self.e("s_memrealtime s[60:61]")
        self.e("s_waitcnt lgkmcnt(0)")
        self.e("s_lshl_b32 s55, s2, 2")
        self.e("s_add_u32 s55, s55, s3")
        self.e("s_lshl_b32 s55, s55, 7")
        self.e("s_add_u32 s55, s55, 0x%x" % (WS_TS + kidx * 131072))
        self.e("v_mov_b32 v0, 0")
        self.e("s_mov_b64 exec, 1")
        for k in range(NTS):
            self.e("v_mov_b32 v1, s%d" % (84 + k))
            self.e("buffer_store_dword v1, v0, s[%d:%d], s55 offen offset:%d" % (srd, srd + 3, 4 * k))
        self.e("v_mov_b32 v1, s60")
        self.e("buffer_store_dword v1, v0, s[%d:%d], s55 offen offset:%d" % (srd, srd + 3, 4 * NTS))
        self.e("v_mov_b32 v1, s62")
        self.e("buffer_store_dword v1, v0, s[%d:%d], s55 offen offset:%d" % (srd, srd + 3, 4 * NTS + 4))

    def nop(self, n):
        while n > 0:
            k = min(n, 16)
            self.e("s_nop %d" % (k - 1))
            n -= k

    def begin(self, name, nwg):
        self.lines.append(".globl %s" % name)
        self.lines.append(".p2align 8")
        self.lines.append(".type %s,@function" % name)
        self.label(name)
        self.vmq = []
        self.lgq = []
        self.e("s_cmp_ge_u32 s2, %d" % nwg)
        self.e("s_cbranch_scc1 L_end_%s" % name)
        if TS:
            self.e("s_memrealtime s[62:63]")
            for k in range(NTS):
                self.e("s_mov_b32 s%d, 0" % (84 + k))
        self.e("s_load_dwordx16 s[64:79], s[0:1], 0")
        self.e("s_load_dwordx4 s[80:83], s[0:1], 64")
        self.e("v_and_b32 v1, 63, v0")
        self.e("v_lshrrev_b32 v2, 6, v0")
        self.e("s_nop 0")
        self.e("v_readfirstlane_b32 s3, v2")

    def kwait(self):
        self.e("s_waitcnt lgkmcnt(0)")
        self.ts(0)

    def end(self, name):
        self.label("L_end_%s" % name)
        self.e("s_endpgm")

    def srd(self, d, ptr, off, size):
        if off:
            self.e("s_add_u32 s%d, s%d, 0x%x" % (d, ptr, off))
            self.e("s_addc_u32 s%d, s%d, 0" % (d + 1, ptr + 1))
        else:
            self.e("s_mov_b32 s%d, s%d" % (d, ptr))
            self.e("s_mov_b32 s%d, s%d" % (d + 1, ptr + 1))
        self.e("s_mov_b32 s%d, 0x%x" % (d + 2, size))
        self.e("s_mov_b32 s%d, 0x00020000" % (d + 3))

    def pk(self, op, d, a, b, c=None, sel=None, neg=False):
        ops = [a, b] + ([c] if c is not None else [])
        sel = sel or {}
        lo = [sel.get(i, (0, 1))[0] for i in range(len(ops))]
        hi = [sel.get(i, (0, 1))[1] for i in range(len(ops))]
        t = "%s %s, %s" % (op, vr(d, 2), ", ".join(vr(o, 2) for o in ops))
        t += " op_sel:[%s] op_sel_hi:[%s]" % (",".join(map(str, lo)), ",".join(map(str, hi)))
        if neg:
            z = ["1"] + ["0"] * (len(ops) - 1)
            t += " neg_lo:[%s] neg_hi:[%s]" % (",".join(z), ",".join(z))
        return t


def vr(b, n=4):
    return "v[%d:%d]" % (b, b + n - 1)


def ar(b, n=4):
    return "a[%d:%d]" % (b, b + n - 1)


def pipeline(g, items, D, stage_of, on_stage_start, issue_reads, do_mfma):
    n = len(items)
    pend = []
    npend = 0
    r = 0
    nin = 1
    for i in range(-D, n):
        j = i + D
        ms, rs = [], []
        if i >= 0:
            g.wait_lg(("it", i))
            ms = do_mfma(i, items[i]) or []
        if j < n:
            if j == 0 or stage_of(items[j]) != stage_of(items[j - 1]):
                assert not pend
                for m in ms:
                    m()
                ms = []
                pend = list(on_stage_start(stage_of(items[j])) or [])
                npend = len(pend)
                r = 0
                nin = sum(1 for it in items if stage_of(it) == stage_of(items[j]))
            rs = issue_reads(j, items[j]) or []
        vs = []
        if j < n:
            r += 1
            want = (r * npend + nin - 1) // nin
            while npend - len(pend) < want:
                vs.append(pend.pop(0))
        rs = rs + vs
        while ms or rs:
            if ms:
                ms.pop(0)()
            if rs:
                rs.pop(0)()


def emit(g, ks, dst):
    out = []
    for k in ks:
        out.append("; @launch kernel=%s grid=(%d,1,1) block=(256,1,1) lds=%d" % (k["name"], k["grid"], k["lds"]))
    out.append('.amdgcn_target "amdgcn-amd-amdhsa--gfx950"')
    out.append(".text")
    out += g.lines
    out.append("L_code_end:")
    out.append('.section .rodata,"a"')
    for k in ks:
        accoff = (k["vgpr"] + 3) // 4 * 4
        assert accoff <= 256
        tot = accoff + k["agpr"]
        assert tot <= 512
        out.append(".p2align 6")
        out.append(".amdhsa_kernel %s" % k["name"])
        out.append("  .amdhsa_next_free_vgpr %d" % tot)
        out.append("  .amdhsa_next_free_sgpr 102")
        out.append("  .amdhsa_accum_offset %d" % accoff)
        out.append("  .amdhsa_group_segment_fixed_size 0")
        out.append("  .amdhsa_kernarg_size 80")
        out.append("  .amdhsa_user_sgpr_count 2")
        out.append("  .amdhsa_user_sgpr_kernarg_segment_ptr 1")
        out.append("  .amdhsa_system_sgpr_workgroup_id_x 1")
        out.append(".end_amdhsa_kernel")
    open(dst, "w").write("\n".join(out) + "\n")
    for k in ks:
        print(k)
```

```python
from mg_base import *
PRO_LN = int(os.environ.get('PRO_LN', '4'))
P0_LN = int(os.environ.get('P0_LN', '2'))
CU_RATE = int(os.environ.get('CU_RATE', '2'))
PK_LD = int(os.environ.get('PK_LD', '2'))
PK_WR = int(os.environ.get('PK_WR', '5'))
PK_RD = int(os.environ.get('PK_RD', '6'))


def k1(g, name):
    g.begin(name, 256)
    NT = 6
    NPM = 6
    NW0 = NPM - 3
    CSP = (0, 3)
    nks = 16
    nst = 8
    nslots = 5
    SLOTB = 28672
    CSB = 5 * SLOTB
    lds = CSB + 1024
    SA, SW, SO = 4, 8, 12
    def srds():
        g.srd(SA, P_X, 0, 2048 * 1024)
        g.srd(SW, P_WQKV, 0, 512 * 3072)
        g.srd(SO, P_WS, 0, WS_SIZE)
    g.e("s_lshr_b32 s22, s2, 3")
    g.e("s_and_b32 s20, s2, 3")
    g.e("s_lshl_b32 s20, s20, 2")
    g.e("s_and_b32 s23, s22, 3")
    g.e("s_add_u32 s20, s20, s23")
    g.e("s_bfe_u32 s21, s2, 0x10002")
    g.e("s_lshl_b32 s21, s21, 3")
    g.e("s_lshr_b32 s23, s22, 2")
    g.e("s_add_u32 s21, s21, s23")
    g.e("s_lshl_b32 s22, s20, 7")
    g.e("s_lshl_b32 s23, s3, 5")
    g.e("s_add_u32 s22, s22, s23")
    g.e("v_and_b32 v3, 15, v1")
    g.e("v_lshrrev_b32 v4, 4, v1")
    g.e("v_bfe_u32 v9, v1, 2, 2")
    ST = 40
    for p in range(NPM):
        g.e("s_add_u32 s%d, s3, %d" % (ST + p, p))
        if p >= NW0:
            g.e("s_cmp_ge_u32 s%d, %d" % (ST + p, NPM))
            g.e("s_cselect_b32 s26, %d, 0" % NPM)
            g.e("s_sub_u32 s%d, s%d, s26" % (ST + p, ST + p))
    g.e("v_lshrrev_b32 v10, 3, v1")
    g.e("v_and_b32 v11, 7, v1")
    g.e("v_xor_b32 v11, v11, v10")
    g.e("v_lshlrev_b32 v10, 10, v10")
    g.e("v_lshl_add_u32 v5, v11, 4, v10")
    g.e("s_lshl_b32 s30, s22, 10")
    g.e("s_lshl_b32 s31, s3, 12")
    g.e("s_mul_i32 s24, s3, 192")
    g.e("v_add_u32 v10, s24, v1")
    DV = 16
    for q in range(3):
        g.e("v_add_u32 v11, %d, v10" % (q * 64))
        g.e("v_mul_u32_u24 v12, 5462, v11")
        g.e("v_lshrrev_b32 v12, 16, v12")
        g.e("v_mul_u32_u24 v13, 12, v12")
        g.e("v_sub_u32 v13, v11, v13")
        g.e("v_bfe_u32 v14, v12, 3, 1")
        g.e("v_lshlrev_b32 v14, 1, v14")
        g.e("v_xor_b32 v13, v13, v14")
        g.e("v_mul_u32_u24 v14, 3072, v12")
        g.e("v_lshl_add_u32 v%d, v13, 4, v14" % (DV + q))
    g.e("s_mul_i32 s24, s21, 192")
    g.e("s_mul_i32 s25, s3, 3072")
    g.e("v_add_u32 v10, s22, v3")
    g.e("v_lshlrev_b32 v7, 5, v10")
    g.e("v_bfe_u32 v10, v1, 4, 1")
    g.e("v_lshl_add_u32 v7, v10, 9, v7")
    g.e("v_bfe_u32 v10, v1, 5, 1")
    g.e("v_lshl_add_u32 v7, v10, 4, v7")
    g.e("v_and_b32 v10, 7, v1")
    g.e("v_xor_b32 v10, v10, v4")
    g.e("v_lshlrev_b32 v11, 7, v3")
    g.e("v_lshl_add_u32 v11, v10, 4, v11")
    g.e("v_add_u32 v19, s31, v11")
    g.e("v_xor_b32 v20, 64, v19")
    XA = 19
    for b in range(1, 3):
        g.e("v_add_u32 v%d, 0x%x, v19" % (XA + 2 * b, b * 2 * SLOTB))
        g.e("v_add_u32 v%d, 0x%x, v20" % (XA + 2 * b + 1, b * 2 * SLOTB))
    g.e("v_lshl_add_u32 v10, v4, 3, v9")
    g.e("v_mul_u32_u24 v10, 192, v10")
    g.e("v_bfe_u32 v11, v1, 1, 1")
    g.e("v_lshl_add_u32 v10, v11, 4, v10")
    g.e("v_and_b32 v11, 1, v1")
    g.e("v_lshl_add_u32 v10, v11, 3, v10")
    g.e("v_add_u32 v10, 0x4000, v10")
    g.e("v_bfe_u32 v11, v1, 4, 1")
    g.e("v_lshlrev_b32 v11, 5, v11")
    TA = 25
    NA = 5
    ai = lambda p: (p & 1) if p < NW0 else p - 1
    for k, p in enumerate((0, 1, 3, 4, 5)):
        g.e("s_sub_u32 s26, s%d, %d" % (ST + p, p))
        g.e("s_lshl_b32 s26, s26, 5")
        g.e("v_add_u32 v12, s26, v10")
        g.e("s_and_b32 s27, s%d, 1" % (ST + p))
        g.e("s_lshl_b32 s27, s27, 1")
        g.e("s_sub_u32 s27, 1, s27")
        g.e("v_mul_lo_u32 v13, s27, v11")
        g.e("v_add_u32 v%d, v12, v13" % (TA + k))
    for b in range(1, 3):
        for k in range(NA):
            g.e("v_add_u32 v%d, 0x%x, v%d" % (TA + NA * b + k, b * 2 * SLOTB, TA + k))
    nextv = TA + 3 * NA
    nextv = (nextv + 3) // 4 * 4
    ONES = nextv
    for k in range(4):
        g.e("v_mov_b32 v%d, 0x3f803f80" % (ONES + k))
    SUM = ONES + 4
    GRAM = SUM + 8
    CSA = GRAM + 8
    WF = CSA + 16
    D = 6
    NR = 8
    nextv = WF + NR * 4
    ACCV = nextv
    nextv += 2 * NT * 4
    acc = lambda tt, ct: vr(ACCV + (tt * NT + ct) * 4)
    XF = nextv
    nextv += 16
    xfr = lambda ks, tt: vr(XF + ((ks & 1) * 2 + tt) * 4)
    PD = nextv
    nextv += 24
    PA = nextv
    nextv += 8

    def stage_loads(s):
        wl, al = [], []
        slot = s % nslots
        for q in range(3):
            def f(q=q):
                g.e("s_add_u32 m0, s25, 0x%x" % (slot * SLOTB + 16384 + q * 1024))
                g.e("s_add_u32 s26, s24, 0x%x" % (s * 64 * 3072))
                g.vm("buffer_load_dwordx4 v%d, s[%d:%d], s26 offen lds" % (DV + q, SW, SW + 3), ("st", s))
            wl.append(f)
        for q in range(4):
            def f(q=q):
                g.e("s_add_u32 m0, s31, 0x%x" % (slot * SLOTB + q * 1024))
                g.e("s_add_u32 s26, s30, 0x%x" % (q * 8192 + s * 128))
                g.vm("buffer_load_dwordx4 v5, s[%d:%d], s26 offen lds" % (SA, SA + 3), ("st", s))
            al.append(f)
        out = []
        while wl or al:
            if wl:
                out.append(wl.pop(0))
            if al and (len(al) >= len(wl) or not wl or len(out) % 2 == 0):
                out.append(al.pop(0))
        return out

    PKB = 3 * SLOTB
    def pack_loads():
        out = []
        def setup():
            g.e("v_lshrrev_b32 v%d, 3, v0" % PA)
            g.e("v_and_b32 v%d, 7, v0" % (PA + 1))
            g.e("v_and_b32 v%d, 3, v%d" % (PA + 2, PA))
            g.e("v_lshlrev_b32 v%d, 1, v%d" % (PA + 2, PA + 2))
            g.e("v_xor_b32 v%d, v%d, v%d" % (PA + 2, PA + 2, PA + 1))
            g.e("v_lshlrev_b32 v%d, 4, v%d" % (PA + 2, PA + 2))
            g.e("v_lshl_add_u32 v%d, v%d, 7, v%d" % (PA + 3, PA, PA + 2))
            g.e("v_add_u32 v%d, 0x%x, v%d" % (PA + 3, PKB, PA + 3))
            g.e("v_lshlrev_b32 v%d, 4, v%d" % (PA + 1, PA + 1))
            g.e("v_lshlrev_b32 v%d, 4, v1" % (PA + 7))
        out.append(setup)
        def w13_offs(pb_s):
            g.e("s_and_b32 s58, %s, 15" % pb_s)
            g.e("s_lshr_b32 s59, %s, 4" % pb_s)
            g.e("s_mul_i32 s56, s58, %d" % (32 * 3584))
            g.e("s_lshl_b32 s57, s59, 7")
            g.e("s_add_u32 s56, s56, s57")
            g.e("s_lshl_b32 s57, s59, 17")
            g.e("s_lshl_b32 s58, s58, 12")
            g.e("s_add_u32 s57, s57, s58")
            g.e("s_lshr_b32 s58, s3, 1")
            g.e("s_lshl_b32 s58, s58, 16")
            g.e("s_add_u32 s57, s57, s58")
            g.e("s_and_b32 s58, s3, 1")
            g.e("s_lshl_b32 s58, s58, 10")
            g.e("s_add_u32 s57, s57, s58")
            g.e("s_add_u32 s57, s57, 0x%x" % WS_PW13)
        def w8_offs(b_s, jstride, base, so, do):
            g.e("s_and_b32 s58, %s, 7" % b_s)
            g.e("s_lshr_b32 s59, %s, 3" % b_s)
            g.e("s_lshl_b32 %s, s59, 15" % so)
            g.e("s_lshl_b32 %s, s58, 7" % do)
            g.e("s_add_u32 %s, %s, %s" % (so, so, do))
            g.e("s_mul_i32 %s, s58, %d" % (do, jstride))
            g.e("s_lshl_b32 s59, s59, 12")
            g.e("s_add_u32 %s, %s, s59" % (do, do))
            g.e("s_lshl_b32 s59, s3, 10")
            g.e("s_add_u32 %s, %s, s59" % (do, do))
            g.e("s_add_u32 %s, %s, 0x%x" % (do, do, base))
        def b01():
            w13_offs("s2")
            g.e("s_mov_b32 s46, s57")
            g.e("s_add_u32 s47, s57, 2048")
            g.e("v_mul_u32_u24 v%d, 3584, v%d" % (PA + 2, PA))
            g.e("v_add_u32 v%d, v%d, v%d" % (PA + 2, PA + 2, PA + 1))
            g.srd(52, P_W1, 0, 512 * 3584)
            g.vm("buffer_load_dwordx4 %s, v%d, s[52:55], s56 offen" % (vr(PD), PA + 2), "pk")
            g.e("s_mov_b32 s52, s%d" % P_W3)
            g.e("s_mov_b32 s53, s%d" % (P_W3 + 1))
            g.vm("buffer_load_dwordx4 %s, v%d, s[52:55], s56 offen" % (vr(PD + 4), PA + 2), "pk")
        out.append(b01)
        def b23():
            g.e("s_add_u32 s34, s2, 256")
            w13_offs("s34")
            g.e("s_sub_u32 s34, s2, 192")
            g.e("s_lshl_b32 s34, s34, 1")
            w8_offs("s34", 65536, WS_PWO, "s35", "s36")
            g.e("s_cmp_lt_u32 s2, 192")
            g.e("s_cselect_b32 s32, -1, 0")
            g.e("s_mov_b32 s33, s32")
            g.e("s_cselect_b32 s56, s56, s35")
            g.e("s_cselect_b32 s48, s57, s36")
            g.e("s_cselect_b32 s58, 0, 128")
            g.e("s_add_u32 s37, s56, s58")
            g.e("s_mov_b32 s58, 65536")
            g.e("s_cmp_lt_u32 s2, 192")
            g.e("s_cselect_b32 s58, 2048, s58")
            g.e("s_add_u32 s49, s48, s58")
            g.e("s_mov_b32 s58, 1024")
            g.e("s_cmp_lt_u32 s2, 192")
            g.e("s_cselect_b32 s58, 3584, s58")
            g.e("v_mul_u32_u24 v%d, s58, v%d" % (PA + 4, PA))
            g.e("v_add_u32 v%d, v%d, v%d" % (PA + 4, PA + 4, PA + 1))
            g.e("s_cselect_b32 s52, s%d, s%d" % (P_W1, P_WO))
            g.e("s_cselect_b32 s53, s%d, s%d" % (P_W1 + 1, P_WO + 1))
            g.e("s_mov_b32 s54, 0x%x" % (512 * 1024))
            g.e("s_cselect_b32 s54, 0x%x, s54" % (512 * 3584))
            g.vm("buffer_load_dwordx4 %s, v%d, s[52:55], s56 offen" % (vr(PD + 8), PA + 4), "pk")
            g.e("s_cselect_b32 s52, s%d, s%d" % (P_W3, P_WO))
            g.e("s_cselect_b32 s53, s%d, s%d" % (P_W3 + 1, P_WO + 1))
            g.vm("buffer_load_dwordx4 %s, v%d, s[52:55], s37 offen" % (vr(PD + 12), PA + 4), "pk")
        out.append(b23)
        def b45():
            w8_offs("s2", 56 * 4096, WS_PW2, "s56", "s50")
            g.e("s_cmp_lt_u32 s2, 192")
            g.e("s_cselect_b32 s58, 0x%x, 0" % (32 * 32768))
            g.e("s_add_u32 s57, s56, s58")
            g.e("s_cmp_lt_u32 s2, 192")
            g.e("s_cselect_b32 s58, 0x%x, 0" % (32 * 4096))
            g.e("s_add_u32 s51, s50, s58")
            g.e("v_lshl_add_u32 v%d, v%d, 10, v%d" % (PA + 5, PA, PA + 1))
            g.srd(52, P_W2, 0, 1792 * 1024)
            g.vm("buffer_load_dwordx4 %s, v%d, s[52:55], s56 offen" % (vr(PD + 16), PA + 5), "pk")
            g.vm("buffer_load_dwordx4 %s, v%d, s[52:55], s57 offen" % (vr(PD + 20), PA + 5), "pk")
        out.append(b45)
        def flags():
            L = g.newlabel("fz")
            g.e("s_cmp_lg_u32 s3, 0")
            g.e("s_cbranch_scc1 %s" % L)
            g.e("v_lshlrev_b32 v%d, 2, v1" % (PA + 6))
            g.e("v_mov_b32 v%d, 0" % PA)
            g.e("s_lshl_b32 s58, s2, 8")
            g.e("s_add_u32 s58, s58, 0x%x" % WS_FL)
            g.e("buffer_store_dword v%d, v%d, s[%d:%d], s58 offen sc1" % (PA, PA + 6, SO, SO + 3))
            g.label(L)
        return out, flags

    def pack_writes():
        out = []
        def addr():
            g.wait_vm("pk")
            g.e("v_xor_b32 v%d, s3, v9" % (PA + 2))
            g.e("v_lshlrev_b32 v%d, 5, v%d" % (PA + 2, PA + 2))
            g.e("v_and_b32 v%d, 3, v1" % (PA + 1))
            g.e("v_lshl_add_u32 v%d, v%d, 3, v%d" % (PA + 2, PA + 1, PA + 2))
            g.e("v_lshl_add_u32 v%d, v9, 7, v%d" % (PA + 2, PA + 2))
            g.e("v_add_u32 v%d, 0x%x, v%d" % (PA + 2, PKB, PA + 2))
            g.e("v_lshl_add_u32 v%d, v4, 9, v%d" % (PA + 4, PA + 2))
            g.e("v_bfe_u32 v%d, v1, 5, 1" % (PA + 1))
            g.e("v_lshl_add_u32 v%d, v%d, 11, v%d" % (PA + 5, PA + 1, PA + 2))
            g.e("v_bfe_u32 v%d, v1, 4, 1" % (PA + 1))
            g.e("v_lshl_add_u32 v%d, v%d, 9, v%d" % (PA + 5, PA + 1, PA + 5))
            g.e("v_add_u32 v%d, 1024, v%d" % (PA + 6, PA + 5))
            g.e("v_add_u32 v%d, 2048, v%d" % (PA + 1, PA + 4))
            g.e("v_cndmask_b32_e64 v%d, v%d, v%d, s[32:33]" % (PA + 5, PA + 5, PA + 4))
            g.e("v_cndmask_b32_e64 v%d, v%d, v%d, s[32:33]" % (PA + 6, PA + 6, PA + 1))
        out.append(addr)
        for i in range(6):
            out.append(lambda i=i: g.lg("ds_write_b128 v%d, %s offset:%d" % (PA + 3, vr(PD + 4 * i), i * 4096), "pkw"))
        return out

    def pack_reads():
        out = []
        for i in range(6):
            def f(i=i):
                if i in (2, 3):
                    g.lg("ds_read_b64_tr_b16 %s, v%d offset:%d" % (vr(PD + 4 * i, 2), PA + 5, i * 4096), ("pkr", i))
                    g.lg("ds_read_b64_tr_b16 %s, v%d offset:%d" % (vr(PD + 4 * i + 2, 2), PA + 6, i * 4096), ("pkr", i))
                else:
                    g.lg("ds_read_b64_tr_b16 %s, v%d offset:%d" % (vr(PD + 4 * i, 2), PA + 4, i * 4096), ("pkr", i))
                    g.lg("ds_read_b64_tr_b16 %s, v%d offset:%d" % (vr(PD + 4 * i + 2, 2), PA + 4, i * 4096 + 2048), ("pkr", i))
            out.append(f)
        for i in range(6):
            def f(i=i):
                g.wait_lg(("pkr", i))
                g.vm("buffer_store_dwordx4 %s, v%d, s[%d:%d], s%d offen sc1" % (vr(PD + 4 * i), PA + 7, SO, SO + 3, 46 + i), "pks")
            out.append(f)
        return out

    P = min(PRO_LN, nslots - 2)
    nxt = [min(P, P0_LN)]
    g.kwait()
    srds()
    for s in range(nxt[0]):
        for f in stage_loads(s):
            f()
    g.ts(1)
    items = [(ks, ct) for ks in range(nks) for ct in range(NT)]
    pkl, pkflags = pack_loads()

    def on_stage_start(s):
        if s == PK_RD:
            g.wait_lg("pkw")
        g.wait_vm(("st", s))
        g.e("s_barrier")
        if s in (0, 1, 3, 5, 7):
            g.ts(2 + (0, 1, 3, 5, 7).index(s))
        out = []
        for _ in range(CU_RATE):
            if nxt[0] <= s + P and nxt[0] < nst:
                out += stage_loads(nxt[0])
                nxt[0] += 1
        if s == PK_LD:
            out += pkl
        if s == PK_WR:
            out += pack_writes()
        if s == PK_RD:
            out += pack_reads()
        return out

    def issue_reads(j, it):
        ks, ct = it
        w = WF + (j % NR) * 4
        s = ks // 2
        slot = s % nslots
        b, so = slot >> 1, (slot & 1) * SLOTB
        out = []
        if ct == 0:
            for tt in range(2):
                out.append(lambda tt=tt: g.lg("ds_read_b128 %s, v%d offset:%d" % (xfr(ks, tt), XA + 2 * b + (ks & 1), so + tt * 2048), ("it", j)))
        a = TA + NA * b + ai(ct)
        off = so + (ks % 2) * 32 * 192 + ct * 32
        off2 = off + 4 * 192
        out.append(lambda: g.lg("ds_read_b64_tr_b16 %s, v%d offset:%d" % (vr(w, 2), a, off), ("it", j)))
        out.append(lambda: g.lg("ds_read_b64_tr_b16 %s, v%d offset:%d" % (vr(w + 2, 2), a, off2), ("it", j)))
        return out

    def do_mfma(i, it):
        ks, ct = it
        w = WF + (i % NR) * 4
        out = []
        def mf(d, a, b):
            out.append(lambda: g.e("v_mfma_f32_16x16x32_bf16 %s, %s, %s, %s" % (d, a, b, "0" if ks == 0 else d)))
        for tt in range(2):
            mf(acc(tt, ct), vr(w), xfr(ks, tt))
        if ct in CSP:
            mf(vr(CSA + CSP.index(ct) * 4), vr(w), vr(ONES))
        if ct in (1, 2):
            tt = ct - 1
            x = xfr(ks, tt)
            mf(vr(SUM + tt * 4), vr(ONES), x)
            mf(vr(GRAM + tt * 4), x, x)
        return out

    pipeline(g, items, D, lambda it: it[0] // 2, on_stage_start, issue_reads, do_mfma)
    pkflags()
    g.nop(16)
    g.ts(7)
    T = WF
    g.e("v_lshlrev_b32 v%d, 4, v4" % T)
    g.e("v_add_u32 v%d, 0x%x, v%d" % (T + 1, CSB, T))
    for k in range(2):
        g.e("s_lshl_b32 s27, s%d, 6" % (ST + CSP[k]))
        g.e("v_add_u32 v%d, s27, v%d" % (T + 2 + k, T + 1))
    g.e("s_mov_b32 s28, 0x00010001")
    g.e("s_mov_b32 s29, 0x00010001")
    g.e("s_mov_b64 exec, s[28:29]")
    for k in range(2):
        g.lg("ds_write_b128 v%d, %s" % (T + 2 + k, vr(CSA + k * 4)), "csw")
    g.e("s_mov_b64 exec, -1")
    for r in range(4):
        m = 0
        for gg in range(4):
            m |= 1 << (20 * gg + r)
        g.e("s_mov_b32 s%d, 0x%x" % (30 + 2 * r, m & 0xffffffff))
        g.e("s_mov_b32 s%d, 0x%x" % (31 + 2 * r, m >> 32))
    for tt in range(2):
        d = T + 4
        g.e("v_mov_b32 v%d, 0" % d)
        for r in range(4):
            g.e("v_cndmask_b32_e64 v%d, v%d, v%d, s[%d:%d]" % (d, d, GRAM + tt * 4 + r, 30 + 2 * r, 31 + 2 * r))
        g.e("v_mov_b32 v%d, v%d" % (d + 1, d))
        g.nop(2)
        g.e("v_permlane16_swap_b32 v%d, v%d" % (d, d + 1))
        g.nop(1)
        g.e("v_add_f32 v%d, v%d, v%d" % (d, d, d + 1))
        g.e("v_mov_b32 v%d, v%d" % (d + 1, d))
        g.nop(2)
        g.e("v_permlane32_swap_b32 v%d, v%d" % (d, d + 1))
        g.nop(1)
        g.e("v_add_f32 v%d, v%d, v%d" % (d, d, d + 1))
        m = SUM + tt * 4
        g.e("v_mul_f32 v%d, %s, v%d" % (m, f32hex(1.0 / 512), m))
        g.e("v_mul_f32 v%d, %s, v%d" % (d, f32hex(1.0 / 512), d))
        g.e("v_fma_f32 v%d, -v%d, v%d, v%d" % (d, m, m, d))
        g.e("v_max_f32 v%d, 0, v%d" % (d, d))
        g.e("v_add_f32 v%d, %s, v%d" % (m + 3, f32hex(1e-5), d))
        g.e("v_rsq_f32 v%d, v%d" % (m + 1, m + 3))
        g.nop(1)
        g.e("v_mul_f32 v%d, %s, v%d" % (m + 2, f32hex(QSCALE), m + 1))
    g.wait_lg("csw")
    g.e("s_barrier")
    CS = T + 8
    AD = T + 6
    def cs_read(p):
        bb = CS + (p & 1) * 8
        g.e("s_lshl_b32 s27, s%d, 6" % (ST + p))
        g.e("v_add_u32 v%d, s27, v%d" % (AD + (p & 1), T + 1))
        g.lg("ds_read_b128 %s, v%d" % (vr(bb), AD + (p & 1)), ("cs", p))
    cs_read(0)
    for p in range(NPM):
        if p + 1 < NPM:
            cs_read(p + 1)
        g.wait_lg(("cs", p))
        bb = CS + (p & 1) * 8
        g.e("s_mul_i32 s26, s21, 6")
        g.e("s_add_u32 s26, s26, s%d" % (ST + p))
        g.e("s_cmp_lt_u32 s26, 32")
        g.e("s_cselect_b32 s28, -1, 0")
        g.e("s_mov_b32 s29, s28")
        g.e("s_lshl_b32 s26, s26, 16")
        for tt in range(2):
            a = ACCV + (tt * NT + p) * 4
            m = SUM + tt * 4
            rs = T + 4
            g.e("v_cndmask_b32_e64 v%d, v%d, v%d, s[28:29]" % (rs, m + 1, m + 2))
            g.e(g.pk("v_pk_fma_f32", a, m, bb, a, sel={0: (0, 0)}, neg=True))
            g.e(g.pk("v_pk_fma_f32", a + 2, m, bb + 2, a + 2, sel={0: (0, 0)}, neg=True))
            g.e(g.pk("v_pk_mul_f32", a, a, rs, sel={1: (0, 0)}))
            g.e(g.pk("v_pk_mul_f32", a + 2, a + 2, rs, sel={1: (0, 0)}))
            d = ACCV + p * 4 + tt * 2
            g.e("v_cvt_pk_bf16_f32 v%d, v%d, v%d" % (d, a, a + 1))
            g.e("v_cvt_pk_bf16_f32 v%d, v%d, v%d" % (d + 1, a + 2, a + 3))
        d = ACCV + p * 4
        g.nop(2)
        g.e("v_permlane16_swap_b32 v%d, v%d" % (d, d + 2))
        g.e("v_permlane16_swap_b32 v%d, v%d" % (d + 1, d + 3))
        g.nop(1)
        g.vm("buffer_store_dwordx4 %s, v7, s[%d:%d], s26 offen sc1" % (vr(d), SO, SO + 3), "out")
    g.ts(8)
    g.ts_dump(0, SO)
    g.end(name)
    return dict(name=name, grid=256, lds=lds, vgpr=nextv, agpr=0)
```

```python
from mg_base import *
import hz
STOP = int(os.environ.get('STOP', '5'))
MAPB = int(os.environ.get('MAPB', '0'))
NB0 = int(os.environ.get('NB0', '0'))
NBIT = int(os.environ.get('NBIT', '3'))
NB1 = int(os.environ.get('NB1', '1'))
FL1 = int(os.environ.get('FL1', '6'))
SWS, SX, SOUT = 4, 8, 12
S_HP, S_T2, S_TA, S_HH, S_J, S_MB, S_TB, S_W13 = 16, 17, 18, 19, 20, 21, 22, 23
NEGB = 0xff7fffff
F2B, F3B, F4B = WS_FL, WS_FL + 64 * 256, WS_FL + 128 * 256
XR = 16
L16 = 2
CS = 96


class K2:
    def __init__(self, g, name):
        self.g = g
        self.name = name
        self.bgq = []
        self.npoll = 0
        self.tails = []

    def bg(self, n):
        for _ in range(n):
            if self.bgq:
                self.bgq.pop(0)()

    def poll(self, va, soff, level, vt, off=0):
        g = self.g
        L, LX = g.newlabel("poll"), g.newlabel("pollx")
        g.e("s_mov_b32 s39, 20000")
        g.label(L)
        g.e("buffer_load_dword v%d, v%d, s[%d:%d], %s offen offset:%d sc1" % (vt, va, SWS, SWS + 3, soff, off))
        g.e("s_waitcnt vmcnt(0)")
        g.e("v_cmp_gt_u32 vcc, %s, v%d" % (level, vt))
        g.e("s_sub_u32 s39, s39, 1")
        g.e("s_cbranch_scc1 %s" % LX)
        g.e("s_cmp_lg_u64 vcc, 0")
        g.e("s_cbranch_scc1 %s" % L)
        g.label(LX)
        g.vmq = []

    def poll_issue(self, va, soff, vt, tag, off=0):
        self.g.vm("buffer_load_dword v%d, v%d, s[%d:%d], %s offen offset:%d sc1" % (vt, va, SWS, SWS + 3, soff, off), tag)

    def poll_check(self, va, soff, level, vt, tag, off=0):
        g = self.g
        g.wait_vm(tag)
        OK = g.newlabel("pok")
        g.e("v_cmp_gt_u32 vcc, %s, v%d" % (level, vt))
        g.e("s_cmp_eq_u64 vcc, 0")
        g.e("s_cbranch_scc1 %s" % OK)
        if TS:
            g.e("s_add_u32 s98, s98, 0x%x" % (1 << (4 * self.npoll)))
        self.npoll += 1
        q = list(g.vmq)
        self.poll(va, soff, level, vt, off)
        g.vmq = q
        g.label(OK)

    def flag(self, soff, level, vt, off=0):
        g = self.g
        g.e("v_mov_b32 v%d, %s" % (vt, level))
        g.e("s_mov_b64 exec, 1")
        g.vm("buffer_store_dword v%d, off, s[%d:%d], %s offset:%d sc1" % (vt, SWS, SWS + 3, soff, off), "flag")
        g.e("s_mov_b64 exec, -1")

    def p2(self):
        g = self.g
        QF, MP, PF, VF, CM, OA, KF, S = 24, 32, 40, 48, 64, 96, 128, 172
        self.OA = OA
        e = g.e
        e("s_and_b32 s24, s2, 7")
        e("s_lshr_b32 s25, s2, 3")
        e("s_and_b32 s26, s25, 1")
        e("s_lshl_b32 s27, s24, 1")
        e("s_add_u32 s%d, s27, s26" % S_HP)
        e("s_lshr_b32 s%d, s25, 1" % S_T2)
        e("s_lshr_b32 s26, s25, 4")
        e("s_add_u32 s%d, s27, s26" % S_TA)
        e("s_bfe_u32 s%d, s25, 0x10003" % S_HH)
        e("s_and_b32 s%d, s25, 7" % S_J)
        if MAPB == 0:
            e("s_and_b32 s26, s2, 3")
            e("s_lshl_b32 s26, s26, 2")
            e("s_and_b32 s27, s25, 3")
            e("s_add_u32 s%d, s26, s27" % S_MB)
            e("s_bfe_u32 s26, s2, 0x10002")
            e("s_lshl_b32 s26, s26, 3")
            e("s_lshr_b32 s27, s25, 2")
            e("s_add_u32 s%d, s26, s27" % S_TB)
        else:
            e("s_and_b32 s%d, s25, 15" % S_MB)
            e("s_mov_b32 s%d, s%d" % (S_TB, S_TA))
        e("s_and_b32 s24, s3, 1")
        e("s_lshr_b32 s25, s3, 1")
        e("s_lshl_b32 s26, s%d, 1" % S_HP)
        e("s_add_u32 s26, s26, s24")
        e("s_lshl_b32 s26, s26, 16")
        e("s_lshl_b32 s27, s%d, 12" % S_T2)
        e("s_add_u32 s26, s26, s27")
        e("s_lshl_b32 s27, s25, 10")
        e("s_add_u32 s27, s26, s27")
        e("s_add_u32 s28, s27, 0x%x" % (2 * MB - 8192))
        e("s_mul_i32 s29, s25, 6144")
        e("s_add_u32 s30, s26, s29")
        e("s_add_u32 s30, s30, 0x%x" % (4 * MB - 8192))
        e("s_mul_i32 s31, s24, 12288")
        e("s_add_u32 s29, s29, s31")
        e("v_lshlrev_b32 v%d, 4, v1" % L16)
        e("v_and_b32 v3, 31, v1")
        e("v_lshrrev_b32 v4, 5, v1")
        e("v_lshlrev_b32 v5, 5, v3")
        e("v_lshl_add_u32 v5, v4, 4, v5")
        e("s_cmp_ge_u32 s%d, 14" % S_MB)
        e("s_cselect_b32 s32, 2, 0")
        e("s_sub_u32 s32, s%d, s32" % S_MB)
        e("s_lshl_b32 s32, s32, 2")
        e("s_add_u32 s32, s32, s3")
        e("s_lshl_b32 s32, s32, 16")
        e("s_add_u32 s%d, s32, 0x%x" % (S_W13, WS_PW13))
        e("v_and_b32 v6, 15, v1")
        e("v_lshlrev_b32 v6, 10, v6")
        e("v_lshrrev_b32 v7, 4, v1")
        e("v_lshl_add_u32 v6, v7, 3, v6")
        e("s_lshl_b32 s32, s%d, 3" % S_TA)
        e("s_lshl_b32 s33, s25, 1")
        e("s_add_u32 s32, s32, s33")
        e("s_add_u32 s32, s32, s%d" % S_HH)
        e("s_lshl_b32 s32, s32, 14")
        e("s_lshl_b32 s33, s%d, 7" % S_J)
        e("s_add_u32 s32, s32, s33")
        e("s_lshl_b32 s33, s24, 6")
        e("s_add_u32 s32, s32, s33")
        e("s_add_u32 s33, s32, 65536")
        g.kwait()
        g.srd(SWS, P_WS, 0, WS_SIZE)
        ws = "s[%d:%d]" % (SWS, SWS + 3)
        g.vm("buffer_load_dwordx4 %s, v5, %s, s27 offen" % (vr(QF), ws), ("q", 0))
        for T in range(11):
            if T in (4, 8):
                e("s_add_u32 s28, s28, 4096")
            g.vm("buffer_load_dwordx4 %s, v5, %s, s28 offen offset:%d" % (vr(KF + 4 * T), ws, (T % 4) * 1024), ("k", T))
            if T == 1:
                g.vm("buffer_load_dwordx4 %s, v5, %s, s27 offen offset:2048" % (vr(QF + 4), ws), ("q", 1))
        for i in range(6):
            e("s_add_u32 m0, s29, %d" % (i * 1024))
            if i:
                e("s_add_u32 s30, s30, 1024")
            g.vm("buffer_load_dwordx4 v%d, %s, s30 offen lds" % (L16, ws), "v")
        g.srd(SX, P_X, 0, 2 * MB)
        g.srd(SOUT, P_OUT, 0, 2 * MB)
        for i in range(4):
            g.vm("buffer_load_dwordx2 %s, v6, s[%d:%d], s%d offen offset:%d" % (vr(XR + 2 * i, 2), SX, SX + 3, 32 + (i >> 1), 32 * (i & 1)), "xr")
        for i in range(64):
            def f(i=i):
                if i and i % 4 == 0:
                    e("s_add_u32 s%d, s%d, 4096" % (S_W13, S_W13))
                g.vm("buffer_load_dwordx4 %s, v%d, %s, s%d offen offset:%d" % (ar(4 * i), L16, ws, S_W13, (i % 4) * 1024), "w13")
            self.bgq.append(f)
        self.bg(NB0)
        g.ts(1)
        for k in range(4):
            e("v_mov_b32 v%d, 0x3f803f80" % (S + k))
        e("s_mul_i32 s32, s3, 3072")
        e("v_add_u32 v6, s32, v%d" % L16)
        for k in range(3):
            g.lg("ds_write_b128 v6, %s offset:%d" % (vr(S), 24576 + 1024 * k), "ones")
        e("v_lshlrev_b32 v6, 2, v4")
        e("v_sub_u32 v6, v3, v6")
        e("v_mov_b32 v7, 0x%x" % NEGB)
        for r in range(16):
            jc = (r & 3) + 8 * (r >> 2)
            e("v_cmp_gt_i32 vcc, %d, v6" % jc)
            e("v_cndmask_b32 v%d, v7, 0, vcc" % (CM + r))
            e("v_cndmask_b32 v%d, 0, v7, vcc" % (CM + 16 + r))
        e("s_mov_b32 s32, 0x05040100")
        for r in range(8):
            e("v_perm_b32 v%d, v%d, v%d, s32" % (MP + r, CM + 16 + 2 * r + 1, CM + 16 + 2 * r))
        VA = 6
        e("v_bfe_u32 v6, v1, 2, 2")
        e("v_lshl_add_u32 v6, v4, 2, v6")
        e("v_lshlrev_b32 v6, 5, v6")
        e("v_and_b32 v7, 3, v1")
        e("v_lshl_add_u32 v6, v7, 3, v6")
        e("s_lshl_b32 s32, s25, 10")
        e("s_add_u32 s32, s32, s31")
        e("v_add_u32 v6, s32, v6")
        e("v_lshlrev_b32 v7, 7, v4")
        e("v_sub_u32 v7, 0x%x, v7" % (24576 + 128))
        e("v_bfe_u32 v8, v1, 4, 1")
        e("v_cmp_eq_u32 vcc, 1, v8")
        e("v_cndmask_b32 v6, v6, v7, vcc")
        e("v_bfe_u32 v7, v3, 4, 1")
        e("v_lshlrev_b32 v7, 14, v7")
        e("v_and_b32 v8, 15, v3")
        e("v_lshl_add_u32 v7, v8, 4, v7")
        e("v_lshl_add_u32 v7, v4, 8, v7")
        e("s_lshl_b32 s40, s%d, 17" % S_T2)
        e("s_lshl_b32 s32, s25, 15")
        e("s_add_u32 s40, s40, s32")
        e("s_lshl_b32 s32, s%d, 10" % S_HP)
        e("s_add_u32 s40, s40, s32")
        e("s_lshl_b32 s32, s24, 9")
        e("s_add_u32 s40, s40, s32")
        e("s_add_u32 s40, s40, 0x%x" % WS_ATT)
        e("s_add_u32 s41, s40, 65536")
        e("s_lshl_b32 s42, s%d, 10" % S_T2)
        e("s_lshr_b32 s32, s%d, 2" % S_HP)
        e("s_lshl_b32 s32, s32, 8")
        e("s_add_u32 s42, s42, s32")
        e("s_and_b32 s32, s%d, 3" % S_HP)
        e("s_lshl_b32 s32, s32, 2")
        e("s_add_u32 s32, s32, s3")
        e("s_lshl_b32 s32, s32, 2")
        e("s_add_u32 s42, s42, s32")
        e("s_add_u32 s42, s42, 0x%x" % F2B)
        MX = (8, 10)
        for u in range(2):
            e("v_mov_b32 v%d, 0x%x" % (MX[u], NEGB))
        e("s_lshl_b32 s32, s%d, 2" % S_T2)
        e("s_add_u32 s32, s32, s25")
        variants = {0: 8, 1: 7, 4: 4, 5: 3}
        labs = {tv: g.newlabel("var") for tv in variants}
        LJ = g.newlabel("join")
        for tv in variants:
            e("s_cmp_eq_u32 s32, %d" % tv)
            e("s_cbranch_scc1 %s" % labs[tv])
        snap = (list(g.vmq), list(g.lgq), list(self.bgq))
        ends = []

        def body(Tmin):
            g.vmq, g.lgq, self.bgq = list(snap[0]), list(snap[1]), list(snap[2])
            items = [(u, t) for u in range(2) for t in range(9) if 2 * u + t >= Tmin]
            n = len(items)
            def smf(k, dst, p2):
                u, t = items[k]
                g.wait_vm(("q", u))
                g.wait_vm(("k", 2 * u + t))
                if p2:
                    c = vr(CM + 16 * u, 16)
                else:
                    c = vr(CM, 16) if t == 0 else (vr(CM + 16, 16) if t == 8 else "0")
                e("v_mfma_f32_32x32x16_bf16 %s, %s, %s, %s" % (vr(dst, 16), vr(KF + 4 * (2 * u + t)), vr(QF + 4 * u), c))
            def fin_max(u):
                m = MX[u]
                e("v_mov_b32 v%d, v%d" % (m + 1, m))
                e("v_permlane32_swap_b32 v%d, v%d" % (m, m + 1))
                e("v_max_f32 v%d, v%d, v%d" % (m, m, m + 1))
                e("v_sub_f32 v%d, 0, v%d" % (m, m))
                e("v_mov_b32 v%d, v%d" % (m + 1, m))
            for k in range(-2, n):
                if k + 2 < n:
                    smf(k + 2, S + 16 * ((k + 2) % 3), False)
                if k >= 0:
                    u, t = items[k]
                    d = S + 16 * (k % 3)
                    for r in range(0, 16, 2):
                        e("v_max3_f32 v%d, v%d, v%d, v%d" % (MX[u], MX[u], d + r, d + r + 1))
                    if t == 8:
                        fin_max(u)
                    self.bg(NB1)
            if Tmin == 0:
                g.ts(2)
            for u in range(2):
                for r in range(8):
                    e("v_mov_b64 %s, %s" % (vr(CM + 16 * u + 2 * r, 2), vr(MX[u], 2)))
            g.wait_vm("v")
            g.wait_lg("ones")
            e("s_barrier")
            if Tmin == 0:
                g.ts(3)
            def vread(k):
                u, t = items[k]
                for i in range(4):
                    g.lg("ds_read_b64_tr_b16 %s, v%d offset:%d" % (vr(VF + 8 * (k & 1) + 2 * i, 2), VA, (2 * u + t) * 1024 + 256 * i), ("vf", k))
            def pv(k, half):
                u, t = items[k]
                first = (k == 0 or items[k - 1][0] != u) and half == 0
                if half == 0:
                    g.wait_lg(("vf", k))
                o = vr(OA + 16 * u, 16)
                e("v_mfma_f32_32x32x16_bf16 %s, %s, %s, %s" % (o, vr(VF + 8 * (k & 1) + 4 * half), vr(PF + 4 * half), "0" if first else o))
            def epi(u):
                o = OA + 16 * u
                e("v_rcp_f32 v%d, v%d" % (o + 8, o + 8))
                for r in range(0, 8, 2 if u else 1):
                    if u:
                        e(g.pk("v_pk_mul_f32", o + r, o + r, o + 8, sel={1: (0, 0)}))
                    else:
                        e("v_mul_f32 v%d, v%d, v%d" % (o + r, o + r, o + 8))
                for r in range(4):
                    e("v_cvt_pk_bf16_f32 v%d, v%d, v%d" % (o + 12 + r, o + 2 * r, o + 2 * r + 1))
                g.vm("buffer_store_dwordx4 %s, v7, %s, s%d offen sc1" % (vr(o + 12), ws, 40 + u), ("ao", u))
            smf(0, S, True)
            vread(0)
            last0 = max(k for k in range(n) if items[k][0] == 0)
            flagged = False
            for k in range(n + 1):
                d = S + 16 * (k & 1)
                ex = [lambda r=r: e("v_exp_f32 v%d, v%d" % (d + r, d + r)) for r in range(16)] if k < n else []
                if k + 1 < n:
                    smf(k + 1, S + 16 * ((k + 1) & 1), True)
                for f in ex[:4]: f()
                if k >= 1:
                    pv(k - 1, 0)
                for f in ex[4:8]: f()
                if k >= 1:
                    pv(k - 1, 1)
                if k + 1 < n:
                    vread(k + 1)
                for f in ex[8:12]: f()
                self.bg(NBIT)
                for f in ex[12:]: f()
                if k == last0 + 1:
                    epi(0)
                if k == last0 + 1 + FL1 and k < n:
                    g.wait_vm(("ao", 0))
                    self.flag("s42", 1, 12)
                    flagged = True
                if k < n:
                    u, t = items[k]
                    for r in range(8):
                        e("v_cvt_pk_bf16_f32 v%d, v%d, v%d" % (PF + r, d + 2 * r, d + 2 * r + 1))
                    for r in range(8):
                        if t == 0:
                            e("v_and_b32 v%d, v%d, v%d" % (PF + r, MP + r, PF + r))
                        if t == 8:
                            e("v_bfi_b32 v%d, v%d, 0, v%d" % (PF + r, MP + r, PF + r))
            self.bg(64)
            epi(1)
            i = g.vmq.index(("ao", 1))
            g.vmq = ["old"] * (62 - 1) + [("ao", 1)]
            ends.append((list(g.vmq), list(g.lgq)))

        body(0)
        e("s_branch %s" % LJ)
        for i, tv in enumerate(variants):
            g.label(labs[tv])
            body(variants[tv])
            if i < len(variants) - 1:
                e("s_branch %s" % LJ)
        g.label(LJ)
        g.lgq = []
        g.ts(4)


def k2(g, name):
    if STOP >= 4:
        import mg_p4
    if STOP >= 5:
        import mg_p5
    i0 = len(g.lines)
    g.begin(name, 256)
    k = K2(g, name)
    k.p2()
    if STOP >= 3:
        from mg_p3 import p3
        p3(k)
    else:
        g.wait_vm(("ao", 1))
        k.flag("s42", 2, 12)
    if STOP >= 4:
        from mg_p4 import p4
        p4(k)
    if STOP >= 5:
        from mg_p5 import p5
        p5(k)
    g.ts(15)
    g.ts_dump(1, SWS)
    g.end(name)
    for f in k.tails:
        f()
    fixed, n = hz.fix(g.lines[i0:])
    g.lines[i0:] = fixed
    print("hazard nops inserted:", n)
    return dict(name=name, grid=256, lds=160 * 1024, vgpr=256, agpr=256)
```

```python
from mg_k2 import *
RB3 = 65536
ONES = 224
CSA = int(os.environ.get('CSA', '40'))


def reduce_addrs(k, vw, vrd, base=RB3):
    g = k.g
    e = g.e
    for d in (1, 2, 3):
        e("s_xor_b32 s32, s3, %d" % d)
        e("s_mul_i32 s32, s32, 6144")
        e("s_add_u32 s32, s32, %d" % (base + (d - 1) * 2048))
        e("v_add_u32 v%d, s32, v%d" % (vw + d - 1, L16))
    e("s_mul_i32 s32, s3, 6144")
    e("s_add_u32 s32, s32, %d" % base)
    e("v_add_u32 v%d, s32, v%d" % (vrd, L16))


def p3(k):
    g = k.g
    e = g.e
    ws = "s[%d:%d]" % (SWS, SWS + 3)
    WO, AT, AC, RD, T = 128, 192, 32, 64, 88
    e("s_and_b32 s24, s3, 1")
    e("s_lshr_b32 s25, s3, 1")
    e("s_lshl_b32 s32, s24, 11")
    e("v_add_u32 v3, s32, v%d" % L16)
    e("v_xor_b32 v4, 0x800, v3")
    e("s_lshl_b32 s32, s%d, 16" % S_J)
    e("s_lshl_b32 s33, s3, 14")
    e("s_add_u32 s32, s32, s33")
    e("s_add_u32 s32, s32, 0x%x" % WS_PWO)
    wo = lambda i, npp, h2: WO + ((i * 2 + npp) * 2 + h2) * 4
    for i in range(4):
        if i:
            e("s_add_u32 s32, s32, 4096")
        for npp in range(2):
            for h2 in range(2):
                g.vm("buffer_load_dwordx4 %s, v%d, %s, s32 offen offset:%d" % (vr(wo(i, npp, h2)), 3 + npp, ws, h2 * 1024), "wo")
    e("v_and_b32 v5, 15, v1")
    e("v_lshlrev_b32 v5, 2, v5")
    e("s_lshl_b32 s43, s%d, 2" % S_TA)
    e("s_add_u32 s43, s43, s3")
    e("s_lshl_b32 s43, s43, 8")
    e("s_add_u32 s43, s43, 0x%x" % F2B)
    k.poll_issue(5, "s43", 12, "pf2a")
    e("s_lshl_b32 s26, s%d, 3" % S_TA)
    e("s_add_u32 s26, s26, s%d" % S_HH)
    e("s_lshl_b32 s27, s25, 1")
    e("s_add_u32 s27, s26, s27")
    e("s_xor_b32 s28, s27, 2")
    e("s_lshl_b32 s33, s3, 12")
    e("s_lshl_b32 s44, s27, 14")
    e("s_add_u32 s46, s44, 0x%x" % WS_H)
    e("s_add_u32 s44, s44, s33")
    e("s_add_u32 s44, s44, 0x%x" % WS_ATT)
    e("s_lshl_b32 s45, s28, 14")
    e("s_add_u32 s45, s45, s33")
    e("s_add_u32 s45, s45, 0x%x" % WS_ATT)
    e("s_lshl_b32 s33, s%d, 1" % S_J)
    e("s_add_u32 s33, s33, s24")
    e("s_lshl_b32 s34, s33, 10")
    e("s_add_u32 s46, s46, s34")
    e("s_lshl_b32 s47, s%d, 14" % S_TA)
    e("s_lshr_b32 s34, s33, 2")
    e("s_lshl_b32 s34, s34, 12")
    e("s_add_u32 s47, s47, s34")
    e("s_and_b32 s34, s27, 7")
    e("s_lshl_b32 s34, s34, 9")
    e("s_add_u32 s47, s47, s34")
    e("s_and_b32 s34, s33, 3")
    e("s_lshl_b32 s34, s34, 7")
    e("s_add_u32 s47, s47, s34")
    e("s_add_u32 s47, s47, 0x%x" % WS_ST)
    e("v_lshrrev_b32 v6, 5, v1")
    e("v_lshlrev_b32 v6, 6, v6")
    e("v_and_b32 v7, 15, v1")
    e("v_lshl_add_u32 v6, v7, 2, v6")
    e("s_lshl_b32 s48, s%d, 2" % S_TA)
    e("s_lshr_b32 s34, s%d, 1" % S_J)
    e("s_add_u32 s48, s48, s34")
    e("s_lshl_b32 s48, s48, 8")
    e("s_and_b32 s34, s%d, 1" % S_J)
    e("s_lshl_b32 s34, s34, 1")
    e("s_add_u32 s34, s34, s%d" % S_HH)
    e("s_lshl_b32 s34, s34, 2")
    e("s_add_u32 s34, s34, s3")
    e("s_lshl_b32 s34, s34, 2")
    e("s_add_u32 s48, s48, s34")
    e("s_add_u32 s48, s48, 0x%x" % F3B)
    reduce_addrs(k, 8, 11)
    e("v_mov_b32 v7, 0x3f803f80")
    for r in range(4):
        e("v_mov_b32 v%d, 0x3f803f80" % (ONES + r))
    if STOP >= 4:
        k.p4_addr()
    g.wait_vm(("ao", 1))
    k.flag("s42", 2, 15)
    g.ts(5)
    acc = lambda qp, npp, h2: AC + ((qp * 2 + npp) * 2 + h2) * 4
    at = lambda qp, i: AT + (qp * 4 + i) * 4
    def atloads():
        for qp in (1, 0):
            for i in range(4):
                g.vm("buffer_load_dwordx4 %s, v%d, %s, s%d offen offset:%d" % (vr(at(qp, i)), L16, ws, 44 + qp, i * 1024), ("at", qp, i))
    def colsum(i0, i1):
        for i in range(i0, i1):
            d = vr(CS + 4 * (i & 3))
            e("v_mfma_f32_16x16x32_bf16 %s, %s, %s, %s" % (d, ar(4 * i), vr(ONES), d if i >= 4 else "0"))
    k.poll_check(5, "s43", 1, 12, "pf2a")
    atloads()
    e("s_add_u32 s44, s44, 65536")
    e("s_add_u32 s45, s45, 65536")
    colsum(0, CSA)
    for ta in range(2):
        rb = ta * 24576
        def mf(qp, npp, h2, i):
            d = vr(acc(qp, npp, h2))
            e("v_mfma_f32_16x16x32_bf16 %s, %s, %s, %s" % (d, vr(wo(i, npp, h2)), vr(at(qp, i)), d if i else "0"))
        def wr(qp, npp, h2):
            dl = 2 * qp + npp
            g.lg("ds_write_b128 v%d, %s offset:%d" % (8 + dl - 1, vr(acc(qp, npp, h2)), rb + h2 * 1024), "rw")
        x = XR + 4 * ta
        for r in range(4):
            e("v_lshlrev_b32 v%d, 16, v%d" % (T + 2 * r, x + r))
            e("v_and_b32 v%d, 0xffff0000, v%d" % (T + 2 * r + 1, x + r))
        for i in range(4):
            g.wait_vm(("at", 1, i))
            if i == 0:
                g.ts(6 + 2 * ta)
                if ta == 0:
                    k.poll_issue(5, "s43", 12, "pf2b")
            for npp in range(2):
                for h2 in range(2):
                    mf(1, npp, h2, i)
        pend = [(1, 0, 0), (1, 0, 1), (1, 1, 0), (1, 1, 1)]
        for i in range(4):
            g.wait_vm(("at", 0, i))
            for h2 in range(2):
                mf(0, 1, h2, i)
            if i >= 1:
                wr(*pend.pop(0))
        pend += [(0, 1, 0), (0, 1, 1)]
        for i in range(4):
            for h2 in range(2):
                mf(0, 0, h2, i)
            if i != 1:
                wr(*pend.pop(0))
        g.wait_lg("rw")
        e("s_barrier")
        for d in range(3):
            for h2 in range(2):
                g.lg("ds_read_b128 %s, v11 offset:%d" % (vr(RD + (d * 2 + h2) * 4), rb + d * 2048 + h2 * 1024), ("rr", d))
        if ta == 1 and STOP >= 4:
            k.poll_issue(5, "s49", 12, "pf3a")
        a = acc(0, 0, 0)
        for r in range(0, 8, 2):
            e(g.pk("v_pk_add_f32", a + r, a + r, T + r))
        for d in range(3):
            g.wait_lg(("rr", d))
            for r in range(0, 8, 2):
                e(g.pk("v_pk_add_f32", a + r, a + r, RD + d * 8 + r))
        for r in range(4):
            e("v_cvt_pk_bf16_f32 v%d, v%d, v%d" % (x + r, a + 2 * r, a + 2 * r + 1))
        g.vm("buffer_store_dwordx4 %s, v%d, %s, s46 offen sc1" % (vr(x), L16, ws), "hs")
        for r in range(4):
            e("v_dot2_f32_bf16 v13, v%d, v7, %s" % (x + r, "v13" if r else "0"))
            e("v_dot2_f32_bf16 v14, v%d, v%d, %s" % (x + r, x + r, "v14" if r else "0"))
        e("v_permlane32_swap_b32 v13, v14")
        e("v_add_f32 v13, v13, v14")
        e("v_mov_b32 v14, v13")
        e("v_permlane16_swap_b32 v13, v14")
        e("v_add_f32 v13, v13, v14")
        g.vm("buffer_store_dword v13, v6, %s, s47 offen sc1" % ws, "hs")
        g.ts(7 + 2 * ta)
        if ta == 0:
            e("s_add_u32 s46, s46, 65536")
            e("s_add_u32 s47, s47, 2048")
            k.poll_check(5, "s43", 2, 12, "pf2b")
            atloads()
            colsum(CSA, 64)
        elif STOP >= 4:
            k.poll_check(5, "s49", 1, 12, "pf3a")
            k.p4_dma(0)
        g.wait_vm("hs")
        k.flag("s48", ta + 1, 15)
```

```python
from mg_k2 import *
D4 = int(os.environ.get('D4', '4'))
NF4 = int(os.environ.get('NF4', '2'))
PL2 = int(os.environ.get('PL2', '16'))
PC2 = int(os.environ.get('PC2', '28'))
SENT = 4
PGAP = int(os.environ.get('PGAP', '4'))
BUD = int(os.environ.get('BUD', '8'))
BUD0 = int(os.environ.get('BUD0', '0'))
BUDE = int(os.environ.get('BUDE', '4'))
EVS = int(os.environ.get('EVS', '0'))
FLD = int(os.environ.get('FLD', '30'))
W2S = int(os.environ.get('W2S', '1'))
ws = "s[%d:%d]" % (SWS, SWS + 3)
STB = 131072
W2V = 112
ACC, BR, SR, ET = 32, 64, 88, 24
NBR = 6
S_F3P, S_HSRC, S_M0, S_STS, S_HMS, S_F4, S_W2, S_F4P, S_HML, S_LV, S_OUT = 49, 50, 51, 52, 53, 54, 56, 57, 58, 59, 64


def p4_addr(k):
    e = k.g.e
    e("s_lshl_b32 s32, s%d, 2" % S_TB)
    e("s_add_u32 s32, s32, s3")
    e("s_lshl_b32 s%d, s32, 8" % S_F3P)
    e("s_add_u32 s%d, s%d, 0x%x" % (S_F3P, S_F3P, F3B))
    e("s_lshl_b32 s%d, s32, 12" % S_STS)
    e("s_add_u32 s%d, s%d, 0x%x" % (S_STS, S_STS, WS_ST))
    e("s_lshl_b32 s%d, s3, 12" % S_M0)
    e("s_lshl_b32 s%d, s%d, 17" % (S_HSRC, S_TB))
    e("s_add_u32 s%d, s%d, s%d" % (S_HSRC, S_HSRC, S_M0))
    e("s_add_u32 s%d, s%d, 0x%x" % (S_HSRC, S_HSRC, WS_H))
    e("s_lshl_b32 s32, s%d, 2" % S_MB)
    e("s_add_u32 s32, s32, s3")
    e("s_mul_i32 s33, s32, 147")
    e("s_lshr_b32 s33, s33, 11")
    e("s_mul_i32 s34, s33, 14")
    e("s_sub_u32 s34, s32, s34")
    e("s_lshl_b32 s%d, s%d, 3" % (S_F4, S_TB))
    e("s_add_u32 s%d, s%d, s33" % (S_F4, S_F4))
    e("s_lshl_b32 s%d, s%d, 8" % (S_F4, S_F4))
    e("s_lshl_b32 s34, s34, 2")
    e("s_add_u32 s%d, s%d, s34" % (S_F4, S_F4))
    e("s_add_u32 s%d, s%d, 0x%x" % (S_F4, S_F4, F4B))
    e("s_mul_i32 s%d, s%d, %d" % (S_HMS, S_TB, 8 * 57344))
    e("s_lshl_b32 s34, s32, 10")
    e("s_add_u32 s%d, s%d, s34" % (S_HMS, S_HMS))
    e("s_cmp_ge_u32 s%d, 14" % S_MB)
    e("s_cselect_b32 s34, 0x%x, 0" % (WS_HMD - WS_HM - 8192))
    e("s_add_u32 s%d, s%d, s34" % (S_HMS, S_HMS))
    e("s_add_u32 s%d, s%d, 0x%x" % (S_HMS, S_HMS, WS_HM))
    e("s_mul_i32 s%d, s%d, %d" % (S_W2, S_J, 56 * 4096))
    e("s_mul_i32 s34, s3, %d" % (14 * 4096))
    e("s_add_u32 s%d, s%d, s34" % (S_W2, S_W2))
    e("s_add_u32 s%d, s%d, 0x%x" % (S_W2, S_W2, WS_PW2))
    e("s_lshl_b32 s%d, s%d, 3" % (S_F4P, S_TA))
    e("s_add_u32 s%d, s%d, s%d" % (S_HML, S_F4P, S_HH))
    e("s_add_u32 s%d, s%d, s3" % (S_F4P, S_F4P))
    e("s_lshl_b32 s%d, s%d, 8" % (S_F4P, S_F4P))
    e("s_add_u32 s%d, s%d, 0x%x" % (S_F4P, S_F4P, F4B))
    e("s_mul_i32 s%d, s%d, 57344" % (S_HML, S_HML))
    e("s_mul_i32 s34, s3, 14336")
    e("s_add_u32 s%d, s%d, s34" % (S_HML, S_HML))
    e("s_add_u32 s%d, s%d, 0x%x" % (S_HML, S_HML, WS_HM))


def dma_list(k, half, sc=""):
    g = k.g
    e = g.e
    out = []
    def st(i):
        e("s_add_u32 m0, s%d, 0x%x" % (S_M0, STB))
        e("s_nop 0")
        g.vm("buffer_load_dwordx4 v%d, %s, s%d offen offset:%d lds%s" % (L16, ws, S_STS, half * 2048 + i * 1024, sc), ("tile", 4 * half))
    for p in range(4 * half, 4 * half + 4):
        def f(p, i):
            e("s_add_u32 m0, s%d, 0x%x" % (S_M0, p * 16384))
            e("s_add_u32 s66, s%d, 0x%x" % (S_HSRC, p * 16384))
            g.vm("buffer_load_dwordx4 v%d, %s, s66 offen offset:%d lds%s" % (L16, ws, i * 1024, sc), ("tile", p))
        out += [(lambda p=p, i=i: f(p, i)) for i in range(4)]
        if p == 4 * half:
            out += [(lambda i=i: st(i)) for i in range(2)]
    return out


def p4_dma(k, half):
    for f in dma_list(k, half):
        f()


K2.p4_addr = p4_addr
K2.p4_dma = p4_dma


NSB = 147456


def stats_ops(k, half):
    g = k.g
    e = g.e
    N = SR + 4
    ops = []
    for w in range(4):
        ops.append((2, lambda w=w: g.lg("ds_read2st64_b32 %s, v4 offset0:%d offset1:%d" % (vr(SR + 2 * w, 2), w * 16 + 8 * half, w * 16 + 8 * half + 1), ("st", half))))
    ops += [None] * 3
    def a0():
        g.wait_lg(("st", half))
        e("v_add_f32 v%d, v%d, v%d" % (SR, SR, SR + 1))
    ops.append((4, a0))
    add = lambda d, a, b: "v_add_f32 v%d, v%d, v%d" % (SR + d, SR + a, SR + b)
    for t in (add(2, 2, 3), add(4, 4, 5), add(6, 6, 7), add(0, 0, 2), add(4, 4, 6), add(0, 0, 4), add(1, 0, 4) if False else "v_mov_b32 v%d, v%d" % (SR + 1, SR),
              None, "v_permlane16_swap_b32 v%d, v%d" % (SR, SR + 1), None,
              add(0, 0, 1), "v_mov_b32 v%d, v%d" % (SR + 1, SR),
              None, "v_permlane32_swap_b32 v%d, v%d" % (SR, SR + 1), None,
              "v_mul_f32 v%d, %s, v%d" % (N, f32hex(-1.0 / 512), SR),
              "v_mul_f32 v%d, %s, v%d" % (N + 2, f32hex(1.0 / 512), SR + 1),
              "v_add_f32 v%d, %s, v%d" % (N + 2, f32hex(1e-5), N + 2),
              "v_fma_f32 v%d, -v%d, v%d, v%d" % (N + 2, N, N, N + 2),
              "v_rsq_f32 v%d, v%d" % (N + 1, N + 2), None,
              "v_mul_f32 v%d, %s, v%d" % (N + 1, f32hex(-LOG2E), N + 1)):
        ops.append(((8 if "rsq" in t else 4), lambda t=t: e(t)) if t else None)
    ops.append((2, lambda: g.lg("ds_write_b96 v6, %s offset:%d" % (vr(N, 3), half * 1024), "nsw")))
    return ops


def nread(k, p):
    k.g.lg("ds_read_b96 %s, v7 offset:%d" % (vr(8 + 4 * (p & 1), 3), p * 256), ("n", p))


def epi_ops(k, p, packed=False):
    g = k.g
    e = g.e
    N = 8 + 4 * (p & 1)
    A = ACC + 16 * (p & 1)
    T = []
    if packed:
        for r in range(0, 8, 2):
            T.append(g.pk("v_pk_fma_f32", A + r, CS + r, N, A + r, sel={1: (0, 0)}))
        for r in range(0, 8, 2):
            T.append(g.pk("v_pk_mul_f32", ET + r, A + r, N, sel={1: (1, 1)}))
        for r in range(0, 8, 2):
            T.append("v_exp_f32 v%d, v%d" % (ET + r, ET + r))
            T.append(g.pk("v_pk_fma_f32", A + 8 + r, CS + 8 + r, N, A + 8 + r, sel={1: (0, 0)}))
            T.append("v_exp_f32 v%d, v%d" % (ET + r + 1, ET + r + 1))
        for r in range(0, 8, 2):
            T.append(g.pk("v_pk_fma_f32", ET + r, ET + r, N + 2, N + 2, sel={1: (0, 0), 2: (0, 0)}))
        for r in range(0, 8, 2):
            T.append("v_rcp_f32 v%d, v%d" % (ET + r, ET + r))
            T.append(g.pk("v_pk_mul_f32", A + r, A + r, A + 8 + r))
            T.append("v_rcp_f32 v%d, v%d" % (ET + r + 1, ET + r + 1))
        for r in range(0, 8, 2):
            T.append(g.pk("v_pk_mul_f32", A + r, A + r, ET + r))
    else:
        R8 = range(8)
        T += ["v_fma_f32 v%d, v%d, v%d, v%d" % (A + r, CS + r, N, A + r) for r in R8]
        T += ["v_mul_f32 v%d, v%d, v%d" % (ET + r, A + r, N + 1) for r in R8]
        T += ["v_exp_f32 v%d, v%d" % (ET + r, ET + r) for r in R8]
        T += ["v_fma_f32 v%d, v%d, v%d, v%d" % (A + 8 + r, CS + 8 + r, N, A + 8 + r) for r in R8]
        T += ["v_fma_f32 v%d, v%d, v%d, v%d" % (ET + r, ET + r, N + 2, N + 2) for r in R8]
        T += ["v_rcp_f32 v%d, v%d" % (ET + r, ET + r) for r in R8]
        T += ["v_mul_f32 v%d, v%d, v%d" % (A + r, A + r, A + 8 + r) for r in R8]
        T += ["v_mul_f32 v%d, v%d, v%d" % (A + r, A + r, ET + r) for r in R8]
    for r in range(4):
        T.append("v_cvt_pk_bf16_f32 v%d, v%d, v%d" % (A + 8 + r, A + 2 * r, A + 2 * r + 1))
    ops = [((8 if ("exp" in t or "rcp" in t) else 4), (lambda t=t: e(t))) for t in T]
    f0 = ops[0][1]
    def first():
        g.wait_lg(("n", p))
        f0()
    ops[0] = (4, first)
    def st():
        e("s_add_u32 s66, s%d, 0x%x" % (S_HMS, 57344 * p))
        g.vm("buffer_store_dwordx4 %s, v%d, %s, s66 offen sc1" % (vr(A + 8), L16, ws), ("hm", p))
        k.hm_step[p] = k.step
        if p >= SENT:
            g.wait_vm("sent4")
            k.flag("s%d" % S_F4, p + 1, 15, 64)
    ops.append((0, st))
    return ops


def w2load(k, i, dst):
    g = k.g
    g.e("s_add_u32 s66, s%d, 0x%x" % (S_W2, i // 4 * 4096))
    g.vm("buffer_load_dwordx4 %s, v%d, %s, s66 offen offset:%d" % (dst, L16, ws, (i % 4) * 1024), ("w2", i))


def w2dma(k, i):
    g = k.g
    gi = i // 4 - 9
    g.e("s_add_u32 m0, s%d, 0x%x" % (S_M0, gi * 16384))
    g.e("s_add_u32 s66, s%d, 0x%x" % (S_W2, i // 4 * 4096))
    g.vm("buffer_load_dwordx4 v%d, %s, s66 offen offset:%d lds" % (L16, ws, (i % 4) * 1024), ("w2", i))


def p4(k):
    g = k.g
    e = g.e
    k.hm_step = {}
    e("v_add_u32 v3, 0x10000, v%d" % L16)
    e("v_bfe_u32 v4, v1, 4, 1")
    e("v_lshlrev_b32 v4, 7, v4")
    e("v_lshrrev_b32 v6, 5, v1")
    e("v_lshl_add_u32 v4, v6, 6, v4")
    e("v_add_u32 v4, v4, v5")
    e("s_lshl_b32 s32, s3, 9")
    e("s_add_u32 s32, s32, 0x%x" % STB)
    e("v_add_u32 v4, s32, v4")
    e("v_lshlrev_b32 v7, 2, v5")
    e("v_add_u32 v7, 0x%x, v7" % NSB)
    e("s_lshl_b32 s32, s3, 8")
    e("v_add_u32 v6, s32, v7")
    def bread(n):
        p, ks = divmod(n, 16)
        g.lg("ds_read_b128 %s, v%d offset:%d" % (vr(BR + 4 * (n % NBR)), 3 if p >= 4 else L16, (p & 3) * 16384 + ks * 1024), ("b", n))
    ev = {}
    def at(n, f):
        ev.setdefault(n, []).append(f)
    at(PL2, lambda: k.poll_issue(5, "s%d" % S_F3P, 0, "pf3b"))
    at(PC2, lambda: k.poll_check(5, "s%d" % S_F3P, 2, 0, "pf3b"))
    for i, f in enumerate(dma_list(k, 1)):
        at(PC2 + i, f)
    for r in range(4):
        e("v_mov_b32 v%d, -1" % (ET + r))
    for p in range(SENT, 8):
        e("s_add_u32 s66, s%d, 0x%x" % (S_HMS, 57344 * p))
        g.vm("buffer_store_dwordx4 %s, v%d, %s, s66 offen sc1" % (vr(ET), L16, ws), "sent4")
    if STOP >= 5:
        n = W2S
        for i in range(56):
            while PL2 - PGAP <= n <= PL2 or PC2 <= n < PC2 + 18 or (i >= 36 and n <= 16 * (i // 4 - 9 + 2) - D4):
                n += 1
            if i < 36:
                at(n, lambda i=i: w2load(k, i, vr(W2V + 4 * i)))
            else:
                at(n, lambda i=i: w2dma(k, i))
            n += 1
        e("v_add_u32 v11, s%d, v%d" % (S_M0, L16))
        k.p5_events(at)
    g.wait_vm(("tile", 0))
    e("s_barrier")
    g.ts(10)
    for n in range(D4):
        bread(n)
    fq = []
    def push(slot, ops):
        for o in ops:
            fq.append((slot, o))
    BAR = 4 * (16 - D4)
    push(1, stats_ops(k, 0))
    for p in range(7):
        push(64 * (p + 1) + 2, epi_ops(k, p))
        if p == 2:
            push(64 * 3 + BAR + 1, stats_ops(k, 1))
    for p in range(8):
        at(16 * p + 16 - D4 + 1, lambda p=p: nread(k, p))
    flagged = set()
    for n in range(128):
        p, ks = divmod(n, 16)
        k.step = n
        if ks == 0 and p >= 2:
            assert p - 2 in k.hm_step
        g.wait_lg(("b", n))
        if ks == 0:
            g.ts(1 + p, 2)
        if n in (8, 24, 40, 56):
            g.ts(10 + n // 16, 2)
        for i in range(4):
            d = vr(ACC + 16 * (p & 1) + 4 * i)
            e("v_mfma_f32_16x16x32_bf16 %s, %s, %s, %s" % (d, ar(16 * ks + 4 * i), vr(BR + 4 * (n % NBR)), d if ks else "0"))
            bud = BUD
            if i == 0:
                if n + D4 < 128:
                    if (n + D4) % 16 == 0:
                        if p in (0, 4):
                            assert "nsw" in g.seen, p
                            g.seen.discard("nsw")
                            g.wait_lg("nsw")
                        g.wait_vm(("tile", p + 1))
                        e("s_barrier")
                    bread(n + D4)
                bud = BUD0 if p != 4 else 4
            if i == EVS and n in ev:
                for f in ev.pop(n):
                    f()
                bud = min(bud, BUDE)
            while fq and fq[0][0] <= 4 * n + i:
                o = fq[0][1]
                if o is None:
                    fq.pop(0)
                    break
                if o[0] > bud:
                    break
                bud -= o[0]
                fq.pop(0)
                o[1]()
        for pp, st in k.hm_step.items():
            if pp not in flagged and pp < SENT and n >= st + FLD:
                flagged.add(pp)
                g.wait_vm(("hm", pp))
                k.flag("s%d" % S_F4, pp + 1, 15)
    assert not ev, ev.keys()
    assert not fq
    assert flagged == set(range(SENT))
    g.ts(11)
    g.ts(9, 2)
    k.step = 128
    k.flagged = flagged
    if STOP < 5:
        for f in epi_ops(k, 7, True):
            f[1]()
```

```python
from mg_p4 import *
PA0 = int(os.environ.get('PA0', '98'))
PA1 = int(os.environ.get('PA1', '116'))
PQ3 = int(os.environ.get('PQ3', '0'))
FORCE5 = int(os.environ.get('FORCE5', '0'))
HA = (0, 136, 192, 0)
W2A = 56
A5 = (64, 80, 32, 48)
RB5 = (98304, 131072)


def hload1(k, q, i, sc=""):
    g = k.g
    g.e("s_add_u32 s66, s%d, 0x%x" % (S_HML, q * 114688 + i // 4 * 4096))
    g.vm("buffer_load_dwordx4 %s, v%d, %s, s66 offen offset:%d%s" % (ar(HA[q] + 4 * i), L16, ws, (i % 4) * 1024, sc), ("h", q, i))


def p5_events(k, at):
    g = k.g
    e = g.e
    pa = "s%d" % S_F4P
    def prep():
        e("v_min_u32 v5, 52, v5")
        e("v_add_u32 v4, 0x10000, v11")
        for q in range(4):
            e("s_add_u32 s%d, s%d, %d" % (67 + q, S_HH, 2 * q + 1))
    at(90, prep)
    at(PA0, lambda: k.poll_issue(5, pa, 0, "pq0"))
    at(112, lambda: k.poll_check(5, pa, "s67", 0, "pq0"))
    for i in range(14):
        at(113 + i, lambda i=i: hload1(k, 0, i))
    at(PA1, lambda: k.poll_issue(5, pa, 0, "pq1"))
    def w2r(j):
        gi, q = divmod(j, 4)
        g.wait_vm(("w2", 36 + j))
        g.lg("ds_read_b128 %s, v%d offset:%d" % (ar(W2A + 4 * j), 11 if gi < 4 else 4, (gi & 3) * 16384 + q * 1024), ("w2r", gi))
    for j in range(20):
        at(117 + j // 2, lambda j=j: w2r(j))


K2.p5_events = p5_events


def p5(k):
    g = k.g
    e = g.e
    pa = "s%d" % S_F4P
    for f in epi_ops(k, 7, True):
        f[1]()
    k.poll_check(5, pa, "s68", 0, "pq1")
    k.poll_issue(5, pa, 0, "pq2", 64)
    e("s_lshl_b32 s32, s3, 11")
    e("s_add_u32 s32, s32, %d" % RB5[0])
    e("v_add_u32 v3, s32, v%d" % L16)
    e("s_lshl_b32 s32, s3, 13")
    e("s_add_u32 s32, s32, %d" % RB5[0])
    e("v_add_u32 v4, s32, v%d" % L16)
    e("v_and_b32 v6, 15, v1")
    e("v_lshlrev_b32 v6, 10, v6")
    e("v_bfe_u32 v7, v1, 4, 1")
    e("v_lshl_add_u32 v6, v7, 5, v6")
    e("v_lshrrev_b32 v7, 5, v1")
    e("v_lshl_add_u32 v6, v7, 4, v6")
    e("s_lshl_b32 s32, s%d, 3" % S_TA)
    e("s_add_u32 s32, s32, s%d" % S_HH)
    e("s_and_b32 s33, s3, 2")
    e("s_add_u32 s32, s32, s33")
    e("s_lshl_b32 s32, s32, 14")
    e("s_lshl_b32 s33, s%d, 7" % S_J)
    e("s_add_u32 s32, s32, s33")
    e("s_and_b32 s33, s3, 1")
    e("s_lshl_b32 s33, s33, 6")
    e("s_add_u32 s%d, s32, s33" % S_OUT)

    def w2(i, nt):
        f = 4 * i + nt
        return vr(W2V + 4 * f) if f < 36 else ar(W2A + 4 * (f - 36))

    def mm(q, fill=None, hook=None):
        fill = fill or []
        for i in range(14):
            g.wait_vm(("h", q, i))
            if i >= 9:
                g.wait_lg(("w2r", i - 9))
            for nt in range(4):
                d = vr(A5[q] + 4 * nt)
                e("v_mfma_f32_16x16x32_bf16 %s, %s, %s, %s" % (d, w2(i, nt), ar(HA[q] + 4 * i), d if i else "0"))
                for _ in range(2):
                    if fill:
                        f = fill.pop(0)
                        if f:
                            f()
            if hook and i in hook:
                hook[i]()
        for f in fill:
            if f:
                f()

    def rwrite(q):
        return [(lambda nt=nt: g.lg("ds_write_b128 v3, %s offset:%d" % (vr(A5[q] + 4 * nt), (q >> 1) * 32768 + (q & 1) * 16384 + (nt >> 1) * 8192 + (nt & 1) * 1024), "rw")) for nt in range(4)]

    def rfin(pr):
        R = A5[2 * pr]
        x = XR + 4 * pr
        ops = []
        def bar():
            g.wait_lg("rw")
            e("s_barrier")
        ops.append(bar)
        for s in range(4):
            for h2 in range(2):
                ops.append(lambda s=s, h2=h2: g.lg("ds_read_b128 %s, v4 offset:%d" % (vr(R + 8 * s + 4 * h2), pr * 32768 + s * 2048 + h2 * 1024), ("rr", s)))
        for r in range(4):
            ops.append(lambda r=r: e("v_lshlrev_b32 v%d, 16, v%d" % (ET + 2 * r, x + r)))
            ops.append(lambda r=r: e("v_and_b32 v%d, 0xffff0000, v%d" % (ET + 2 * r + 1, x + r)))
        for s in range(4):
            for r in range(0, 8, 2 if pr else 1):
                def f(s=s, r=r):
                    g.wait_lg(("rr", s))
                    if pr:
                        e(g.pk("v_pk_add_f32", ET + r, ET + r, R + 8 * s + r))
                    else:
                        e("v_add_f32 v%d, v%d, v%d" % (ET + r, ET + r, R + 8 * s + r))
                ops.append(f)
        for r in range(4):
            ops.append(lambda r=r: e("v_cvt_pk_bf16_f32 v%d, v%d, v%d" % (x + r, ET + 2 * r, ET + 2 * r + 1)))
        ops.append(None)
        ops.append(lambda: e("v_permlane16_swap_b32 v%d, v%d" % (x, x + 2)))
        ops.append(lambda: e("v_permlane16_swap_b32 v%d, v%d" % (x + 1, x + 3)))
        ops.append(None)
        def st():
            g.vm("buffer_store_dwordx4 %s, v6, s[%d:%d], s%d offen" % (vr(x), SOUT, SOUT + 3, S_OUT), "out")
            e("s_add_u32 s%d, s%d, 65536" % (S_OUT, S_OUT))
        ops.append(st)
        return ops

    slow = []
    def check(q):
        LS, LB = g.newlabel("slow"), g.newlabel("back")
        e("v_cmp_u_f32 vcc, v%d, v%d" % (A5[q], A5[q]))
        if FORCE5:
            e("s_branch %s" % LS)
        e("s_cbranch_vccnz %s" % LS)
        g.label(LB)
        slow.append((q, LS, LB))

    mm(0, hook={i: (lambda i=i: hload1(k, 1, i)) for i in range(14)})
    g.ts(12)
    k.poll_check(5, pa, "s69", 0, "pq2", 64)
    for i in range(14):
        if i == PQ3:
            k.poll_issue(5, pa, 0, "pq3", 64)
        hload1(k, 2, i)
    e("s_barrier")
    mm(1, [None] * 6 + rwrite(0))
    k.poll_check(5, pa, "s70", 0, "pq3", 64)
    g.ts(13)
    mm(2, [None] * 6 + rwrite(1) + [None] * 6 + rfin(0), hook={i: (lambda i=i: hload1(k, 3, i)) for i in range(14)})
    check(2)
    mm(3, [None] * 6 + rwrite(2))
    check(3)
    for f in rwrite(3) + rfin(1):
        if f:
            f()
    def tail():
        for q, LS, LB in slow:
            LL = g.newlabel("retry")
            g.label(LS)
            if TS:
                e("s_add_u32 s98, s98, 0x10000000")
            e("s_mov_b32 s39, 200")
            g.label(LL)
            g.vmq, g.lgq = [], []
            for i in range(14):
                hload1(k, q, i, " sc1")
            e("s_waitcnt vmcnt(0) lgkmcnt(0)")
            g.vmq = []
            mm(q)
            e("s_sub_u32 s39, s39, 1")
            e("s_cbranch_scc1 %s" % LB)
            e("v_cmp_u_f32 vcc, v%d, v%d" % (A5[q], A5[q]))
            e("s_cbranch_vccnz %s" % LL)
            e("s_branch %s" % LB)
    k.tails.append(tail)
```

```python
import sys, os
sys.path.insert(0, os.path.dirname(os.path.abspath(__file__)))
from mg_base import *
from mg_k1 import k1
def main():
    g = G()
    ks = [k1(g, "k1_qkv_kernel")]
    if not int(os.environ.get("K1ONLY", "0")):
        from mg_k2 import k2
        ks.append(k2(g, "k2_mega_kernel"))
    emit(g, ks, sys.argv[1])
main()
```
